```python
import torch

def _softmax(x, axis=-1):
    return torch.softmax(x, dim=axis)
def _gelu(x):
    return torch.nn.functional.gelu(x, approximate="tanh")
def _silu(x):
    return torch.nn.functional.silu(x)
def _sigmoid(x):
    return torch.sigmoid(x)
def _layernorm(x, axis=-1, eps=1e-5):
    m = x.mean(dim=axis, keepdim=True)
    v = x.var(dim=axis, keepdim=True, unbiased=False)
    return (x - m) / torch.sqrt(v + eps)
def _scatter_add(tgt, idx, src, axis=0):
    return tgt.clone().index_add_(axis, idx, src)
def _segment_sum(src, seg, n):
    out = torch.zeros((n,) + src.shape[1:], dtype=src.dtype)
    return out.index_add_(0, seg, src)
def _pad(x, pw):
    flat = tuple(v for pair in reversed(pw) for v in pair)
    return torch.nn.functional.pad(x, flat)

kernel_name = 'standalone__gqa_softmax__near_ridge'

def setup_inputs():

    _w = (lambda a: (lambda t: t.to(torch.bfloat16) if t.is_floating_point() else t)(torch.as_tensor(a)))
    B, Hq, Hkv, Sq, Sk, D = 8, 32, 8, 160, 1024, 128
    return {
        "q": _w((lambda *s: torch.randn(*s, dtype=torch.bfloat16) * 0.8)(B, Hq, Sq, D)),
        "k": _w((lambda *s: torch.randn(*s, dtype=torch.bfloat16) * 0.8)(B, Hkv, Sk, D)),
        "v": _w((lambda *s: torch.randn(*s, dtype=torch.bfloat16) * 0.05)(B, Hkv, Sk, D)),
    }

def reference(q, k, v):
    B, Hq, Sq, D = q.shape
    Hkv = k.shape[1]
    rep = Hq // Hkv
    k = (lambda x, n, axis: torch.repeat_interleave(x, n, dim=axis))(k, rep, axis=1)
    v = (lambda x, n, axis: torch.repeat_interleave(x, n, dim=axis))(v, rep, axis=1)
    scale = D ** -0.5
    scores = torch.einsum("bhqd,bhkd->bhqk", q, k) * scale
    p = _softmax(scores, axis=-1)
    return torch.einsum("bhqk,bhkd->bhqd", p, v)
```

```python
import re

def R(f, b, n=1):
    return [f"{f}{b+i}" for i in range(n)]
def T(f, b, n=1):
    return f"{f}{b}" if n == 1 else f"{f}[{b}:{b+n-1}]"

class I:
    __slots__ = ('t', 'k', 'r', 'w', 'x')
    def __init__(self, t, k, r=(), w=(), **x):
        self.t = t; self.k = k; self.r = tuple(r); self.w = tuple(w); self.x = x
    def __repr__(self): return self.t

def mfma(D, A, B, C):
    ct = "0" if C == 0 else T(C[0], C[1], 16)
    r = R(A[0], A[1], 4) + R(B[0], B[1], 4) + ([] if C == 0 else R(C[0], C[1], 16))
    return I(f"v_mfma_f32_32x32x16_bf16 {T(D[0],D[1],16)}, {T(A[0],A[1],4)}, {T(B[0],B[1],4)}, {ct}", 'mfma',
             r, R(D[0], D[1], 16), passes=8, cls='xdl', C=([] if C == 0 else R(C[0], C[1], 16)),
             AB=R(A[0], A[1], 4) + R(B[0], B[1], 4))
def mfma_f32(D, a, b, C):
    ct = "0" if C == 0 else T(C[0], C[1], 16)
    r = [f"v{a}", f"v{b}"] + ([] if C == 0 else R(C[0], C[1], 16))
    return I(f"v_mfma_f32_32x32x2_f32 {T(D[0],D[1],16)}, v{a}, v{b}, {ct}", 'mfma', r, R(D[0], D[1], 16),
             passes=16, cls='sgemm', C=([] if C == 0 else R(C[0], C[1], 16)), AB=[f"v{a}", f"v{b}"])
def _regs(*ops):
    out = []
    for o in ops:
        if isinstance(o, str):
            m = re.fullmatch(r'-?\|?([vas])(\d+)\|?', o)
            if m: out.append(m.group(1) + m.group(2)); continue
            m = re.fullmatch(r'([vas])\[(\d+):(\d+)\]', o)
            if m: out += R(m.group(1), int(m.group(2)), int(m.group(3)) - int(m.group(2)) + 1); continue
            if o in ('vcc', 'exec', 'm0', 'scc'): out.append(o)
    return out
def V(op, d, *srcs, trans=False, rmw=False, extra_r=(), extra_w=(), mods=""):
    srcs = [str(s) for s in srcs]
    t = f"{op} {d}, " + ", ".join(srcs) + (" " + mods if mods else "")
    r = _regs(*srcs) + list(extra_r) + (_regs(d) if rmw else [])
    return I(t, 'trans' if trans else 'valu', r, _regs(d) + list(extra_w))
def vexp(d, s): return V("v_exp_f32", d, s, trans=True)
def vrcp(d, s): return V("v_rcp_f32", d, s, trans=True)
def vadd(d, a, b): return V("v_add_f32", d, a, b)
def vmul(d, a, b): return V("v_mul_f32", d, a, b)
def cvtpk(d, a, b): return V("v_cvt_pk_bf16_f32", d, a, b)
def vmov(d, s): return V("v_mov_b32", d, s)
def accw(d, s): return V("v_accvgpr_write_b32", d, s)
def accr(d, s): return V("v_accvgpr_read_b32", d, s)
def swap32(a, b): return I(f"v_permlane32_swap_b32 {a}, {b}", 'perm', [a, b], [a, b])
def vcmp(op, d, a, b):
    return I(f"{op} {d}, {a}, {b}", 'valu', _regs(a, b), _regs(d) if d != 'vcc' else ['vcc'])
def readfirst(s, v): return I(f"v_readfirstlane_b32 {s}, {v}", 'valu', [v], [s], rfl=True)
def S(op, d, *srcs, w_scc=True, r_scc=False):
    srcs = [str(s) for s in srcs]
    t = f"{op} {d}" + ("".join(", " + s for s in srcs))
    return I(t, 'salu', _regs(*srcs) + (['scc'] if r_scc else []), _regs(d) + (['scc'] if w_scc else []))
def smov(d, s): return S("s_mov_b32", d, s, w_scc=False)
def scmp(op, a, b): return I(f"{op} {a}, {b}", 'salu', _regs(str(a), str(b)), ['scc'])
def dsr128(D, addr, off, reg=None):
    return I(f"ds_read_b128 {T(D[0],D[1],4)}, v{addr}" + (f" offset:{off}" if off else ""), 'dsr', [f"v{addr}"], R(D[0], D[1], 4), reg=reg)
def dsr64(D, addr, off, reg=None):
    return I(f"ds_read_b64 {T(D[0],D[1],2)}, v{addr}" + (f" offset:{off}" if off else ""), 'dsr', [f"v{addr}"], R(D[0], D[1], 2), reg=reg)
def dstr(D, addr, off, reg=None):
    return I(f"ds_read_b64_tr_b16 {T(D[0],D[1],2)}, v{addr}" + (f" offset:{off}" if off else ""), 'dsr', [f"v{addr}"], R(D[0], D[1], 2), reg=reg)
def dsw128(addr, Sr, off, reg=None):
    return I(f"ds_write_b128 v{addr}, {T(Sr[0],Sr[1],4)}" + (f" offset:{off}" if off else ""), 'dsw', [f"v{addr}"] + R(Sr[0], Sr[1], 4), [], reg=reg)
def dsw64(addr, Sr, off, reg=None):
    return I(f"ds_write_b64 v{addr}, {T(Sr[0],Sr[1],2)}" + (f" offset:{off}" if off else ""), 'dsw', [f"v{addr}"] + R(Sr[0], Sr[1], 2), [], reg=reg)
def dma(voff, srd, soff, off, reg=None, flags=""):
    so = soff if isinstance(soff, str) else str(soff)
    return I(f"buffer_load_dwordx4 v{voff}, s[{srd}:{srd+3}], {so} offen" + (f" offset:{off}" if off else "") + (" " + flags if flags else "") + " lds",
             'dma', [f"v{voff}", 'm0'] + R('s', srd, 4) + _regs(so), [], reg=reg)
def vload(D, n, voff, srd, soff, off, flags="", op=None):
    so = soff if isinstance(soff, str) else str(soff)
    op = op or {1: "buffer_load_dword", 2: "buffer_load_dwordx2", 4: "buffer_load_dwordx4"}[n]
    return I(f"{op} {T(D[0],D[1],n)}, v{voff}, s[{srd}:{srd+3}], {so} offen" + (f" offset:{off}" if off else "") + (" " + flags if flags else ""),
             'vload', [f"v{voff}"] + R('s', srd, 4) + _regs(so), R(D[0], D[1], n))
def vstore(Sr, n, voff, srd, soff, off, flags=""):
    so = soff if isinstance(soff, str) else str(soff)
    op = {1: "buffer_store_dword", 2: "buffer_store_dwordx2", 4: "buffer_store_dwordx4"}[n]
    return I(f"{op} {T(Sr[0],Sr[1],n)}, v{voff}, s[{srd}:{srd+3}], {so} offen" + (f" offset:{off}" if off else "") + (" " + flags if flags else ""),
             'vstore', [f"v{voff}"] + R('s', srd, 4) + _regs(so) + R(Sr[0], Sr[1], n), [], data=R(Sr[0], Sr[1], n), wide=(n >= 3))
def wait(vm=None, lg=None):
    p = []
    if vm is not None: p.append(f"vmcnt({vm})")
    if lg is not None: p.append(f"lgkmcnt({lg})")
    return I("s_waitcnt " + " ".join(p), 'wait', vm=vm, lg=lg)
def barrier(): return I("s_barrier", 'bar')
def nop(n): return I(f"s_nop {n}", 'nop', n=n)
def label(name): return I(f"{name}:", 'label')
def branch(op, target, r=()): return I(f"{op} {target}", 'branch', r)
def raw(t, k='salu', r=(), w=(), **x): return I(t, k, r, w, **x)
def comment(t): return I(f"; {t}", 'label')

class VerifyError(Exception): pass

def verify(trace, name="trace", check_lds=True, verbose=False):
    errs = []
    real = [x for x in trace if x.k != 'label']
    def states_between(i, j):
        n = 0
        for q in range(i + 1, j):
            n += (real[q].x['n'] + 1) if real[q].k == 'nop' else 1
        return n
    VAL = ('valu', 'trans', 'perm')
    for j, c in enumerate(real):
        cr, cw = set(c.r), set(c.w)
        n = 0
        for i in range(j - 1, max(-1, j - 26), -1):
            p = real[i]
            if n > 21: break
            pw, pr = set(p.w), set(p.r)
            need = 0; why = None
            def req(k, s):
                nonlocal need, why
                if k > need: need, why = k, s
            if p.k in VAL:
                vw = {x for x in pw if x[0] in 'va' and x != 'vcc'}
                sw = {x for x in pw if x[0] == 's' and x != 'scc' or x == 'vcc'}
                if c.k == 'mfma' and vw & cr: req(2, "VALU->MFMA read")
                if c.k == 'perm' and vw & cr: req(2, "VALU->permlane")
                if c.x.get('rfl') and vw & cr: req(1, "VALU->readfirstlane")
                if p.k == 'trans' and c.k in ('valu', 'perm') and vw & cr: req(1, "trans->valu")
                if p.k == 'trans' and c.k in ('dsw', 'vstore', 'mfma') and vw & cr: req(2, "trans->mem/mfma (conservative)")
                if sw & cr:
                    if c.k in VAL: req(2, "VALU sgpr/vcc->VALU read")
                    if c.k in ('dma', 'vload', 'vstore'): req(5, "VALU sgpr->VMEM")
                    if c.k in ('salu', 'branch'): req(1, "VALU sgpr->SALU (conservative)")
            if p.k == 'mfma':
                ps = p.x['passes']; D = pw
                xdl = p.x['cls'] == 'xdl'
                if c.k == 'mfma':
                    cC = set(c.x['C']); cAB = set(c.x['AB'])
                    if cAB & D: req({8: 12, 16: 20}[ps] if xdl else {16: 18}[ps], "MFMA D->MFMA A/B")
                    if cC & D:
                        exact = (cC == D and c.x['cls'] == p.x['cls'])
                        if not exact:
                            if xdl: req({8: 10}[ps], "XDL D->overlap SrcC")
                            elif c.x['cls'] == 'sgemm': req(16, "SGEMM D->SGEMM C overlap")
                            else: req(4, "SGEMM D->XDL C (padded)")
                    if (cw & D) and not (cC & D):
                        req({8: 10, 16: 16}[ps], "MFMA D WAW MFMA")
                else:
                    k = ({8: 12}[ps] if xdl else {16: 18}[ps])
                    if c.k in VAL and ((cr | cw) & D): req(k, "MFMA D->VALU")
                    if c.k in ('dsw', 'vstore', 'dsr', 'vload', 'dma') and ((cr | cw) & D): req(k, "MFMA D->mem")
                    pc = set(p.x['C'])
                    if c.k in VAL and (cw & pc) and xdl: req(7, "XDL SrcC WAR VALU")
            if p.k == 'salu' and 'm0' in pw and c.k == 'dma': req(1, "M0->DMA")
            if p.k == 'vstore' and p.x.get('wide') and c.k in VAL and (cw & set(p.x['data'])): req(2, "store data WAR")
            if p.k == 'vstore' and p.x.get('wide') and c.k in ('dsr', 'vload') and (cw & set(p.x['data'])): req(1, "store data WAR(load)")
            if need > n:
                errs.append(f"[{name}] hazard '{why}': '{p.t}' -> '{c.t}' has {n} states, needs {need} (idx {i}->{j})")
            n += (p.x['n'] + 1) if p.k == 'nop' else 1
    lgq = []
    vmq = []
    pend = {}
    seq = 0
    bufs = {}
    def B(b):
        return bufs.setdefault(b, dict(cur=None, out=0, landed=None, visible=None, reads_out=0, unsafe=False, wr_out=0))
    for j, c in enumerate(real):
        if c.k == 'wait':
            if c.x.get('lg') is not None:
                while len(lgq) > c.x['lg']:
                    o = lgq.pop(0)
                    for w in o.w:
                        if pend.get(w) is o: del pend[w]
                    rg = o.x.get('reg')
                    if rg is not None:
                        b = B(rg[0])
                        if o.k == 'dsr': b['reads_out'] -= 1
                        else:
                            b['wr_out'] -= 1
                            if b['wr_out'] == 0 and b['out'] == 0: b['landed'] = b['cur']
            if c.x.get('vm') is not None:
                while len(vmq) > c.x['vm']:
                    o = vmq.pop(0)
                    for w in o.w:
                        if pend.get(w) is o: del pend[w]
                    if o.k == 'dma' and o.x.get('reg') is not None:
                        b = B(o.x['reg'][0]); b['out'] -= 1
                        if b['out'] == 0 and b.get('expect_more', 0) == 0: b['landed'] = b['cur']
            continue
        if c.k == 'bar':
            for b in bufs.values():
                if b['out'] == 0 and b['wr_out'] == 0 and b['landed'] == b['cur']: b['visible'] = b['landed']
                b['unsafe'] = b['reads_out'] > 0
                b['read_since_bar'] = False
            continue
        for r in c.r:
            if r in pend: errs.append(f"[{name}] '{c.t}' (idx {j}) reads {r} with load outstanding: '{pend[r].t}'")
        for w in c.w:
            if w in pend and not (c.k in ('dsr',) and pend[w].k == 'dsr') and not (c.k == 'vload' and pend[w].k == 'vload'):
                errs.append(f"[{name}] '{c.t}' (idx {j}) writes {w} with load outstanding: '{pend[w].t}'")
        if c.k in ('dsr', 'dsw', 'smem'):
            lgq.append(c)
            if len(lgq) > 15 + 48: pass
            for w in c.w: pend[w] = c
        if c.k in ('vload', 'dma', 'vstore'):
            vmq.append(c)
            if len(vmq) > 63: errs.append(f"[{name}] vmcnt overflow at idx {j}")
            for w in c.w: pend[w] = c
        rg = c.x.get('reg')
        if check_lds and rg is not None:
            b = B(rg[0])
            if c.k == 'dsr':
                ok = (b['visible'] == rg[1]) or (rg[2] and b['landed'] == rg[1])
                if not ok: errs.append(f"[{name}] LDS read '{c.t}' (idx {j}) of {rg}: landed={b['landed']} visible={b['visible']}")
                b['reads_out'] += 1; b['read_since_bar'] = True
            elif c.k in ('dma', 'dsw'):
                if b['cur'] != rg[1]:
                    if b['unsafe'] or b.get('read_since_bar', False):
                        errs.append(f"[{name}] LDS WAR: '{c.t}' (idx {j}) overwrites {rg[0]} (content {b['cur']}) without barrier after its reads")
                    b['cur'] = rg[1]; b['landed'] = None; b['visible'] = None
                else:
                    b['landed'] = None; b['visible'] = None
                if c.k == 'dma': b['out'] += 1
                else: b['wr_out'] += 1
    return errs

def text_of(stream):
    out = []
    for x in stream:
        if x.k == 'label': out.append(x.t)
        else: out.append("    " + x.t)
    return "\n".join(out)
```

```python
import sys, argparse
from asmlib import *

NAME = "standalone__gqa_softmax__near_ridge"

class Cfg:
    E0 = 10
    LEAD = 4
    LAG = 3
    thresh = 0x4b800000
    stamps = False
    force_slow = False
cfg = Cfg()

L_OWN, L_SH, M_OWN, M_SH = 8, 9, 10, 11
KDMA = 12
VDMA = 16
VHALF = 17
VQ = 18
VMW, VMR0, VMR1, VML = 19, 20, 21, 22
TMP = 1
KADDR = 24
VADDR = 56
P = 72
SA, SB = 80, 96
CI_OWN, CI_SH = 112, 128
Q_OWN = 144
O_OWN = 176
XT = 240
O_SH, Q_SH, KF, VF = 0, 64, 96, 128
sW, SQ, SK, SV, SO = 3, 8, 12, 16, 20
sW8192, sOff0, sOff1, sC, sMask = 24, 25, 26, 27, 28
sM0 = 44
sT = 29
SCALE_BITS = 0x3e0293ee
LDS_K, LDS_V, LDS_X = 0, 65536, 131072

def Sbuf(par): return SA if par == 0 else SB

UT = [0, 0, 1, 2, 3]

def mfma_at(step, slot):
    W, k = divmod(slot, 16)
    if k < 8:
        u = W + 1; st = step
        if u == 5: u = 0; st = step + 1
        S_ = Sbuf((st + u) % 2)
        sh = (u == 0)
        B = ('a', Q_SH + 4 * k) if sh else ('v', Q_OWN + 4 * k)
        C = ('v', CI_SH if sh else CI_OWN) if k == 0 else ('v', S_)
        return mfma(('v', S_), ('a', KF + 4 * k), B, C)
    else:
        idx = k - 8; ks, db = divmod(idx, 4)
        O = ('a', O_SH + 16 * db) if W == 0 else ('v', O_OWN + 16 * db)
        return mfma(O, ('a', VF + 4 * idx), ('v', P + 4 * ks), O)

def sm_ops(step, slot):
    ops = []
    for st, i in [(step, j) for j in range(5)] + [(step + 1, 0), (step - 1, 4)]:
        rel = slot + 80 * (step - st) - 16 * (i - 1) - cfg.E0
        S_ = Sbuf((st + i) % 2); Lr = L_SH if i == 0 else L_OWN
        e = []
        if 0 <= rel < 16: e.append((0, vexp(f"v{S_+rel}", f"v{S_+rel}")))
        if 0 <= rel - 1 < 16: e.append((1, vadd(f"v{Lr}", f"v{Lr}", f"v{S_+rel-1}")))
        if rel >= 2 and rel % 2 == 0 and rel <= 16:
            m = (rel - 2) // 2
            e.append((2, cvtpk(f"v{P+m}", f"v{S_+2*m}", f"v{S_+2*m+1}")))
        ops += e
    ops.sort(key=lambda x: x[0])
    return [o for _, o in ops]

def has_cvt(slot): return (slot - cfg.E0) % 2 == 0

B1, B2 = 47, 71

def build_mem_schedule():
    ops = []
    L = cfg.LEAD
    def add(d, e, l): ops.append([d, e, l])
    for j in range(8):
        add(('K', 0, j), 48 + j, 64 + j - L)
        add(('K', 1, j), 80 + j, 96 + j - L)
        add(('K', 2, j), 96 + j, 112 + j - L)
        add(('K', 3, j), 112 + j, min(128 + j - L, 80 + B1 - L))
    for idx in range(8):
        for hh in range(2):
            add(('V', 3, idx, hh), 56 + idx, min(72 + idx - L, B2 - L))
            add(('V', 0, idx, hh), 72 + idx, 88 + idx - L)
            add(('V', 1, idx, hh), 104 + idx, 120 + idx - L)
            add(('V', 2, idx, hh), 40 + idx + 80 if False else 120 + idx, 136 + idx - L)
    fixed = {}
    def fix(slot, d): fixed.setdefault(slot % 80, []).append(d)
    for n, sl in enumerate((49, 51, 53, 55, 57, 59, 61, 63)): fix(sl, ('DK', n))
    for n, sl in enumerate((73, 75, 77, 79, 81, 83, 85, 87)): fix(sl, ('DV', n))
    sched = {s: list(fixed.get(s, [])) for s in range(80)}
    def cap(s, hard):
        c = (1 if has_cvt(s) else 2) + (1 if hard else 0)
        if s in (B1, B2): c -= 1
        return c
    ops.sort(key=lambda o: (o[2], o[1]))
    placed = set()
    for o in ops:
        d, e, l = o
        best = None
        for hard in (False, True):
            for t in range(e, l + 1):
                if len(sched[t % 80]) < cap(t % 80, hard):
                    best = t; break
            if best is not None: break
        if best is None: raise Exception(f"cannot place {o}")
        sched[best % 80].append(d)
        o.append(best)
    for s in sched:
        sched[s].sort(key=lambda d: 1 if d[0] in ('DK', 'DV') else 0)
    return sched

MEM = None

def mem_ins(step, slot, d):
    if d[0] == 'K':
        _, tp, j = d
        cs = step + 1 if tp == 0 else step
        buf = cs % 2
        return dsr128(('a', KF + 4 * j), KADDR + 8 * tp + j, buf * 32768, reg=(('K', buf), cs, tp == 0))
    if d[0] == 'V':
        _, tp, idx, hh = d
        ks, db = divmod(idx, 4)
        cs = step + 1 if (tp == 0 and slot >= 64) else step
        buf = cs % 2
        return dstr(('a', VF + 4 * idx + 2 * hh), VADDR + 4 * tp + db, buf * 32768 + ks * 4096 + hh * 2048, reg=(('V', buf), cs, tp == 0))
    if d[0] == 'DK':
        n = d[1]; cs = step + 2; buf = cs % 2
        return dma(KDMA + n % 4, SK, f"s{sOff0 if n < 4 else sOff1}", 1024 * (n % 4), reg=(('K', buf), cs, True))
    if d[0] == 'DV':
        n = d[1]; cs = step + 2 if slot >= 64 else step + 1; buf = cs % 2
        return dma(VDMA, SV, f"s{sOff0 if n < 4 else sOff1}", 1024 * (n % 4), reg=(('V', buf), cs, True))

def m0_val_reg(kv, buf, grp): return sM0 + (0 if kv == 'K' else 4) + 2 * buf + grp

def scalar_ops(step, slot):
    o = []
    if slot == 48: o.append(S("s_mov_b32", "m0", f"s{m0_val_reg('K', step % 2, 0)}", w_scc=False))
    if slot == 56: o.append(S("s_mov_b32", "m0", f"s{m0_val_reg('K', step % 2, 1)}", w_scc=False))
    if slot == 72: o.append(S("s_mov_b32", "m0", f"s{m0_val_reg('V', step % 2, 0)}", w_scc=False))
    if slot == 0: o.append(S("s_mov_b32", "m0", f"s{m0_val_reg('V', (step + 1) % 2, 1)}", w_scc=False))
    if slot == 10: o.append(S("s_add_u32", f"s{sOff0}", f"s{sOff0}", "0x8000"))
    if slot == 12: o.append(S("s_add_u32", f"s{sOff1}", f"s{sOff1}", "0x8000"))
    return o

LGW = None

def compute_lgkm_waits():
    seq = []
    prod = {}
    covered = -1
    waits = {}
    allw = []
    for t in range(0, 240):
        st, sl = divmod(t, 80)
        nst, nsl = divmod(t + 1, 80)
        nm = mfma_at(nst, nsl)
        need = max([prod.get(r, -1) for r in nm.x['AB']] + [-1])
        if sl == B1: need = max([need] + [i for i, (tt, d) in enumerate(seq) if d[0] == 'K'])
        if sl == B2: need = max([need] + [i for i, (tt, d) in enumerate(seq) if d[0] == 'V'])
        if need > covered:
            tgt = need
            for i in range(len(seq) - 1, -1, -1):
                if seq[i][0] <= t - cfg.LAG: tgt = max(tgt, i); break
            n = len(seq) - 1 - tgt
            if n > 15: tgt = len(seq) - 1 - 15; n = 15
            age = t - seq[need][0]
            allw.append((t, n, age))
            covered = tgt
        else:
            allw.append((t, None, None))
        for d in MEM[sl]:
            if d[0] in ('K', 'V'):
                ins = mem_ins(st, sl, d)
                seq.append((t, d))
                for r in ins.w: prod[r] = len(seq) - 1
    p1 = {t - 80: (n, a) for t, n, a in allw if 80 <= t < 160}
    p2 = {t - 160: (n, a) for t, n, a in allw if 160 <= t < 240}
    assert {k: v[0] for k, v in p1.items()} == {k: v[0] for k, v in p2.items()}, (p1, p2)
    return p2

def gap(step, slot, part='all', drop=()):
    head, rest = [], []
    if 'mfma' not in drop: head.append(mfma_at(step, slot))
    n = LGW[slot][0]
    if slot == B1 or slot == B2:
        if 'bar' not in drop:
            head.append(wait(vm=8, lg=n if n is not None else None)); head.append(barrier())
        elif n is not None: head.append(wait(lg=n))
    elif n is not None: head.append(wait(lg=n))
    if 'scalar' not in drop: head += scalar_ops(step, slot)
    for d in MEM[slot]:
        if d[0] in drop or (d[0], d[1]) in drop: continue
        rest.append(mem_ins(step, slot, d))
    if 'sm' not in drop: rest += sm_ops(step, slot)
    return head if part == 'head' else rest if part == 'rest' else head + rest

ENTRY = 7
EXIT = 63

def body_iter(st0, last=False):
    o = []
    o += gap(st0, ENTRY, 'rest')
    for s in range(ENTRY + 1, 80): o += gap(st0, s)
    for s in range(0, EXIT):
        g = gap(st0 + 1, s)
        if s == EXIT - 3:
            h = gap(st0 + 1, s, 'head'); g = h + [scmp("s_cmp_eq_u32", f"s{sOff0}", hex(9 * 32768))] + gap(st0 + 1, s, 'rest')
        o += g
    o += gap(st0 + 1, EXIT, 'head') + [branch("s_cbranch_scc1", "L_exit", ['scc'])]
    if last: return o
    o += gap(st0 + 1, EXIT, 'rest')
    for s in range(EXIT + 1, 80): o += gap(st0 + 1, s)
    for s in range(0, ENTRY): o += gap(st0 + 2, s)
    o += gap(st0 + 2, ENTRY, 'head') + [branch("s_branch", "L_loop")]
    return o

def scale_regs(src, n, dst_fn, tmp):
    o = []
    for g in range(0, n, 4):
        t = [tmp + 2 * (i % 4) for i in range(4)]
        for i in range(4): o.append(V("v_lshlrev_b32", f"v{t[i]}", 16, f"v{src+g+i}"))
        for i in range(4): o.append(V("v_and_b32", f"v{t[i]+1}", f"s{sMask}", f"v{src+g+i}"))
        for i in range(4): o.append(vmul(f"v{t[i]}", f"s{sC}", f"v{t[i]}"))
        for i in range(4): o.append(vmul(f"v{t[i]+1}", f"s{sC}", f"v{t[i]+1}"))
        for i in range(4): o += dst_fn(g + i, t[i])
    return o

def rowmax(Sb, mreg, t0, t1):
    o = []
    o.append(V("v_max3_f32", f"v{t0}", f"v{Sb}", f"v{Sb+1}", f"v{Sb+2}"))
    o.append(V("v_max3_f32", f"v{t1}", f"v{Sb+3}", f"v{Sb+4}", f"v{Sb+5}"))
    o.append(V("v_max3_f32", f"v{t0}", f"v{t0}", f"v{Sb+6}", f"v{Sb+7}"))
    o.append(V("v_max3_f32", f"v{t1}", f"v{t1}", f"v{Sb+8}", f"v{Sb+9}"))
    o.append(V("v_max3_f32", f"v{t0}", f"v{t0}", f"v{Sb+10}", f"v{Sb+11}"))
    o.append(V("v_max3_f32", f"v{t1}", f"v{t1}", f"v{Sb+12}", f"v{Sb+13}"))
    o.append(V("v_max3_f32", f"v{t0}", f"v{t0}", f"v{Sb+14}", f"v{Sb+15}"))
    o.append(V("v_max_f32", f"v{t0}", f"v{t0}", f"v{t1}"))
    o.append(vmov(f"v{t1}", f"v{t0}"))
    o.append(nop(1))
    o.append(swap32(f"v{t0}", f"v{t1}"))
    o.append(V("v_max_f32", f"v{mreg}", f"v{t0}", f"v{t1}"))
    return o

def stamp(idx):
    if not cfg.stamps: return []
    return [raw(f"s_memtime s[{60+2*idx}:{61+2*idx}]", 'stampi')]

def prologue():
    o = []
    vmlist = []
    def a(x, tag=None):
        o.append(x)
        if x.k in ('vload', 'dma', 'vstore'): vmlist.append(tag)
    def wait_for(tag):
        last = max(i for i, t in enumerate(vmlist) if t == tag)
        return wait(vm=len(vmlist) - 1 - last)
    a(scmp("s_cmp_ge_u32", "s2", 256)); a(branch("s_cbranch_scc1", "L_end", ['scc']))
    a(raw("s_load_dwordx4 s[36:39], s[0:1], 0", 'smem', [], R('s', 36, 4)))
    a(raw("s_load_dwordx4 s[40:43], s[0:1], 16", 'smem', [], R('s', 40, 4)))
    if cfg.stamps:
        a(raw("s_load_dwordx2 s[58:59], s[0:1], 32", 'smem', [], R('s', 58, 2)))
        o += stamp(0)
    a(V("v_lshrrev_b32", "v1", 6, "v0"))
    a(V("v_and_b32", "v2", 63, "v0"))
    a(readfirst(f"s{sW}", "v1"))
    a(V("v_lshrrev_b32", "v3", 4, "v2"))
    a(V("v_and_b32", "v4", 15, "v2"))
    a(V("v_and_b32", "v5", 31, "v2"))
    a(V("v_lshrrev_b32", "v6", 5, "v2"))
    a(S("s_and_b32", f"s{sT}", "s2", 7))
    a(S("s_lshr_b32", f"s{sT+1}", "s2", 3))
    a(S("s_lshr_b32", f"s{sT+2}", "s2", 5))
    a(S("s_lshl_b32", f"s{sW8192}", f"s{sW}", 13))
    a(S("s_lshl_b32", f"s{sT+3}", f"s{sT}", 5)); a(S("s_add_u32", f"s{sT+3}", f"s{sT+3}", f"s{sT+1}"))
    a(S("s_mul_i32", f"s{sT+3}", f"s{sT+3}", 40960, w_scc=False))
    a(S("s_lshl_b32", f"s{sT+4}", f"s{sT}", 3)); a(S("s_add_u32", f"s{sT+4}", f"s{sT+4}", f"s{sT+2}"))
    a(S("s_lshl_b32", f"s{sT+4}", f"s{sT+4}", 18))
    a(V("v_lshlrev_b32", f"v{VQ}", 4, "v6")); a(V("v_lshl_add_u32", f"v{VQ}", "v5", 8, f"v{VQ}"))
    a(V("v_xor_b32", "v7", "v3", "v4"))
    a(V("v_lshlrev_b32", "v7", 4, "v7")); a(V("v_lshl_add_u32", "v7", "v3", 8, "v7"))
    a(V("v_add_u32", f"v{KDMA}", f"s{sW8192}", "v7"))
    for k in range(1, 4): a(V("v_xor_b32", f"v{KDMA+k}", 64 * k, f"v{KDMA}"))
    a(V("v_lshlrev_b32", "v7", 2, "v3")); a(V("v_xor_b32", "v7", "v7", "v4"))
    a(V("v_lshlrev_b32", "v7", 4, "v7")); a(V("v_lshl_add_u32", "v7", "v3", 8, "v7"))
    a(V("v_add_u32", f"v{VDMA}", f"s{sW8192}", "v7"))
    a(smov(f"s{sOff0}", 0)); a(smov(f"s{sOff1}", 4096)); a(smov(f"s{sT}", 32768))
    a(wait(lg=0))
    def srd(base, p, off, n):
        a(S("s_add_u32", f"s{base}", f"s{p}", f"s{off}")); a(S("s_addc_u32", f"s{base+1}", f"s{p+1}", 0, r_scc=True))
        a(S("s_and_b32", f"s{base+1}", f"s{base+1}", "0xffff"))
        a(smov(f"s{base+2}", n)); a(smov(f"s{base+3}", "0x20000"))
    srd(SQ, 36, sT + 3, 40960)
    for j in range(8): a(vload(('v', SA + 4 * j), 4, VQ, SQ, f"s{sT}", 32 * j), f"QS{j//4}")
    srd(SK, 38, sT + 4, 262144)
    a(S("s_mov_b32", "m0", f"s{sW8192}", w_scc=False))
    srd(SV, 40, sT + 4, 262144)
    for n in range(4): a(dma(KDMA + n, SK, f"s{sOff0}", 1024 * n, reg=(('K', 0), 0, True)), "K0")
    a(S("s_add_u32", "m0", f"s{sW8192}", 4096)); a(nop(0))
    for n in range(4): a(dma(KDMA + n, SK, f"s{sOff1}", 1024 * n, reg=(('K', 0), 0, True)), "K0")
    for j in range(8): a(vload(('v', Q_OWN + 4 * j), 4, VQ, SQ, f"s{sW8192}", 32 * j), f"QO{j//4}")
    a(S("s_add_u32", "m0", f"s{sW8192}", LDS_V)); a(nop(0))
    for n in range(4): a(dma(VDMA, SV, f"s{sOff0}", 1024 * n, reg=(('V', 0), 0, True)), "V0")
    a(S("s_add_u32", "m0", f"s{sW8192}", LDS_V + 4096)); a(nop(0))
    for n in range(4): a(dma(VDMA, SV, f"s{sOff1}", 1024 * n, reg=(('V', 0), 0, True)), "V0")
    o += stamp(1)
    srd(SO, 42, sT + 3, 40960)
    a(smov(f"s{sC}", hex(SCALE_BITS))); a(smov(f"s{sMask}", "0xffff0000"))
    for kv, base in (('K', LDS_K), ('V', LDS_V)):
        for buf in range(2):
            for grp in range(2):
                a(S("s_add_u32", f"s{m0_val_reg(kv, buf, grp)}", f"s{sW8192}", base + buf * 32768 + grp * 4096))
    a(V("v_and_b32", "v7", 15, "v5")); a(V("v_xor_b32", "v7", "v7", "v6"))
    a(V("v_lshlrev_b32", "v7", 4, "v7")); a(V("v_lshl_add_u32", "v7", "v5", 8, "v7"))
    a(V("v_add_u32", f"v{KADDR}", f"s{sW8192}", "v7"))
    for j in range(1, 8): a(V("v_xor_b32", f"v{KADDR+j}", 32 * j, f"v{KADDR}"))
    for i in range(1, 4):
        a(S("s_add_u32", f"s{sT+i}", f"s{sW}", i)); a(S("s_and_b32", f"s{sT+i}", f"s{sT+i}", 3))
        a(S("s_sub_u32", f"s{sT+i}", f"s{sT+i}", f"s{sW}")); a(S("s_lshl_b32", f"s{sT+i}", f"s{sT+i}", 13))
    for i in range(1, 4):
        for j in range(8): a(V("v_add_u32", f"v{KADDR+8*i+j}", f"s{sT+i}", f"v{KADDR+j}"))
    a(V("v_lshrrev_b32", "v1", 2, "v4"))
    a(V("v_lshl_add_u32", "v7", "v6", 2, "v1"))
    a(V("v_lshlrev_b32", "v7", 8, "v7"))
    a(V("v_lshl_add_u32", "v7", "v1", 6, "v7"))
    a(V("v_and_b32", "v1", 1, "v3")); a(V("v_lshl_add_u32", "v7", "v1", 5, "v7"))
    a(V("v_and_b32", "v1", 3, "v4")); a(V("v_lshl_add_u32", "v7", "v1", 3, "v7"))
    a(S("s_add_u32", f"s{sT+4}", f"s{sW8192}", LDS_V))
    a(V("v_add_u32", f"v{VADDR}", f"s{sT+4}", "v7"))
    for db in range(1, 4): a(V("v_xor_b32", f"v{VADDR+db}", 64 * db, f"v{VADDR}"))
    for i in range(1, 4):
        for db in range(4): a(V("v_add_u32", f"v{VADDR+4*i+db}", f"s{sT+i}", f"v{VADDR+db}"))
    a(V("v_lshlrev_b32", "v1", 4, "v2"))
    a(S("s_lshl_b32", f"s{sT+1}", f"s{sW}", 14))
    a(scmp("s_cmp_ge_u32", f"s{sW}", 2))
    a(S("s_cselect_b32", f"s{sT+2}", LDS_X - 32768, 0, w_scc=False, r_scc=True))
    a(S("s_add_u32", f"s{sT+1}", f"s{sT+1}", f"s{sT+2}"))
    a(V("v_add_u32", f"v{VMW}", f"s{sT+1}", "v1"))
    a(S("s_lshl_b32", f"s{sT+1}", f"s{sW}", 12))
    a(V("v_add_u32", f"v{VMR0}", f"s{sT+1}", "v1"))
    a(V("v_add_u32", f"v{VMR1}", LDS_X, f"v{VMR0}"))
    a(V("v_lshlrev_b32", "v1", 3, "v2")); a(V("v_add_u32", f"v{VML}", LDS_V, "v1"))
    a(vmov(f"v{VHALF}", "-0.5")); a(vmov(f"v{L_OWN}", 0)); a(vmov(f"v{L_SH}", 0))
    for i in range(4): a(vmov(f"v{P+i}", 0))
    a(nop(1))
    for db in range(4): a(mfma(('v', O_OWN + 16 * db), ('v', P), ('v', P), 0))
    for db in range(4): a(mfma(('a', O_SH + 16 * db), ('v', P), ('v', P), 0))
    o += stamp(2)
    def fin_sh(i, t): return [cvtpk(f"v{t}", f"v{t}", f"v{t+1}"), ]
    a(wait_for("QS0"))
    for half in range(2):
        if half == 1: a(wait_for("QS1"))
        for g in range(4):
            base = half * 16 + g * 4
            blk = scale_regs(SA + base, 4, fin_sh, XT)
            o += blk
            for i in range(4): a(accw(f"a{Q_SH+base+i}", f"v{XT+2*i}"))
    o += stamp(3)
    a(smov(f"s{sOff0}", 32768)); a(smov(f"s{sOff1}", 32768 + 4096))
    for grp in range(2):
        a(S("s_mov_b32", "m0", f"s{m0_val_reg('K', 1, grp)}", w_scc=False)); a(nop(0))
        for n in range(4): a(dma(KDMA + n, SK, f"s{sOff0 if grp == 0 else sOff1}", 1024 * n, reg=(('K', 1), 1, True)), "K1")
    for grp in range(2):
        a(S("s_mov_b32", "m0", f"s{m0_val_reg('V', 1, grp)}", w_scc=False)); a(nop(0))
        for n in range(4):
            gp = [sl for sl in range(80) if ('DV', 4 * grp + n) in MEM[sl]][0]
            if gp >= 64 or gp < ENTRY: a(dma(VDMA, SV, f"s{sOff0 if grp == 0 else sOff1}", 1024 * n, reg=(('V', 1), 1, True)), "V1")
    a(wait_for("K0"))
    for j in range(8): a(dsr128(('a', KF + 4 * j), KADDR + j, 0, reg=(('K', 0), 0, True)))
    for j in range(8):
        a(wait(lg=7 - j))
        a(mfma(('v', SA), ('a', KF + 4 * j), ('a', Q_SH + 4 * j), 0 if j == 0 else ('v', SA)))
    o += stamp(4)
    def fin_own(base):
        return lambda i, t: [cvtpk(f"v{base+i}", f"v{t}", f"v{t+1}")]
    a(wait_for("QO0"))
    o += scale_regs(Q_OWN, 16, fin_own(Q_OWN), XT)
    o += rowmax(SA, M_SH, 1, 2)
    a(nop(1))
    a(mfma_f32(('v', SA), VHALF, M_SH, ('v', SA)))
    a(mfma_f32(('v', CI_SH), VHALF, M_SH, 0))
    a(wait_for("QO1"))
    o += scale_regs(Q_OWN + 16, 16, fin_own(Q_OWN + 16), XT)
    o += stamp(5)
    a(nop(1))
    for j in range(8): a(mfma(('v', SB), ('a', KF + 4 * j), ('v', Q_OWN + 4 * j), 0 if j == 0 else ('v', SB)))
    for s in range(-6, ENTRY):
        st, sl = (0, s) if s >= 0 else (-1, s + 80)
        ops = [x for x in sm_ops(st, sl) if not any(r in x.w + x.r for r in R('v', Sbuf((st + 4) % 2), 16)) or st == 0]
        o += ops
    o += rowmax(SB, M_OWN, 1, 2)
    a(nop(1))
    a(mfma_f32(('v', SB), VHALF, M_OWN, ('v', SB)))
    a(mfma_f32(('v', CI_OWN), VHALF, M_OWN, 0))
    o += stamp(6)
    a(wait_for("V0")); a(barrier())
    for st, rng in ((-1, range(72, 80)), (0, range(0, ENTRY))):
        for sl in rng:
            for d in MEM[sl]:
                if d[0] == 'V' and d[1] == 0: a(mem_ins(st, sl, d))
                elif d[0] == 'K' and st == 0: a(mem_ins(st, sl, d))
    a(wait(lg=0))
    a(S("s_mov_b32", "m0", f"s{m0_val_reg('V', 1, 1)}", w_scc=False))
    a(nop(7))
    o += stamp(7)
    return o

def store_tile(Oreg, db_list, rinv, soff, dboff_imm=True, tmp=XT):
    o = []
    for n, db in enumerate(db_list):
        b = Oreg + 16 * n
        for i in range(16): o.append(vmul(f"v{b+i}", f"v{rinv}", f"v{b+i}"))
        for m in range(8): o.append(cvtpk(f"v{b+m}", f"v{b+2*m}", f"v{b+2*m+1}"))
        for pr in range(2):
            r0 = b + 4 * pr
            if pr == 0 or True:
                pass
            o.append(swap32(f"v{r0}", f"v{r0+2}")); o.append(swap32(f"v{r0+1}", f"v{r0+3}"))
        for pr in range(2):
            r0 = b + 4 * pr
            o.append(vstore(('v', r0), 4, VQ, SO, soff, (db * 64 if dboff_imm else 0) + pr * 32))
    return o

def epilogue():
    o = []; a = o.append
    st = 7
    drop = {'mfma', 'bar', 'scalar', 'DK', 'DV', ('K', 0), ('V', 0)}
    valu = []; mem = []
    for s in range(EXIT, 80):
        for d in MEM[s]:
            if d[0] == 'V' and d[1] == 3: mem.append(mem_ins(st, s, d))
        valu.append([x for x in sm_ops(st, s) if not (set(x.w) | set(x.r)) & set(R('v', Sbuf((st + 1) % 2), 16) + [f"v{L_SH}"])])
    o += mem
    wr = [dsw128(VMW, ('a', O_SH + 4 * q), 1024 * q, reg=(('MG', 0), 'o', False)) for q in range(16)]
    a(vmov("v1", f"v{L_SH}"))
    flat = []
    for s, ops in zip(range(EXIT, 80), valu): flat.append((s, ops))
    a(nop(1))
    a(swap32(f"v{L_SH}", "v1")); a(vadd(f"v{L_SH+0}", f"v{L_SH}", "v1"))
    a(vmov("v2", f"v{M_SH}")); a(vmov("v3", f"v{L_SH}"))
    a(wait(vm=0))
    a(V("v_add_u32", "v4", f"s{sW8192}", f"v{VML}"))
    a(nop(0))
    a(dsw64(4, ('v', 2), 0, reg=(('ML', 0), 'ml', False)))
    pv = [mfma_at(st, 72 + i) for i in range(8)]
    wi = 0
    for s, ops in flat:
        if wi < 16: a(wr[wi]); wi += 1
        if wi < 16: a(wr[wi]); wi += 1
        o += ops
        if s == 68:
            a(wait(lg=4))
        if 68 <= s < 72: a(pv[s - 68])
    assert wi == 16
    a(wait(lg=0)); a(nop(0))
    for i in range(4, 8): a(pv[i])
    a(vmov("v1", f"v{L_OWN}")); a(nop(1)); a(swap32(f"v{L_OWN}", "v1")); a(vadd(f"v{L_OWN}", f"v{L_OWN}", "v1"))
    a(barrier())
    for x in range(4): a(dsr64(('v', XT + 2 * x), VML, 8192 * x, reg=(('ML', 0), 'ml', False)))
    for x in range(4):
        for g in range(4):
            a(dsr128(('v', SA + 16 * x + 4 * g), VMR0 if x < 2 else VMR1, 16384 * (x % 2) + 1024 * g, reg=(('MG', 0), 'o', False)))
    a(smov(f"s{sT}", hex(cfg.thresh)))
    a(vcmp("v_cmp_nle_f32", "s[52:53]", f"v{L_OWN}", f"s{sT}"))
    a(vrcp("v5", f"v{L_OWN}"))
    a(nop(0))
    if cfg.force_slow: a(raw("s_mov_b64 s[52:53], -1", 'salu', [], ['s52', 's53']))
    a(scmp("s_cmp_lg_u64", "s[52:53]", 0))
    a(branch("s_cbranch_scc1", "L_skip_own", ['scc']))
    own = store_tile(O_OWN, [0, 1, 2, 3], 5, f"s{sW8192}")
    o += own
    a(label("L_skip_own"))
    a(wait(lg=0))
    m = [XT + 2 * x for x in range(4)]; l = [XT + 2 * x + 1 for x in range(4)]
    a(V("v_max3_f32", "v1", f"v{m[0]}", f"v{m[1]}", f"v{m[2]}")); a(V("v_max_f32", "v1", "v1", f"v{m[3]}"))
    a(V("v_max3_f32", "v2", f"v{l[0]}", f"v{l[1]}", f"v{l[2]}")); a(V("v_max_f32", "v2", "v2", f"v{l[3]}"))
    a(vcmp("v_cmp_nle_f32", "s[54:55]", f"v{l[0]}", f"s{sT}"))
    for x in range(1, 4):
        a(vcmp("v_cmp_nle_f32", "vcc", f"s{sT}", f"s{sT}") if False else vcmp("v_cmp_nle_f32", "s[56:57]", f"v{l[x]}", f"s{sT}"))
        a(nop(0))
        a(raw("s_or_b64 s[54:55], s[54:55], s[56:57]", 'salu', ['s54', 's55', 's56', 's57'], ['s54', 's55', 'scc']))
    for x in range(4): a(V("v_sub_f32", f"v{m[x]}", f"v{m[x]}", "v1"))
    for x in range(4): a(vexp(f"v{m[x]}", f"v{m[x]}"))
    a(nop(0))
    a(vmul("v3", f"v{m[0]}", f"v{l[0]}"))
    for x in range(1, 4): a(V("v_fmac_f32", "v3", f"v{m[x]}", f"v{l[x]}", rmw=True))
    a(vrcp("v3", "v3")); a(nop(0))
    for x in range(4): a(vmul(f"v{m[x]}", f"v{m[x]}", "v3"))
    if cfg.force_slow: a(raw("s_mov_b64 s[54:55], -1", 'salu', [], ['s54', 's55']))
    a(scmp("s_cmp_lg_u64", "s[54:55]", 0))
    a(branch("s_cbranch_scc1", "L_skip_sh", ['scc']))
    for i in range(16): a(vmul(f"v{SA+i}", f"v{m[0]}", f"v{SA+i}"))
    for x in range(1, 4):
        for i in range(16): a(V("v_fmac_f32", f"v{SA+i}", f"v{m[x]}", f"v{SA+16*x+i}", rmw=True))
    for mm in range(8): a(cvtpk(f"v{SA+mm}", f"v{SA+2*mm}", f"v{SA+2*mm+1}"))
    a(nop(0))
    for pr in range(2):
        r0 = SA + 4 * pr
        a(swap32(f"v{r0}", f"v{r0+2}")); a(swap32(f"v{r0+1}", f"v{r0+3}"))
    a(S("s_lshl_b32", f"s{sT+1}", f"s{sW}", 6)); a(S("s_add_u32", f"s{sT+1}", f"s{sT+1}", 32768))
    for pr in range(2): a(vstore(('v', SA + 4 * pr), 4, VQ, SO, f"s{sT+1}", pr * 32))
    a(label("L_skip_sh"))
    o += stamp(9)
    a(raw("s_or_b64 s[56:57], s[52:53], s[54:55]", 'salu', ['s52', 's53', 's54', 's55'], ['s56', 's57', 'scc']))
    a(branch("s_cbranch_scc1", "L_slow", ['scc']))
    return o

def slow_path():
    o = []; a = o.append
    Kr, Sr, Vr, Or = 80, 112, 128, O_OWN
    mreg, lreg = M_OWN, L_OWN
    a(label("L_slow"))
    a(wait(vm=0, lg=0))
    a(scmp("s_cmp_lg_u64", "s[52:53]", 0)); a(branch("s_cbranch_scc0", "L_slow_sh", ['scc']))
    a(smov("s33", f"s{sW8192}"))
    a(raw("s_mov_b64 s[52:53], 0", 'salu', [], ['s52', 's53']))
    a(branch("s_branch", "L_slow_tile"))
    a(label("L_slow_sh"))
    a(scmp("s_cmp_lg_u64", "s[54:55]", 0)); a(branch("s_cbranch_scc0", "L_end", ['scc']))
    a(scmp("s_cmp_lg_u32", f"s{sW}", 0)); a(branch("s_cbranch_scc1", "L_end", ['scc']))
    a(smov("s33", 32768))
    a(raw("s_mov_b64 s[54:55], 0", 'salu', [], ['s54', 's55']))
    a(label("L_slow_tile"))
    for j in range(8): a(vload(('v', Q_OWN + 4 * j), 4, VQ, SQ, "s33", 32 * j))
    a(wait(vm=0))
    o += scale_regs(Q_OWN, 32, lambda i, t: [cvtpk(f"v{Q_OWN+i}", f"v{t}", f"v{t+1}")], XT)
    a(vmov(f"v{mreg}", "0xff800000"))
    def qk():
        for j in range(8): a(vload(('v', Kr + 4 * j), 4, VQ, SK, "s34", 32 * j))
        a(wait(vm=0))
        for j in range(8): a(mfma(('v', Sr), ('v', Kr + 4 * j), ('v', Q_OWN + 4 * j), 0 if j == 0 else ('v', Sr)))
        a(nop(15))
    a(smov("s34", 0))
    a(label("L_slow_p1"))
    qk()
    for i in range(16): a(V("v_max_f32", f"v{mreg}", f"v{mreg}", f"v{Sr+i}"))
    a(S("s_add_u32", "s34", "s34", 8192)); a(scmp("s_cmp_lt_u32", "s34", 262144)); a(branch("s_cbranch_scc1", "L_slow_p1", ['scc']))
    a(vmov("v1", f"v{mreg}")); a(nop(1)); a(swap32(f"v{mreg}", "v1")); a(V("v_max_f32", f"v{mreg}", f"v{mreg}", "v1"))
    a(vmov(f"v{lreg}", 0))
    for i in range(64): a(vmov(f"v{Or+i}", 0))
    a(V("v_lshrrev_b32", "v2", 8, f"v{VQ}"))
    a(V("v_bfe_u32", "v3", f"v{VQ}", 4, 1))
    a(V("v_lshlrev_b32", "v2", 1, "v2")); a(V("v_lshl_add_u32", "v2", "v3", 10, "v2"))
    a(smov("s34", 0))
    a(label("L_slow_p2"))
    qk()
    for i in range(16): a(V("v_sub_f32", f"v{Sr+i}", f"v{Sr+i}", f"v{mreg}"))
    for i in range(16): a(vexp(f"v{Sr+i}", f"v{Sr+i}"))
    a(nop(0))
    for i in range(16): a(vadd(f"v{lreg}", f"v{lreg}", f"v{Sr+i}"))
    for m in range(8): a(cvtpk(f"v{P+m}", f"v{Sr+2*m}", f"v{Sr+2*m+1}"))
    for ks in range(2):
        a(S("s_add_u32", "s35", "s34", ks * 4096))
        for db in range(4):
            for r in range(4):
                for e in range(2):
                    j = 2 * r + e
                    off = (8 * (j // 4) + j % 4) * 256 + db * 64
                    a(vload(('v', Vr + 4 * db + r), 1, 2, SV, "s35", off, op="buffer_load_short_d16" + ("_hi" if e else "")))
        a(wait(vm=0))
        for db in range(4): a(mfma(('v', Or + 16 * db), ('v', Vr + 4 * db), ('v', P + 4 * ks), ('v', Or + 16 * db)))
        a(nop(7))
    a(S("s_add_u32", "s34", "s34", 8192)); a(scmp("s_cmp_lt_u32", "s34", 262144)); a(branch("s_cbranch_scc1", "L_slow_p2", ['scc']))
    a(nop(15))
    a(vmov("v1", f"v{lreg}")); a(nop(1)); a(swap32(f"v{lreg}", "v1")); a(vadd(f"v{lreg}", f"v{lreg}", "v1"))
    a(vrcp("v5", f"v{lreg}")); a(nop(0))
    o += store_tile(Or, [0, 1, 2, 3], 5, "s33")
    a(wait(vm=0))
    a(branch("s_branch", "L_slow_sh"))
    return o

def stamp_out():
    o = []
    if not cfg.stamps: return o
    a = o.append
    a(raw("s_waitcnt vmcnt(0)", 'wait', vm=0)); o += [raw("s_memtime s[80:81]", 'stampi')]
    a(raw("s_waitcnt lgkmcnt(0)", 'wait', lg=0))
    a(scmp("s_cmp_lg_u32", "s2", cfg.stamp_wg)); a(branch("s_cbranch_scc1", "L_end", ['scc']))
    a(scmp("s_cmp_lg_u32", f"s{sW}", 0)); a(branch("s_cbranch_scc1", "L_end", ['scc']))
    a(vmov("v1", 0))
    for i in range(11):
        a(S("s_sub_u32", "s33", f"s{60+2*i}", "s60")); a(vmov("v2", "s33"))
        a(raw(f"global_store_dword v1, v2, s[58:59] offset:{4*i}", 'vstore', ['v1', 'v2', 's58', 's59'], [], data=['v2']))
        a(nop(1))
    return o

def build():
    global MEM, LGW
    MEM = build_mem_schedule()
    LGW = compute_lgkm_waits()
    pro = prologue()
    body = body_iter(0)
    epi = epilogue()
    slow = slow_path()
    static = pro + [raw(".p2align 6", 'label'), label("L_loop")] + body + [label("L_exit")] + stamp(8) + epi + stamp_out() + \
             [label("L_end"), raw("s_endpgm", 'branch')] + slow
    trace = list(pro)
    for it in range(4):
        b = body_iter(2 * it, last=(it == 3))
        ref = body[:len(b)]
        assert [x.t for x in b] == [x.t for x in ref], "loop body is not periodic"
        trace += b
    trace += epi
    errs = verify(trace, "main")
    errs += verify(slow, "slow", check_lds=False)
    return static, errs

HEADER = """; Kernarg layout for this problem (48 bytes, ptrs only, base s[0:1]):
; One workgroup per (batch, q-head): 4 waves, wave w owns q rows 32w..32w+31 against all keys and
; @launch grid=(256,1,1) block=(256,1,1) lds=163840
.amdgcn_target "amdgcn-amd-amdhsa--gfx950"
.text
.globl {n}_kernel
.p2align 8
.type {n}_kernel,@function
{n}_kernel:
"""
FOOTER = """
.section .rodata,"a"
.p2align 6
.amdhsa_kernel {n}_kernel
  .amdhsa_next_free_vgpr 512
  .amdhsa_next_free_sgpr 96
  .amdhsa_accum_offset 256
  .amdhsa_group_segment_fixed_size 0
  .amdhsa_kernarg_size 48
  .amdhsa_user_sgpr_count 2
  .amdhsa_user_sgpr_kernarg_segment_ptr 1
  .amdhsa_system_sgpr_workgroup_id_x 1
.end_amdhsa_kernel
"""

if __name__ == "__main__":
    ap = argparse.ArgumentParser()
    ap.add_argument("-o", default="cdna_kernels/%s.s" % NAME)
    ap.add_argument("--stamps", action="store_true")
    ap.add_argument("--stamp-wg", type=int, default=0)
    ap.add_argument("--force-slow", action="store_true")
    ap.add_argument("--thresh", default=None)
    ap.add_argument("--show", action="store_true")
    args = ap.parse_args()
    cfg.stamps = args.stamps; cfg.stamp_wg = args.stamp_wg; cfg.force_slow = args.force_slow
    if args.thresh: cfg.thresh = int(args.thresh, 0)
    static, errs = build()
    if args.show:
        for s in range(80):
            print(s, "cvt" if has_cvt(s) else "   ", LGW[s], MEM[s])
    for e in errs[:40]: print("ERR", e)
    print("errors:", len(errs), " instructions:", sum(1 for x in static if x.k != 'label'))
    open(args.o, "w").write(HEADER.format(n=NAME) + text_of(static) + FOOTER.format(n=NAME))
```

```python
import sys, argparse
from asmlib import *

NAME = "standalone__gqa_softmax__near_ridge"

class Cfg:
    E0 = 10
    LEAD = 4
    LAG = 3
    thresh = 0x4b800000
    stamps = False
    force_slow = False
    store_flags = ""
    inloop_merge = False
    fine = False
    ld = "nt"
    qld = "nt"
    pfld = "nt"
    pf = True
    pf_slot = 65
cfg = Cfg()

L_OWN, L_SH, M_OWN, M_SH = 8, 9, 10, 11
KDMA = 12
VDMA = 16
VHALF = 17
VQ = 18
VLIN = 19
VPF, VPFD = 20, 21
KADDR = 24
VADDR = 56
P = 72
SA, SB = 80, 96
CI_OWN, CI_SH = 112, 128
Q_OWN = 144
O_OWN = 176
XT = 240
VMW, VMWB = 244, 248
VMLW, VMLWB = 252, 253
O_SH, Q_SH, KF, VF = 0, 64, 96, 128
sW, SQ, SK, SV, SO = 3, 8, 12, 16, 20
sW8192, sOff0, sOff1, sC, sMask = 24, 25, 26, 27, 28
sT = 29
sKill, sDelta = 34, 35
SP = 4
sM0 = 44
SCALE_BITS = 0x3e0293ee
LDS_K1, LDS_K0, LDS_X, LDS_V0, LDS_V1 = 0, 32768, 65536, 98304, 131072
LDS_MG = LDS_K0
LDS_ML = LDS_V0
LDS_QS = LDS_V1
LDS_MX = LDS_V1 + 8192
DROP = 0x30000
def koff(buf): return LDS_K0 if buf == 0 else LDS_K1
def Sbuf(par): return SA if par == 0 else SB

def mfma_at(step, slot):
    W, k = divmod(slot, 16)
    if k < 8:
        u = W + 1; st = step
        if u == 5: u = 0; st = step + 1
        S_ = Sbuf((st + u) % 2)
        sh = (u == 0)
        B = ('a', Q_SH + 4 * k) if sh else ('v', Q_OWN + 4 * k)
        C = ('v', CI_SH if sh else CI_OWN) if k == 0 else ('v', S_)
        return mfma(('v', S_), ('a', KF + 4 * k), B, C)
    else:
        idx = k - 8; ks, db = divmod(idx, 4)
        O = ('a', O_SH + 16 * db) if W == 0 else ('v', O_OWN + 16 * db)
        return mfma(O, ('a', VF + 4 * idx), ('v', P + 4 * ks), O)

def sm_ops(step, slot):
    ops = []
    for st, i in [(step, j) for j in range(5)] + [(step + 1, 0), (step - 1, 4)]:
        rel = slot + 80 * (step - st) - 16 * (i - 1) - cfg.E0
        S_ = Sbuf((st + i) % 2); Lr = L_SH if i == 0 else L_OWN
        if 0 <= rel < 16: ops.append((0, vexp(f"v{S_+rel}", f"v{S_+rel}")))
        if 0 <= rel - 1 < 16: ops.append((1, vadd(f"v{Lr}", f"v{Lr}", f"v{S_+rel-1}")))
        if rel >= 2 and rel % 2 == 0 and rel <= 16:
            m = (rel - 2) // 2
            ops.append((2, cvtpk(f"v{P+m}", f"v{S_+2*m}", f"v{S_+2*m+1}")))
    ops.sort(key=lambda x: x[0])
    return [o for _, o in ops]

def has_cvt(slot): return (slot - cfg.E0) % 2 == 0
B1, B2 = 47, 71

def build_mem_schedule():
    ops = []
    L = cfg.LEAD
    def add(d, e, l): ops.append([d, e, l])
    for j in range(8):
        add(('K', 0, j), 48 + j, 64 + j - L)
        add(('K', 1, j), 80 + j, 96 + j - L)
        add(('K', 2, j), 96 + j, 112 + j - L)
        add(('K', 3, j), 112 + j, min(128 + j - L, 80 + B1 - L))
    for idx in range(8):
        for hh in range(2):
            add(('V', 3, idx, hh), 56 + idx, min(72 + idx - L, B2 - L))
            add(('V', 0, idx, hh), 72 + idx, 88 + idx - L)
            add(('V', 1, idx, hh), 104 + idx, 120 + idx - L)
            add(('V', 2, idx, hh), 120 + idx, 136 + idx - L)
    sched = {s: [] for s in range(80)}
    for n, sl in enumerate(cfg.dk_slots): sched[sl % 80].append(('DK', n))
    for n, sl in enumerate(cfg.dv_slots): sched[sl % 80].append(('DV', n))
    def cap(s, hard):
        c = (1 if has_cvt(s) else 2) + (1 if hard else 0)
        if s in (B1, B2): c -= 1
        return c
    ops.sort(key=lambda o: (o[2] - o[1], o[2]))
    ops.sort(key=lambda o: (o[2], o[1]))
    for o in ops:
        d, e, l = o
        best = None
        for hard in (False, True):
            for t in range(e, l + 1):
                if len(sched[t % 80]) < cap(t % 80, hard): best = t; break
            if best is not None: break
        if best is None: raise Exception(f"cannot place {o}")
        sched[best % 80].append(d)
    if cfg.pf: sched[cfg.pf_slot].append(('PF',))
    for s in sched: sched[s].sort(key=lambda d: 1 if d[0] in ('DK', 'DV', 'PF') else 0)
    mg = {}
    if cfg.inloop_merge:
        todo = [16] + list(range(16))
        for hard in (False, True):
            for t in range(21, B1 - L):
                if todo and cap(t, hard) - len(sched[t]) - len(mg.get(t, [])) > 0: mg.setdefault(t, []).append(todo.pop(0))
        assert not todo, "no room for merge writes"
    return sched, mg
cfg.dk_slots = (49, 51, 53, 55, 57, 59, 61, 63)
cfg.dv_slots = (73, 75, 77, 79, 81, 83, 85, 87)

MEM = MGW = LGW = None

def mem_ins(step, slot, d):
    if d[0] == 'K':
        _, tp, j = d
        cs = step + 1 if tp == 0 else step
        buf = cs % 2
        return dsr128(('a', KF + 4 * j), KADDR + 8 * tp + j, koff(buf), reg=(('K', buf), cs, tp == 0) if cs < 8 else None)
    if d[0] == 'V':
        _, tp, idx, hh = d
        ks, db = divmod(idx, 4)
        cs = step + 1 if (tp == 0 and slot >= 64) else step
        buf = cs % 2
        return dstr(('a', VF + 4 * idx + 2 * hh), VADDR + 4 * tp + db, buf * 32768 + ks * 4096 + hh * 2048, reg=(('V', buf), cs, tp == 0))
    if d[0] == 'PF': return pf_ins(f"s{sOff0}")
    if d[0] == 'DK':
        n = d[1]; cs = step + 2; buf = cs % 2
        return dma(KDMA + n % 4, SK, f"s{sOff0 if n < 4 else sOff1}", 1024 * (n % 4), reg=(('K', buf), cs, True) if cs < 8 else None, flags=cfg.ld)
    if d[0] == 'DV':
        n = d[1]; cs = step + 2 if slot >= 64 else step + 1; buf = cs % 2
        return dma(VDMA, SV, f"s{sOff0 if n < 4 else sOff1}", 1024 * (n % 4), reg=(('V', buf), cs, True) if cs < 8 else None, flags=cfg.ld)

def pf_ins(soff): return vload(('v', VPFD), 1, VPF, SP, soff, 0, flags=cfg.pfld)

def merge_mem(step, slot):
    if step % 2 == 0 or slot not in MGW: return []
    o = []
    rg = (('MG', 0), 'mg', False) if step == 7 else None
    for q in MGW[slot]:
        if q == 16: o.append(I(f"ds_write_b32 v{VMLW}, v{L_SH}", 'dsw', [f"v{VMLW}", f"v{L_SH}"], [], reg=rg, mg=True))
        else:
            db, g = divmod(q, 4)
            x = dsw128(VMW + g, ('a', O_SH + 16 * db + 4 * g), 128 * db, reg=rg); x.x['mg'] = True
            o.append(x)
    return o

def merge_valu(step, slot):
    if step % 2 == 0 or not cfg.inloop_merge: return []
    if 16 <= slot <= 19: return [V("v_add_u32", f"v{VMW+slot-16}", f"s{sDelta}", f"v{VMWB+slot-16}")]
    if slot == 20: return [V("v_add_u32", f"v{VMLW}", f"s{sDelta}", f"v{VMLWB}")]
    return []

def m0_val_reg(kv, buf, grp): return sM0 + (0 if kv == 'K' else 4) + 2 * buf + grp

def scalar_ops(step, slot):
    o = []
    def m0(kv, buf, grp): return S("s_max_u32", "m0", f"s{m0_val_reg(kv, buf, grp)}", f"s{sKill}")
    dk, dv = [x % 80 for x in cfg.dk_slots], [x % 80 for x in cfg.dv_slots]
    if slot == dk[0] - 1: o.append(m0('K', step % 2, 0))
    if slot == dk[4] - 1: o.append(m0('K', step % 2, 1))
    if slot == dv[0] - 1: o.append(m0('V', (step if slot >= 64 else step + 1) % 2, 0))
    if slot == dv[4] - 1: o.append(m0('V', (step if slot >= 64 else step + 1) % 2, 1))
    if slot == 9: o.append(S("s_add_u32", f"s{sOff0}", f"s{sOff0}", "0x8000"))
    if slot == 10: o.append(S("s_add_u32", f"s{sOff1}", f"s{sOff1}", "0x8000"))
    if slot == 11: o.append(scmp("s_cmp_ge_u32", f"s{sOff0}", "0x40000"))
    if slot == 12: o.append(S("s_cselect_b32", f"s{sKill}", hex(DROP), 0, w_scc=False, r_scc=True))
    if step % 2 == 1 and cfg.inloop_merge:
        if slot == 14: o.append(scmp("s_cmp_eq_u32", f"s{sOff0}", hex(9 * 32768)))
        if slot == 15: o.append(S("s_cselect_b32", f"s{sDelta}", 0, hex(DROP), w_scc=False, r_scc=True))
    return o

def gap_mem(step, slot):
    return [mem_ins(step, slot, d) for d in MEM[slot]] + merge_mem(step, slot)

def compute_lgkm_waits():
    seq = []; prod = {}; covered = -1; res = {}
    for t in range(0, 480):
        st, sl = divmod(t, 80)
        nst, nsl = divmod(t + 1, 80)
        nm = mfma_at(nst, nsl)
        need = max([prod.get(r, -1) for r in nm.x['AB']] + [-1])
        if sl == B1: need = max([need] + [i for i, (tt, d) in enumerate(seq) if d in ('K', 'MG')])
        if sl == B2: need = max([need] + [i for i, (tt, d) in enumerate(seq) if d == 'V'])
        n = None
        if need > covered:
            tgt = need
            for i in range(len(seq) - 1, -1, -1):
                if seq[i][0] <= t - cfg.LAG: tgt = max(tgt, i); break
            n = len(seq) - 1 - tgt
            if n > 15: tgt = len(seq) - 1 - 15; n = 15
            covered = tgt
        res[(st, sl)] = n
        for ins in gap_mem(st % 2 + 2 * (st // 2 % 2), sl):
            if ins.k in ('dsr', 'dsw'):
                kind = 'MG' if ins.x.get('mg') else ('K' if 'b128' in ins.t else 'V')
                seq.append((t, kind))
                for r in ins.w: prod[r] = len(seq) - 1
    out = {}
    for par in range(2):
        for sl in range(80):
            assert res[(2 + par, sl)] == res[(4 + par, sl)]
            out[(par, sl)] = res[(4 + par, sl)]
    return out

def gap(step, slot, part='all'):
    head, rest = [], []
    head.append(mfma_at(step, slot))
    n = LGW[(step % 2, slot)]
    if slot == B1 or slot == B2:
        head.append(wait(vm=9 if cfg.pf else 8, lg=n)); head.append(barrier())
    elif n is not None: head.append(wait(lg=n))
    head += scalar_ops(step, slot)
    rest += gap_mem(step, slot)
    rest += sm_ops(step, slot) + merge_valu(step, slot)
    return head if part == 'head' else rest if part == 'rest' else head + rest

ENTRY = 7
EXIT = 63

def body_iter(st0, last=False):
    o = []
    o += gap(st0, ENTRY, 'rest')
    for s in range(ENTRY + 1, 80): o += gap(st0, s)
    for s in range(0, EXIT):
        g = gap(st0 + 1, s)
        if s == EXIT - 3:
            g = gap(st0 + 1, s, 'head') + [scmp("s_cmp_eq_u32", f"s{sOff0}", hex(9 * 32768))] + gap(st0 + 1, s, 'rest')
        o += g
    o += gap(st0 + 1, EXIT, 'head') + [branch("s_cbranch_scc1", "L_exit", ['scc'])]
    if last: return o
    o += gap(st0 + 1, EXIT, 'rest')
    for s in range(EXIT + 1, 80): o += gap(st0 + 1, s)
    for s in range(0, ENTRY): o += gap(st0 + 2, s)
    o += gap(st0 + 2, ENTRY, 'head') + [branch("s_branch", "L_loop")]
    return o

def scale4(src, tmp, pk=False):
    o = []
    for i in range(4): o.append(V("v_lshlrev_b32", f"v{tmp+2*i}", 16, f"v{src+i}"))
    for i in range(4): o.append(V("v_and_b32", f"v{tmp+2*i+1}", f"s{sMask}", f"v{src+i}"))
    if pk:
        for i in range(4): o.append(V("v_pk_mul_f32", f"v[{tmp+2*i}:{tmp+2*i+1}]", f"v[{tmp+2*i}:{tmp+2*i+1}]", f"s[{sC2}:{sC2+1}]"))
    else:
        for i in range(4): o.append(vmul(f"v{tmp+2*i}", f"s{sC}", f"v{tmp+2*i}"))
        for i in range(4): o.append(vmul(f"v{tmp+2*i+1}", f"s{sC}", f"v{tmp+2*i+1}"))
    for i in range(4): o.append(cvtpk(f"v{src+i}", f"v{tmp+2*i}", f"v{tmp+2*i+1}"))
    return o
sC2 = 52

def rowmax(Sb, mreg, t0, t1):
    o = []
    o.append(V("v_max3_f32", f"v{t0}", f"v{Sb}", f"v{Sb+1}", f"v{Sb+2}"))
    o.append(V("v_max3_f32", f"v{t1}", f"v{Sb+3}", f"v{Sb+4}", f"v{Sb+5}"))
    o.append(V("v_max3_f32", f"v{t0}", f"v{t0}", f"v{Sb+6}", f"v{Sb+7}"))
    o.append(V("v_max3_f32", f"v{t1}", f"v{t1}", f"v{Sb+8}", f"v{Sb+9}"))
    o.append(V("v_max3_f32", f"v{t0}", f"v{t0}", f"v{Sb+10}", f"v{Sb+11}"))
    o.append(V("v_max3_f32", f"v{t1}", f"v{t1}", f"v{Sb+12}", f"v{Sb+13}"))
    o.append(V("v_max3_f32", f"v{t0}", f"v{t0}", f"v{Sb+14}", f"v{Sb+15}"))
    o.append(V("v_max_f32", f"v{t0}", f"v{t0}", f"v{t1}"))
    o.append(vmov(f"v{t1}", f"v{t0}"))
    o.append(nop(1))
    o.append(swap32(f"v{t0}", f"v{t1}"))
    o.append(V("v_max_f32", f"v{mreg}", f"v{t0}", f"v{t1}"))
    return o

def stamp(idx, fine=0):
    if not cfg.stamps: return []
    if cfg.fine != fine and idx not in (0, 8, 9): return []
    return [raw(f"s_memtime s[{60+2*idx}:{61+2*idx}]", 'stampi')]

def prologue():
    o = []
    vmlist = []
    def a(x, tag=None):
        o.append(x)
        if x.k in ('vload', 'dma', 'vstore'): vmlist.append(tag)
    def wait_for(tag):
        last = max(i for i, t in enumerate(vmlist) if t == tag)
        return wait(vm=len(vmlist) - 1 - last)
    a(scmp("s_cmp_ge_u32", "s2", 256)); a(branch("s_cbranch_scc1", "L_end", ['scc']))
    a(raw("s_load_dwordx4 s[36:39], s[0:1], 0", 'smem', [], R('s', 36, 4)))
    a(raw("s_load_dwordx4 s[40:43], s[0:1], 16", 'smem', [], R('s', 40, 4)))
    if cfg.stamps:
        a(raw("s_load_dwordx2 s[58:59], s[0:1], 32", 'smem', [], R('s', 58, 2)))
        o += stamp(0)
        a(raw("s_memrealtime s[82:83]", 'stampi'))
    a(V("v_lshrrev_b32", "v1", 6, "v0"))
    a(V("v_and_b32", "v2", 63, "v0"))
    a(readfirst(f"s{sW}", "v1"))
    a(V("v_lshrrev_b32", "v3", 4, "v2"))
    a(V("v_and_b32", "v4", 15, "v2"))
    a(V("v_lshlrev_b32", f"v{VLIN}", 4, "v2"))
    a(S("s_and_b32", f"s{sT}", "s2", 7))
    a(S("s_lshr_b32", f"s{sT+1}", "s2", 3))
    a(S("s_lshr_b32", f"s{sT+2}", "s2", 5))
    a(S("s_lshl_b32", f"s{sW8192}", f"s{sW}", 13))
    a(S("s_lshl_b32", f"s{sT+3}", f"s{sT}", 5)); a(S("s_add_u32", f"s{sT+3}", f"s{sT+3}", f"s{sT+1}"))
    a(S("s_mul_i32", f"s{sT+3}", f"s{sT+3}", 40960, w_scc=False))
    a(S("s_lshl_b32", f"s{sT+4}", f"s{sT}", 3)); a(S("s_add_u32", f"s{sT+4}", f"s{sT+4}", f"s{sT+2}"))
    a(S("s_lshl_b32", f"s{sT+4}", f"s{sT+4}", 18))
    a(V("v_xor_b32", "v7", "v3", "v4"))
    a(V("v_lshlrev_b32", "v7", 4, "v7")); a(V("v_lshl_add_u32", "v7", "v3", 8, "v7"))
    a(V("v_add_u32", f"v{KDMA}", f"s{sW8192}", "v7"))
    for k in range(1, 4): a(V("v_xor_b32", f"v{KDMA+k}", 64 * k, f"v{KDMA}"))
    a(V("v_lshlrev_b32", "v6", 2, "v3")); a(V("v_xor_b32", "v6", "v6", "v4"))
    a(V("v_lshlrev_b32", "v6", 4, "v6")); a(V("v_lshl_add_u32", "v6", "v3", 8, "v6"))
    a(V("v_add_u32", f"v{VDMA}", f"s{sW8192}", "v6"))
    a(S("s_lshl_b32", f"s{sT}", f"s{sW}", 11)); a(S("s_add_u32", f"s{sT}", f"s{sT}", 32768))
    a(S("s_add_u32", f"s{sT+1}", f"s{sW8192}", 4096))
    a(smov(f"s{sOff0}", 0)); a(smov(f"s{sOff1}", 4096))
    a(S("s_add_u32", "m0", f"s{sW8192}", LDS_K0))
    a(wait(lg=0))
    def srd(base, p, off, n):
        a(S("s_add_u32", f"s{base}", f"s{p}", f"s{off}")); a(S("s_addc_u32", f"s{base+1}", f"s{p+1}", 0, r_scc=True))
        a(S("s_and_b32", f"s{base+1}", f"s{base+1}", "0xffff"))
        a(smov(f"s{base+2}", n)); a(smov(f"s{base+3}", "0x20000"))
    o += stamp(1, 1)
    srd(SQ, 36, sT + 3, 40960)
    for e in range(2): a(vload(('v', SA + 4 * e), 4, VLIN, SQ, f"s{sT}", 1024 * e, cfg.qld), "QS")
    o += stamp(2, 1)
    srd(SK, 38, sT + 4, 262144)
    for n in range(4):
        a(dma(KDMA + n, SK, f"s{sOff0}", 1024 * n, reg=(('K', 0), 0, True), flags=cfg.ld), "K0")
        if n == 0: o += stamp(3, 1)
    a(S("s_add_u32", "m0", f"s{sW8192}", LDS_K0 + 4096)); a(nop(0))
    for n in range(4): a(dma(KDMA + n, SK, f"s{sOff1}", 1024 * n, reg=(('K', 0), 0, True), flags=cfg.ld), "K0")
    o += stamp(4, 1)
    for n in range(8): a(vload(('v', Q_OWN + 4 * n), 4, VLIN, SQ, f"s{sW8192 if n < 4 else sT+1}", 1024 * (n % 4), cfg.qld), f"QO{n}")
    o += stamp(5, 1)
    srd(SV, 40, sT + 4, 262144)
    o += stamp(1); o += stamp(7, 1)
    srd(SO, 42, sT + 3, 40960)
    a(smov(f"s{sC}", hex(SCALE_BITS))); a(smov(f"s{sMask}", "0xffff0000"))
    a(smov(f"s{sC2}", hex(SCALE_BITS))); a(smov(f"s{sC2+1}", hex(SCALE_BITS)))
    QW = XT
    for e in range(2):
        a(S("s_lshl_b32", f"s{sT}", f"s{sW}", 1)); a(S("s_add_u32", f"s{sT}", f"s{sT}", e))
        a(S("s_and_b32", f"s{sT+1}", f"s{sT}", 3)); a(S("s_lshl_b32", f"s{sT+1}", f"s{sT+1}", 6))
        a(S("s_lshl_b32", f"s{sT}", f"s{sT}", 10)); a(S("s_add_u32", f"s{sT}", f"s{sT}", LDS_QS))
        a(V("v_xor_b32", f"v{QW+e}", f"s{sT+1}", "v7")); a(V("v_add_u32", f"v{QW+e}", f"s{sT}", f"v{QW+e}"))
    a(V("v_and_b32", "v5", 31, "v2")); a(V("v_lshrrev_b32", "v6", 5, "v2"))
    a(V("v_and_b32", "v7", 15, "v5")); a(V("v_xor_b32", "v7", "v7", "v6"))
    a(V("v_lshlrev_b32", "v7", 4, "v7")); a(V("v_lshl_add_u32", "v7", "v5", 8, "v7"))
    TS = CI_SH
    a(V("v_add_u32", f"v{TS}", LDS_QS, "v7"))
    for j in range(1, 8): a(V("v_xor_b32", f"v{TS+j}", 32 * j, f"v{TS}"))
    TMPS = CI_OWN
    a(wait_for("QS"))
    o += scale4(SA, TMPS, pk=True) + scale4(SA + 4, TMPS + 8, pk=True)
    for e in range(2): a(dsw128(QW + e, ('v', SA + 4 * e), 0, reg=(('QS', 0), 'qs', False)))
    a(V("v_add_u32", f"v{KADDR}", f"s{sW8192}", "v7"))
    for j in range(1, 8): a(V("v_xor_b32", f"v{KADDR+j}", 32 * j, f"v{KADDR}"))
    a(wait(lg=0)); a(barrier())
    for j in range(8): a(dsr128(('a', Q_SH + 4 * j), TS + j, 0, reg=(('QS', 0), 'qs', False)))
    o += stamp(2)
    a(smov(f"s{sT}", 0)); a(smov(f"s{sT+1}", 4096))
    a(S("s_add_u32", "m0", f"s{sW8192}", LDS_V0)); a(nop(0))
    for n in range(4): a(dma(VDMA, SV, f"s{sT}", 1024 * n, reg=(('V', 0), 0, True), flags=cfg.ld), "V0")
    a(S("s_add_u32", "m0", f"s{sW8192}", LDS_V0 + 4096)); a(nop(0))
    for n in range(4): a(dma(VDMA, SV, f"s{sT+1}", 1024 * n, reg=(('V', 0), 0, True), flags=cfg.ld), "V0")
    for kv, b0, b1 in (('K', LDS_K0, LDS_K1), ('V', LDS_V0, LDS_V1)):
        for buf, base in ((0, b0), (1, b1)):
            for grp in range(2):
                a(S("s_add_u32", f"s{m0_val_reg(kv, buf, grp)}", f"s{sW8192}", base + grp * 4096))
    a(smov(f"s{sKill}", 0)); a(smov(f"s{sDelta}", hex(DROP)))
    if cfg.pf:
        a(S("s_lshr_b32", f"s{sT}", "s2", 3)); a(S("s_and_b32", f"s{sT+1}", f"s{sT}", 1)); a(S("s_lshl_b32", f"s{sT+1}", f"s{sT+1}", 2))
        a(S("s_add_u32", f"s{sT+1}", f"s{sT+1}", f"s{sW}")); a(S("s_lshl_b32", f"s{sT+1}", f"s{sT+1}", 12)); a(S("s_add_u32", f"s{sT+1}", f"s{sT+1}", 65536))
        a(V("v_lshlrev_b32", f"v{VPF}", 2, f"v{VLIN}")); a(V("v_add_u32", f"v{VPF}", f"s{sT+1}", f"v{VPF}"))
        a(S("s_and_b32", f"s{sT}", f"s{sT}", 2)); a(scmp("s_cmp_eq_u32", f"s{sT}", 0))
        a(S("s_cselect_b32", f"s{SP}", f"s{SK}", f"s{SV}", w_scc=False, r_scc=True))
        a(S("s_cselect_b32", f"s{SP+1}", f"s{SK+1}", f"s{SV+1}", w_scc=False, r_scc=True))
        a(smov(f"s{SP+2}", 262144)); a(smov(f"s{SP+3}", "0x20000"))
    a(smov(f"s{sOff0}", 32768)); a(smov(f"s{sOff1}", 32768 + 4096))
    for i in range(1, 4):
        a(S("s_add_u32", f"s{sT+i}", f"s{sW}", i)); a(S("s_and_b32", f"s{sT+i}", f"s{sT+i}", 3))
        a(S("s_sub_u32", f"s{sT+i}", f"s{sT+i}", f"s{sW}")); a(S("s_lshl_b32", f"s{sT+i}", f"s{sT+i}", 13))
    a(wait_for("K0"))
    for j in range(8): a(dsr128(('a', KF + 4 * j), KADDR + j, koff(0), reg=(('K', 0), 0, True)))
    for i in range(1, 4):
        for j in range(8): a(V("v_add_u32", f"v{KADDR+8*i+j}", f"s{sT+i}", f"v{KADDR+j}"))
    a(vmov(f"v{P}", 0)); a(vmov(f"v{P+1}", 0)); a(vmov(f"v{P+2}", 0)); a(vmov(f"v{P+3}", 0))
    a(wait(lg=0))
    for j in range(8): a(mfma(('v', SA), ('a', KF + 4 * j), ('a', Q_SH + 4 * j), 0 if j == 0 else ('v', SA)))
    o += stamp(3)
    a(V("v_lshrrev_b32", "v1", 2, "v4"))
    a(V("v_lshl_add_u32", "v7", "v6", 2, "v1"))
    a(V("v_lshlrev_b32", "v7", 8, "v7"))
    a(V("v_lshl_add_u32", "v7", "v1", 6, "v7"))
    a(V("v_and_b32", "v1", 1, "v3")); a(V("v_lshl_add_u32", "v7", "v1", 5, "v7"))
    a(V("v_and_b32", "v1", 3, "v4")); a(V("v_lshl_add_u32", "v7", "v1", 3, "v7"))
    a(S("s_add_u32", f"s{sT+4}", f"s{sW8192}", LDS_V0))
    a(V("v_add_u32", f"v{VADDR}", f"s{sT+4}", "v7"))
    for db in range(1, 4): a(V("v_xor_b32", f"v{VADDR+db}", 64 * db, f"v{VADDR}"))
    for i in range(1, 4):
        for db in range(4): a(V("v_add_u32", f"v{VADDR+4*i+db}", f"s{sT+i}", f"v{VADDR+db}"))
    TW = CI_SH + 8
    for k in range(4): a(V("v_add_u32", f"v{TW+k}", LDS_X, f"v{KDMA+k}"))
    for j in range(8): a(V("v_add_u32", f"v{TS+j}", LDS_X, f"v{KADDR+j}"))
    a(V("v_and_b32", "v1", 7, "v5")); a(V("v_xor_b32", "v1", "v1", "v6")); a(V("v_lshlrev_b32", "v1", 4, "v1"))
    a(V("v_lshl_add_u32", "v1", "v5", 9, "v1"))
    a(S("s_lshl_b32", f"s{sT}", f"s{sW}", 14)); a(S("s_add_u32", f"s{sT}", f"s{sT}", LDS_MG))
    a(V("v_add_u32", f"v{VMWB}", f"s{sT}", "v1"))
    for g in range(1, 4): a(V("v_xor_b32", f"v{VMWB+g}", 32 * g, f"v{VMWB}"))
    a(V("v_lshlrev_b32", "v1", 2, "v6")); a(V("v_lshl_add_u32", "v1", "v5", 5, "v1"))
    a(S("s_lshl_b32", f"s{sT}", f"s{sW}", 3)); a(S("s_add_u32", f"s{sT}", f"s{sT}", LDS_ML))
    a(V("v_add_u32", f"v{VMLWB}", f"s{sT}", "v1"))
    a(V("v_lshlrev_b32", f"v{VQ}", 4, "v6")); a(V("v_lshl_add_u32", f"v{VQ}", "v5", 8, f"v{VQ}"))
    a(vmov(f"v{VHALF}", "-0.5")); a(vmov(f"v{L_OWN}", 0)); a(vmov(f"v{L_SH}", 0))
    o += rowmax(SA, M_SH, 1, 2)
    a(V("v_lshrrev_b32", "v1", 2, f"v{VLIN}")); a(S("s_lshl_b32", f"s{sT}", f"s{sW}", 8)); a(S("s_add_u32", f"s{sT}", f"s{sT}", LDS_MX))
    a(V("v_add_u32", "v7", f"s{sT}", "v1")); a(V("v_add_u32", "v1", LDS_MX, "v1"))
    a(I(f"ds_write_b32 v7, v{M_SH}", 'dsw', ["v7", f"v{M_SH}"], [], reg=(('MX', 0), 'mx', False)))
    for db in range(4): a(mfma(('v', O_OWN + 16 * db), ('v', P), ('v', P), 0))
    for db in range(4): a(mfma(('a', O_SH + 16 * db), ('v', P), ('v', P), 0))
    a(wait(lg=0)); a(barrier())
    for x in range(4): a(I(f"ds_read_b32 v{XT+x}, v1 offset:{256*x}" if x else f"ds_read_b32 v{XT}, v1", 'dsr', ["v1"], [f"v{XT+x}"], reg=(('MX', 0), 'mx', False)))
    o += stamp(4)
    def piece(n):
        a(wait_for(f"QO{n}"))
        o.extend(scale4(Q_OWN + 4 * n, TMPS + 8 * (n % 2), pk=False))
        a(dsw128(TW + n % 4, ('v', Q_OWN + 4 * n), 1024 * n, reg=(('QO', 0), 'qo', True)))
    piece(0)
    a(wait(lg=1))
    a(V("v_max3_f32", "v1", f"v{XT}", f"v{XT+1}", f"v{XT+2}")); a(V("v_max_f32", f"v{M_SH}", "v1", f"v{XT+3}"))
    a(nop(1))
    a(mfma_f32(('v', SA), VHALF, M_SH, ('v', SA)))
    for n in range(1, 8):
        piece(n)
        if n == 3:
            for grp in range(2):
                a(S("s_mov_b32", "m0", f"s{m0_val_reg('K', 1, grp)}", w_scc=False)); a(nop(0))
                for k in range(4): a(dma(KDMA + k, SK, f"s{sOff0 if grp == 0 else sOff1}", 1024 * k, reg=(('K', 1), 1, True), flags=cfg.ld), "K1")
    o += stamp(5)
    a(mfma_f32(('v', CI_SH), VHALF, M_SH, 0) if False else nop(0))
    a(wait(lg=0))
    for j in range(8): a(dsr128(('v', Q_OWN + 4 * j), TS + j, 0, reg=(('QO', 0), 'qo', True)))
    smq = []
    for s in range(-6, ENTRY):
        st, sl = (0, s) if s >= 0 else (-1, s + 80)
        smq += [x for x in sm_ops(st, sl) if st == 0 or not (set(x.w) | set(x.r)) & set(R('v', SB, 16))]
    o += smq[:3]
    a(mfma_f32(('v', CI_SH), VHALF, M_SH, 0))
    for j in range(8):
        a(wait(lg=7 - j))
        a(mfma(('v', SB), ('a', KF + 4 * j), ('v', Q_OWN + 4 * j), 0 if j == 0 else ('v', SB)))
        k0 = 3 + 4 * j
        o += smq[k0:k0 + 4]
    rest = smq[35:]
    o += stamp(6)
    a(wait_for("V0"))
    vreads = []
    for st, rng in ((-1, range(72, 80)), (0, range(0, ENTRY))):
        for sl in rng:
            for d in MEM[sl]:
                if d[0] == 'V' and d[1] == 0: vreads.append(mem_ins(st, sl, d))
                elif d[0] == 'K' and st == 0: raise Exception("K reads before entry need the barrier first")
    o += vreads
    a(barrier())
    for grp in range(2):
        a(S("s_mov_b32", "m0", f"s{m0_val_reg('V', 1, grp)}", w_scc=False)); a(nop(0))
        for n in range(4):
            gp = [sl for sl in range(80) if ('DV', 4 * grp + n) in MEM[sl]][0]
            if gp >= 64 or gp < ENTRY: a(dma(VDMA, SV, f"s{sOff0 if grp == 0 else sOff1}", 1024 * n, reg=(('V', 1), 1, True), flags=cfg.ld), "V1")
    if cfg.pf:
        a(pf_ins(0), "PF"); a(pf_ins(f"s{sOff0}"), "PF")
    o += rest
    o += rowmax(SB, M_OWN, 1, 2)
    a(nop(1))
    a(mfma_f32(('v', SB), VHALF, M_OWN, ('v', SB)))
    a(mfma_f32(('v', CI_OWN), VHALF, M_OWN, 0))
    a(wait(lg=0))
    o += stamp(7)
    if cfg.stamps: a(raw("s_memrealtime s[86:87]", 'stampi'))
    return o

def store_tile_rows(Oreg, rinv, soff):
    o = []
    for db in range(4):
        b = Oreg + 16 * db
        for i in range(16): o.append(vmul(f"v{b+i}", f"v{rinv}", f"v{b+i}"))
        for m in range(8): o.append(cvtpk(f"v{b+m}", f"v{b+2*m}", f"v{b+2*m+1}"))
        for pr in range(2):
            r0 = b + 4 * pr
            o.append(swap32(f"v{r0}", f"v{r0+2}")); o.append(swap32(f"v{r0+1}", f"v{r0+3}"))
        for pr in range(2): o.append(vstore(('v', b + 4 * pr), 4, VQ, SO, soff, db * 64 + pr * 32))
    return o

def epilogue():
    o = []; a = o.append
    st = 7
    SF = cfg.store_flags
    for s in range(EXIT, 80):
        for d in MEM[s]:
            if d[0] == 'V' and d[1] == 3: a(mem_ins(st, s, d))
    MGR = ('MG', 0), 'mg', False
    wr = []
    if not cfg.inloop_merge:
        wr.append(I(f"ds_write_b32 v{VMLWB}, v{L_SH}", 'dsw', [f"v{VMLWB}", f"v{L_SH}"], [], reg=MGR))
        for q in range(16):
            db, g = divmod(q, 4)
            wr.append(dsw128(VMWB + g, ('a', O_SH + 16 * db + 4 * g), 128 * db, reg=MGR))
    adr = []; b_ = adr.append
    b_(V("v_lshrrev_b32", "v3", 4, f"v{VLIN}"))
    b_(V("v_lshrrev_b32", "v4", 4, "v3"))
    b_(V("v_and_b32", "v5", 3, "v3"))
    b_(V("v_lshlrev_b32", "v5", 1, "v5")); b_(V("v_xor_b32", "v5", "v5", "v4")); b_(V("v_lshlrev_b32", "v5", 4, "v5"))
    b_(V("v_bfe_u32", "v6", "v3", 2, 2)); b_(V("v_lshl_add_u32", "v5", "v6", 7, "v5"))
    b_(V("v_lshl_add_u32", "v5", "v4", 9, "v5"))
    a(S("s_lshl_b32", f"s{sT}", f"s{sW}", 12)); a(S("s_add_u32", f"s{sT}", f"s{sT}", LDS_MG))
    a(S("s_lshl_b32", f"s{sT+1}", f"s{sW}", 8)); a(S("s_add_u32", f"s{sT+1}", f"s{sT+1}", LDS_ML))
    A00, A01, A10, A11 = XT, XT + 1, XT + 2, XT + 3
    b_(V("v_add_u32", f"v{A00}", f"s{sT}", "v5")); b_(V("v_xor_b32", f"v{A01}", 16, f"v{A00}"))
    b_(V("v_xor_b32", f"v{A10}", 64, f"v{A00}")); b_(V("v_add_u32", f"v{A10}", 2048, f"v{A10}")); b_(V("v_xor_b32", f"v{A11}", 16, f"v{A10}"))
    b_(V("v_lshlrev_b32", "v4", 5, "v4")); b_(V("v_add_u32", "v4", f"s{sT+1}", "v4"))
    LR = CI_OWN
    def dst(x, u, e): return [SA, CI_SH, Q_OWN, Q_OWN + 16][x] + 8 * u + 4 * e
    rd = []
    for u in range(2):
        for e in range(2): rd.append(dsr128(('v', LR + 8 * u + 4 * e), 4, 128 * u + 16 * e, reg=MGR))
    for x in range(4):
        for u in range(2):
            for e in range(2): rd.append(dsr128(('v', dst(x, u, e)), [[A00, A01], [A10, A11]][u][e], 16384 * x, reg=MGR))
    valu = []
    for s in range(EXIT, 80):
        valu.append((s, [x for x in sm_ops(st, s) if not (set(x.w) | set(x.r)) & set(R('v', SA, 16) + [f"v{L_SH}"])]))
    pv = [mfma_at(st, 72 + i) for i in range(8)]
    if cfg.inloop_merge:
        o += adr; o += rd
        for s, ops in valu:
            o += ops
            if s == 67: a(wait(lg=15))
            if 67 <= s < 71: a(pv[s - 67])
        a(nop(1))
        for i in range(4, 8): a(pv[i])
    else:
        nw = 0
        for s, ops in valu:
            for _ in range(2):
                if nw < len(wr): a(wr[nw]); nw += 1
            o += ops
            if s == 67: a(wait(lg=10))
            if 67 <= s < 71: a(pv[s - 67])
        assert nw == len(wr)
        a(nop(1))
        for i in range(4, 8): a(pv[i]); o += adr[4 * (i - 4):4 * (i - 4) + 4]
        o += stamp(1, 2)
        a(wait(lg=0)); o += stamp(2, 2); a(barrier()); o += stamp(3, 2)
        o += adr[16:]
        o += rd
    a(vmov("v1", f"v{L_OWN}")); a(wait(lg=0)); o += stamp(4, 2); a(nop(0)); a(swap32(f"v{L_OWN}", "v1")); a(vadd(f"v{L_OWN}", f"v{L_OWN}", "v1"))
    for u in range(2):
        b = LR + 8 * u
        for k in range(4): a(vadd(f"v{b+k}", f"v{b+k}", f"v{b+4+k}"))
    for u in range(2):
        b = LR + 8 * u
        a(vadd(f"v{b}", f"v{b}", f"v{b+1}")); a(vadd(f"v{b+2}", f"v{b+2}", f"v{b+3}"))
    for u in range(2): a(vadd(f"v{LR+8*u}", f"v{LR+8*u}", f"v{LR+8*u+2}"))
    a(smov(f"s{sT}", hex(cfg.thresh)))
    a(vrcp("v5", f"v{L_OWN}")); a(vrcp("v6", f"v{LR}")); a(vrcp("v7", f"v{LR+8}"))
    a(vcmp("v_cmp_nle_f32", "s[52:53]", f"v{L_OWN}", f"s{sT}"))
    a(vcmp("v_cmp_nle_f32", "s[54:55]", f"v{LR}", f"s{sT}"))
    a(vcmp("v_cmp_nle_f32", "s[56:57]", f"v{LR+8}", f"s{sT}"))
    for x in range(1, 4):
        for i in range(16): a(vadd(f"v{SA+i}", f"v{SA+i}", f"v{dst(x,0,0)+i}"))
    a(raw("s_or_b64 s[54:55], s[54:55], s[56:57]", 'salu', ['s54', 's55', 's56', 's57'], ['s54', 's55', 'scc']))
    if cfg.force_slow:
        a(raw("s_mov_b64 s[54:55], -1", 'salu', [], ['s54', 's55'])); a(raw("s_mov_b64 s[52:53], -1", 'salu', [], ['s52', 's53']))
    for u in range(2):
        for i in range(8): a(vmul(f"v{SA+8*u+i}", f"v{6+u}", f"v{SA+8*u+i}"))
    for m in range(8): a(cvtpk(f"v{SA+m}", f"v{SA+2*m}", f"v{SA+2*m+1}"))
    a(scmp("s_cmp_lg_u64", "s[54:55]", 0))
    a(S("s_lshl_b32", f"s{sT+1}", f"s{sW}", 11, w_scc=False) if False else raw(f"s_lshl_b32 s{sT+1}, s{sW}, 11", 'salu', [f"s{sW}"], [f"s{sT+1}"]) if False else nop(0))
    a(branch("s_cbranch_scc1", "L_skip_sh", ['scc']))
    a(S("s_lshl_b32", f"s{sT+1}", f"s{sW}", 11)); a(S("s_add_u32", f"s{sT+1}", f"s{sT+1}", 32768))
    for u in range(2): a(vstore(('v', SA + 4 * u), 4, VLIN, SO, f"s{sT+1}", 1024 * u, SF))
    a(label("L_skip_sh"))
    o += stamp(5, 2)
    a(scmp("s_cmp_lg_u64", "s[52:53]", 0))
    a(branch("s_cbranch_scc1", "L_skip_own", ['scc']))
    a(scmp("s_cmp_eq_u32", f"s{sW}", 3))
    a(S("s_mul_i32", f"s{sT}", f"s{sW}", 8704, w_scc=False))
    a(S("s_cselect_b32", f"s{sT}", LDS_V0 + 2048, f"s{sT}", w_scc=False, r_scc=True))
    a(V("v_lshrrev_b32", "v1", 8, f"v{VQ}")); a(V("v_bfe_u32", "v2", f"v{VQ}", 4, 1))
    a(V("v_mul_u32_u24", "v1", 272, "v1")); a(V("v_lshl_add_u32", "v1", "v2", 3, "v1")); a(V("v_add_u32", "v1", f"s{sT}", "v1"))
    a(V("v_lshrrev_b32", "v2", 8, f"v{VLIN}")); a(V("v_lshl_add_u32", "v2", "v2", 4, f"v{VLIN}")); a(V("v_add_u32", "v2", f"s{sT}", "v2"))
    for db in range(4):
        b = O_OWN + 16 * db
        for i in range(16): a(vmul(f"v{b+i}", "v5", f"v{b+i}"))
        for m in range(8): a(cvtpk(f"v{b+m}", f"v{b+2*m}", f"v{b+2*m+1}"))
        for g in range(4): a(dsw64(1, ('v', b + 2 * g), db * 64 + g * 16, reg=(('OT', 0), 'ot', True)))
    a(S("s_add_u32", f"s{sT+1}", f"s{sW8192}", 4096))
    o += stamp(6, 2)
    a(wait(lg=0))
    o += stamp(7, 2)
    for n in range(8): a(dsr128(('v', SA + 4 * n), 2, 1088 * n, reg=(('OT', 0), 'ot', True)))
    for n in range(8):
        a(wait(lg=7 - n))
        a(vstore(('v', SA + 4 * n), 4, VLIN, SO, f"s{sW8192 if n < 4 else sT+1}", 1024 * (n % 4), SF))
    a(label("L_skip_own"))
    o += stamp(9)
    a(raw("s_or_b64 s[56:57], s[52:53], s[54:55]", 'salu', ['s52', 's53', 's54', 's55'], ['s56', 's57', 'scc']))
    a(branch("s_cbranch_scc1", "L_slow", ['scc']))
    return o

def slow_path():
    o = []; a = o.append
    Kr, Sr, Vr, Or = 80, 112, 128, O_OWN
    mreg, lreg = M_OWN, L_OWN
    a(label("L_slow"))
    a(wait(vm=0, lg=0))
    a(scmp("s_cmp_lg_u64", "s[52:53]", 0)); a(branch("s_cbranch_scc0", "L_slow_sh", ['scc']))
    a(smov("s33", f"s{sW8192}"))
    a(raw("s_mov_b64 s[52:53], 0", 'salu', [], ['s52', 's53']))
    a(raw("s_mov_b64 s[56:57], -1", 'salu', [], ['s56', 's57']))
    a(branch("s_branch", "L_slow_tile"))
    a(label("L_slow_sh"))
    a(scmp("s_cmp_lg_u64", "s[54:55]", 0)); a(branch("s_cbranch_scc0", "L_end", ['scc']))
    a(smov("s33", 32768))
    a(raw("s_mov_b64 s[54:55], 0", 'salu', [], ['s54', 's55']))
    a(S("s_lshl_b32", "s34", f"s{sW}", 3)); a(S("s_lshl_b32", "s56", "0xff", "s34")); a(smov("s57", "s56"))
    a(label("L_slow_tile"))
    for j in range(8): a(vload(('v', Q_OWN + 4 * j), 4, VQ, SQ, "s33", 32 * j))
    a(wait(vm=0))
    for g in range(8): o.extend(scale4(Q_OWN + 4 * g, 240, pk=False))
    a(vmov(f"v{mreg}", "0xff800000"))
    def qk():
        for j in range(8): a(vload(('v', Kr + 4 * j), 4, VQ, SK, "s34", 32 * j))
        a(wait(vm=0))
        for j in range(8): a(mfma(('v', Sr), ('v', Kr + 4 * j), ('v', Q_OWN + 4 * j), 0 if j == 0 else ('v', Sr)))
        a(nop(15))
    a(smov("s34", 0))
    a(label("L_slow_p1"))
    qk()
    for i in range(16): a(V("v_max_f32", f"v{mreg}", f"v{mreg}", f"v{Sr+i}"))
    a(S("s_add_u32", "s34", "s34", 8192)); a(scmp("s_cmp_lt_u32", "s34", 262144)); a(branch("s_cbranch_scc1", "L_slow_p1", ['scc']))
    a(vmov("v1", f"v{mreg}")); a(nop(1)); a(swap32(f"v{mreg}", "v1")); a(V("v_max_f32", f"v{mreg}", f"v{mreg}", "v1"))
    a(vmov(f"v{lreg}", 0))
    for i in range(64): a(vmov(f"v{Or+i}", 0))
    a(V("v_lshrrev_b32", "v2", 8, f"v{VQ}"))
    a(V("v_bfe_u32", "v3", f"v{VQ}", 4, 1))
    a(V("v_lshlrev_b32", "v2", 1, "v2")); a(V("v_lshl_add_u32", "v2", "v3", 10, "v2"))
    a(smov("s34", 0))
    a(label("L_slow_p2"))
    qk()
    for i in range(16): a(V("v_sub_f32", f"v{Sr+i}", f"v{Sr+i}", f"v{mreg}"))
    for i in range(16): a(vexp(f"v{Sr+i}", f"v{Sr+i}"))
    a(nop(0))
    for i in range(16): a(vadd(f"v{lreg}", f"v{lreg}", f"v{Sr+i}"))
    for m in range(8): a(cvtpk(f"v{P+m}", f"v{Sr+2*m}", f"v{Sr+2*m+1}"))
    for ks in range(2):
        a(S("s_add_u32", "s35", "s34", ks * 4096))
        for db in range(4):
            for r in range(4):
                for e in range(2):
                    j = 2 * r + e
                    off = (8 * (j // 4) + j % 4) * 256 + db * 64
                    a(vload(('v', Kr + 8 * db + 2 * r + e), 1, 2, SV, "s35", off, op="buffer_load_ushort"))
        a(wait(vm=0))
        for db in range(4):
            for r in range(4): a(V("v_lshl_or_b32", f"v{Vr+4*db+r}", f"v{Kr+8*db+2*r+1}", 16, f"v{Kr+8*db+2*r}"))
        a(nop(1))
        for db in range(4): a(mfma(('v', Or + 16 * db), ('v', Vr + 4 * db), ('v', P + 4 * ks), ('v', Or + 16 * db)))
        a(nop(7))
    a(S("s_add_u32", "s34", "s34", 8192)); a(scmp("s_cmp_lt_u32", "s34", 262144)); a(branch("s_cbranch_scc1", "L_slow_p2", ['scc']))
    a(nop(15))
    a(vmov("v1", f"v{lreg}")); a(nop(1)); a(swap32(f"v{lreg}", "v1")); a(vadd(f"v{lreg}", f"v{lreg}", "v1"))
    a(vrcp("v5", f"v{lreg}")); a(nop(0))
    body = store_tile_rows(Or, 5, "s33")
    for x in body:
        if x.k == 'vstore':
            a(raw("s_mov_b64 exec, s[56:57]", 'salu', ['s56', 's57'], ['exec'])); a(x); a(raw("s_mov_b64 exec, -1", 'salu', [], ['exec'])); a(nop(1))
        else: a(x)
    a(wait(vm=0))
    a(branch("s_branch", "L_slow_sh"))
    return o

def stamp_out():
    o = []
    if not cfg.stamps: return o
    a = o.append
    a(raw("s_waitcnt vmcnt(0)", 'wait', vm=0)); o += [raw("s_memtime s[80:81]", 'stampi'), raw("s_memrealtime s[84:85]", 'stampi')]
    a(raw("s_waitcnt lgkmcnt(0)", 'wait', lg=0))
    a(scmp("s_cmp_lg_u32", "s2", cfg.stamp_wg)); a(branch("s_cbranch_scc1", "L_end", ['scc']))
    a(scmp("s_cmp_lg_u32", f"s{sW}", 0)); a(branch("s_cbranch_scc1", "L_end", ['scc']))
    a(vmov("v1", 0))
    def put(off, x, y):
        a(S("s_sub_u32", "s33", x, y)); a(vmov("v2", "s33"))
        a(raw(f"global_store_dword v1, v2, s[58:59] offset:{off}", 'vstore', ['v1', 'v2', 's58', 's59'], [], data=['v2']))
        a(nop(1))
    for i in range(11): put(4 * i, f"s{60+2*i}", "s60")
    put(44, "s84", "s82"); put(48, "s86", "s82"); put(52, "s88", "s82")
    return o

def build():
    global MEM, MGW, LGW
    MEM, MGW = build_mem_schedule()
    LGW = compute_lgkm_waits()
    pro = prologue()
    body = body_iter(0)
    epi = epilogue()
    slow = slow_path()
    static = pro + [raw(".p2align 6", 'label'), label("L_loop")] + body + [label("L_exit")] + stamp(8) + \
             ([raw("s_memrealtime s[88:89]", 'stampi')] if cfg.stamps else []) + epi + stamp_out() + \
             [label("L_end"), raw("s_endpgm", 'branch')] + slow
    trace = list(pro)
    for it in range(4):
        b = body_iter(2 * it, last=(it == 3))
        assert [x.t for x in b] == [x.t for x in body[:len(b)]], "loop body is not periodic"
        trace += b
    trace += epi
    errs = verify(trace, "main")
    errs += verify(slow, "slow", check_lds=False)
    return static, errs, (pro, body, epi)

HEADER = """; Kernarg layout for this problem (48 bytes, ptrs only, base s[0:1]):
; One workgroup per (batch, q-head): 4 waves, wave w owns q rows 32w..32w+31 against all keys and
; @launch grid=(256,1,1) block=(256,1,1) lds=163840
.amdgcn_target "amdgcn-amd-amdhsa--gfx950"
.text
.globl {n}_kernel
.p2align 8
.type {n}_kernel,@function
{n}_kernel:
"""
FOOTER = """
.section .rodata,"a"
.p2align 6
.amdhsa_kernel {n}_kernel
  .amdhsa_next_free_vgpr 512
  .amdhsa_next_free_sgpr 96
  .amdhsa_accum_offset 256
  .amdhsa_group_segment_fixed_size 0
  .amdhsa_kernarg_size 48
  .amdhsa_user_sgpr_count 2
  .amdhsa_user_sgpr_kernarg_segment_ptr 1
  .amdhsa_system_sgpr_workgroup_id_x 1
.end_amdhsa_kernel
"""

def main(argv=None):
    ap = argparse.ArgumentParser()
    ap.add_argument("-o", default="cdna_kernels/%s.s" % NAME)
    ap.add_argument("--stamps", action="store_true")
    ap.add_argument("--stamp-wg", type=int, default=0)
    ap.add_argument("--force-slow", action="store_true")
    ap.add_argument("--thresh", default=None)
    ap.add_argument("--store-flags", default="")
    ap.add_argument("--show", action="store_true")
    ap.add_argument("--ld", default="nt"); ap.add_argument("--qld", default="nt"); ap.add_argument("--pfld", default="nt")
    ap.add_argument("--no-pf", action="store_true")
    ap.add_argument("--fine", type=int, default=0)
    ap.add_argument("--inloop-merge", action="store_true")
    args = ap.parse_args(argv)
    cfg.stamps = args.stamps; cfg.stamp_wg = args.stamp_wg; cfg.force_slow = args.force_slow; cfg.store_flags = args.store_flags
    cfg.pf = not args.no_pf; cfg.ld = args.ld; cfg.qld = args.qld; cfg.pfld = args.pfld
    cfg.inloop_merge = args.inloop_merge; cfg.fine = args.fine
    if args.thresh: cfg.thresh = int(args.thresh, 0)
    static, errs, parts = build()
    if args.show:
        for s in range(80):
            print(s, "cvt" if has_cvt(s) else "   ", LGW[(0, s)], LGW[(1, s)], MEM[s], MGW.get(s, ""))
    for e in errs[:40]: print("ERR", e)
    cnt = lambda L: sum(1 for x in L if x.k != 'label')
    print("errors:", len(errs), " instructions:", cnt(static), " pro/body/epi:", [cnt(p) for p in parts])
    open(args.o, "w").write(HEADER.format(n=NAME) + text_of(static) + FOOTER.format(n=NAME))

if __name__ == "__main__": main()
```

```python
import re

def R(f, b, n=1):
    return [f"{f}{b+i}" for i in range(n)]
def T(f, b, n=1):
    return f"{f}{b}" if n == 1 else f"{f}[{b}:{b+n-1}]"

class I:
    __slots__ = ('t', 'k', 'r', 'w', 'x')
    def __init__(self, t, k, r=(), w=(), **x):
        self.t = t; self.k = k; self.r = tuple(r); self.w = tuple(w); self.x = x
    def __repr__(self): return self.t

def mfma(D, A, B, C):
    ct = "0" if C == 0 else T(C[0], C[1], 16)
    r = R(A[0], A[1], 4) + R(B[0], B[1], 4) + ([] if C == 0 else R(C[0], C[1], 16))
    return I(f"v_mfma_f32_32x32x16_bf16 {T(D[0],D[1],16)}, {T(A[0],A[1],4)}, {T(B[0],B[1],4)}, {ct}", 'mfma',
             r, R(D[0], D[1], 16), passes=8, cls='xdl', C=([] if C == 0 else R(C[0], C[1], 16)),
             AB=R(A[0], A[1], 4) + R(B[0], B[1], 4))
def mfma_f32(D, a, b, C):
    ct = "0" if C == 0 else T(C[0], C[1], 16)
    r = [f"v{a}", f"v{b}"] + ([] if C == 0 else R(C[0], C[1], 16))
    return I(f"v_mfma_f32_32x32x2_f32 {T(D[0],D[1],16)}, v{a}, v{b}, {ct}", 'mfma', r, R(D[0], D[1], 16),
             passes=16, cls='sgemm', C=([] if C == 0 else R(C[0], C[1], 16)), AB=[f"v{a}", f"v{b}"])
def _regs(*ops):
    out = []
    for o in ops:
        if isinstance(o, str):
            m = re.fullmatch(r'-?\|?([vas])(\d+)\|?', o)
            if m: out.append(m.group(1) + m.group(2)); continue
            m = re.fullmatch(r'([vas])\[(\d+):(\d+)\]', o)
            if m: out += R(m.group(1), int(m.group(2)), int(m.group(3)) - int(m.group(2)) + 1); continue
            if o in ('vcc', 'exec', 'm0', 'scc'): out.append(o)
    return out
def V(op, d, *srcs, trans=False, rmw=False, extra_r=(), extra_w=(), mods=""):
    srcs = [str(s) for s in srcs]
    t = f"{op} {d}, " + ", ".join(srcs) + (" " + mods if mods else "")
    r = _regs(*srcs) + list(extra_r) + (_regs(d) if rmw else [])
    return I(t, 'trans' if trans else 'valu', r, _regs(d) + list(extra_w))
def vexp(d, s): return V("v_exp_f32", d, s, trans=True)
def vrcp(d, s): return V("v_rcp_f32", d, s, trans=True)
def vadd(d, a, b): return V("v_add_f32", d, a, b)
def vmul(d, a, b): return V("v_mul_f32", d, a, b)
def cvtpk(d, a, b): return V("v_cvt_pk_bf16_f32", d, a, b)
def vmov(d, s): return V("v_mov_b32", d, s)
def accw(d, s): return V("v_accvgpr_write_b32", d, s)
def accr(d, s): return V("v_accvgpr_read_b32", d, s)
def swap32(a, b): return I(f"v_permlane32_swap_b32 {a}, {b}", 'perm', [a, b], [a, b])
def vcmp(op, d, a, b):
    return I(f"{op} {d}, {a}, {b}", 'valu', _regs(a, b), _regs(d) if d != 'vcc' else ['vcc'])
def readfirst(s, v): return I(f"v_readfirstlane_b32 {s}, {v}", 'valu', [v], [s], rfl=True)
def S(op, d, *srcs, w_scc=True, r_scc=False):
    srcs = [str(s) for s in srcs]
    t = f"{op} {d}" + ("".join(", " + s for s in srcs))
    return I(t, 'salu', _regs(*srcs) + (['scc'] if r_scc else []), _regs(d) + (['scc'] if w_scc else []))
def smov(d, s): return S("s_mov_b32", d, s, w_scc=False)
def scmp(op, a, b): return I(f"{op} {a}, {b}", 'salu', _regs(str(a), str(b)), ['scc'])
def dsr128(D, addr, off, reg=None):
    return I(f"ds_read_b128 {T(D[0],D[1],4)}, v{addr}" + (f" offset:{off}" if off else ""), 'dsr', [f"v{addr}"], R(D[0], D[1], 4), reg=reg)
def dsr64(D, addr, off, reg=None):
    return I(f"ds_read_b64 {T(D[0],D[1],2)}, v{addr}" + (f" offset:{off}" if off else ""), 'dsr', [f"v{addr}"], R(D[0], D[1], 2), reg=reg)
def dstr(D, addr, off, reg=None):
    return I(f"ds_read_b64_tr_b16 {T(D[0],D[1],2)}, v{addr}" + (f" offset:{off}" if off else ""), 'dsr', [f"v{addr}"], R(D[0], D[1], 2), reg=reg)
def dsw128(addr, Sr, off, reg=None):
    return I(f"ds_write_b128 v{addr}, {T(Sr[0],Sr[1],4)}" + (f" offset:{off}" if off else ""), 'dsw', [f"v{addr}"] + R(Sr[0], Sr[1], 4), [], reg=reg)
def dsw64(addr, Sr, off, reg=None):
    return I(f"ds_write_b64 v{addr}, {T(Sr[0],Sr[1],2)}" + (f" offset:{off}" if off else ""), 'dsw', [f"v{addr}"] + R(Sr[0], Sr[1], 2), [], reg=reg)
def dma(voff, srd, soff, off, reg=None, flags=""):
    so = soff if isinstance(soff, str) else str(soff)
    return I(f"buffer_load_dwordx4 v{voff}, s[{srd}:{srd+3}], {so} offen" + (f" offset:{off}" if off else "") + (" " + flags if flags else "") + " lds",
             'dma', [f"v{voff}", 'm0'] + R('s', srd, 4) + _regs(so), [], reg=reg)
def vload(D, n, voff, srd, soff, off, flags="", op=None):
    so = soff if isinstance(soff, str) else str(soff)
    op = op or {1: "buffer_load_dword", 2: "buffer_load_dwordx2", 4: "buffer_load_dwordx4"}[n]
    return I(f"{op} {T(D[0],D[1],n)}, v{voff}, s[{srd}:{srd+3}], {so} offen" + (f" offset:{off}" if off else "") + (" " + flags if flags else ""),
             'vload', [f"v{voff}"] + R('s', srd, 4) + _regs(so), R(D[0], D[1], n))
def vstore(Sr, n, voff, srd, soff, off, flags=""):
    so = soff if isinstance(soff, str) else str(soff)
    op = {1: "buffer_store_dword", 2: "buffer_store_dwordx2", 4: "buffer_store_dwordx4"}[n]
    return I(f"{op} {T(Sr[0],Sr[1],n)}, v{voff}, s[{srd}:{srd+3}], {so} offen" + (f" offset:{off}" if off else "") + (" " + flags if flags else ""),
             'vstore', [f"v{voff}"] + R('s', srd, 4) + _regs(so) + R(Sr[0], Sr[1], n), [], data=R(Sr[0], Sr[1], n), wide=(n >= 3))
def wait(vm=None, lg=None):
    p = []
    if vm is not None: p.append(f"vmcnt({vm})")
    if lg is not None: p.append(f"lgkmcnt({lg})")
    return I("s_waitcnt " + " ".join(p), 'wait', vm=vm, lg=lg)
def barrier(): return I("s_barrier", 'bar')
def nop(n): return I(f"s_nop {n}", 'nop', n=n)
def label(name): return I(f"{name}:", 'label')
def branch(op, target, r=()): return I(f"{op} {target}", 'branch', r)
def raw(t, k='salu', r=(), w=(), **x): return I(t, k, r, w, **x)
def comment(t): return I(f"; {t}", 'label')

class VerifyError(Exception): pass

def verify(trace, name="trace", check_lds=True, verbose=False):
    errs = []
    real = [x for x in trace if x.k != 'label']
    def states_between(i, j):
        n = 0
        for q in range(i + 1, j):
            n += (real[q].x['n'] + 1) if real[q].k == 'nop' else 1
        return n
    VAL = ('valu', 'trans', 'perm')
    for j, c in enumerate(real):
        cr, cw = set(c.r), set(c.w)
        n = 0
        for i in range(j - 1, max(-1, j - 26), -1):
            p = real[i]
            if n > 21: break
            pw, pr = set(p.w), set(p.r)
            need = 0; why = None
            def req(k, s):
                nonlocal need, why
                if k > need: need, why = k, s
            if p.k in VAL:
                vw = {x for x in pw if x[0] in 'va' and x != 'vcc'}
                sw = {x for x in pw if x[0] == 's' and x != 'scc' or x == 'vcc'}
                if c.k == 'mfma' and vw & cr: req(2, "VALU->MFMA read")
                if c.k == 'perm' and vw & cr: req(2, "VALU->permlane")
                if c.x.get('rfl') and vw & cr: req(1, "VALU->readfirstlane")
                if p.k == 'trans' and c.k in ('valu', 'perm') and vw & cr: req(1, "trans->valu")
                if p.k == 'trans' and c.k in ('dsw', 'vstore', 'mfma') and vw & cr: req(2, "trans->mem/mfma (conservative)")
                if sw & cr:
                    if c.k in VAL: req(2, "VALU sgpr/vcc->VALU read")
                    if c.k in ('dma', 'vload', 'vstore'): req(5, "VALU sgpr->VMEM")
                    if c.k in ('salu', 'branch'): req(1, "VALU sgpr->SALU (conservative)")
            if p.k == 'mfma':
                ps = p.x['passes']; D = pw
                xdl = p.x['cls'] == 'xdl'
                if c.k == 'mfma':
                    cC = set(c.x['C']); cAB = set(c.x['AB'])
                    if cAB & D: req({8: 12, 16: 20}[ps] if xdl else {16: 18}[ps], "MFMA D->MFMA A/B")
                    if cC & D:
                        exact = (cC == D and c.x['cls'] == p.x['cls'])
                        if not exact:
                            if xdl: req({8: 10}[ps], "XDL D->overlap SrcC")
                            elif c.x['cls'] == 'sgemm': req(16, "SGEMM D->SGEMM C overlap")
                            else: req(4, "SGEMM D->XDL C (padded)")
                    if (cw & D) and not (cC & D):
                        req({8: 10, 16: 16}[ps], "MFMA D WAW MFMA")
                else:
                    k = ({8: 12}[ps] if xdl else {16: 18}[ps])
                    if c.k in VAL and ((cr | cw) & D): req(k, "MFMA D->VALU")
                    if c.k in ('dsw', 'vstore', 'dsr', 'vload', 'dma') and ((cr | cw) & D): req(k, "MFMA D->mem")
                    pc = set(p.x['C'])
                    if c.k in VAL and (cw & pc) and xdl: req(7, "XDL SrcC WAR VALU")
            if p.k == 'salu' and 'm0' in pw and c.k == 'dma': req(1, "M0->DMA")
            if p.k == 'vstore' and p.x.get('wide') and c.k in VAL and (cw & set(p.x['data'])): req(2, "store data WAR")
            if p.k == 'vstore' and p.x.get('wide') and c.k in ('dsr', 'vload') and (cw & set(p.x['data'])): req(1, "store data WAR(load)")
            if need > n:
                errs.append(f"[{name}] hazard '{why}': '{p.t}' -> '{c.t}' has {n} states, needs {need} (idx {i}->{j})")
            n += (p.x['n'] + 1) if p.k == 'nop' else 1
    lgq = []
    vmq = []
    pend = {}
    seq = 0
    bufs = {}
    def B(b):
        return bufs.setdefault(b, dict(cur=None, out=0, landed=None, visible=None, reads_out=0, unsafe=False, wr_out=0))
    for j, c in enumerate(real):
        if c.k == 'wait':
            if c.x.get('lg') is not None:
                while len(lgq) > c.x['lg']:
                    o = lgq.pop(0)
                    for w in o.w:
                        if pend.get(w) is o: del pend[w]
                    rg = o.x.get('reg')
                    if rg is not None:
                        b = B(rg[0])
                        if o.k == 'dsr': b['reads_out'] -= 1
                        else:
                            b['wr_out'] -= 1
                            if b['wr_out'] == 0 and b['out'] == 0: b['landed'] = b['cur']
            if c.x.get('vm') is not None:
                while len(vmq) > c.x['vm']:
                    o = vmq.pop(0)
                    for w in o.w:
                        if pend.get(w) is o: del pend[w]
                    if o.k == 'dma' and o.x.get('reg') is not None:
                        b = B(o.x['reg'][0]); b['out'] -= 1
                        if b['out'] == 0 and b.get('expect_more', 0) == 0: b['landed'] = b['cur']
            continue
        if c.k == 'bar':
            for b in bufs.values():
                if b['out'] == 0 and b['wr_out'] == 0 and b['landed'] == b['cur']: b['visible'] = b['landed']
                b['unsafe'] = b['reads_out'] > 0
                b['read_since_bar'] = False
            continue
        for r in c.r:
            if r in pend: errs.append(f"[{name}] '{c.t}' (idx {j}) reads {r} with load outstanding: '{pend[r].t}'")
        for w in c.w:
            if w in pend and not (c.k in ('dsr',) and pend[w].k == 'dsr') and not (c.k == 'vload' and pend[w].k == 'vload'):
                errs.append(f"[{name}] '{c.t}' (idx {j}) writes {w} with load outstanding: '{pend[w].t}'")
        if c.k in ('dsr', 'dsw', 'smem'):
            lgq.append(c)
            if len(lgq) > 15 + 48: pass
            for w in c.w: pend[w] = c
        if c.k in ('vload', 'dma', 'vstore'):
            vmq.append(c)
            if len(vmq) > 63: errs.append(f"[{name}] vmcnt overflow at idx {j}")
            for w in c.w: pend[w] = c
        rg = c.x.get('reg')
        if check_lds and rg is not None:
            b = B(rg[0])
            if c.k == 'dsr':
                ok = (b['visible'] == rg[1]) or (rg[2] and b['landed'] == rg[1])
                if not ok: errs.append(f"[{name}] LDS read '{c.t}' (idx {j}) of {rg}: landed={b['landed']} visible={b['visible']}")
                b['reads_out'] += 1; b['read_since_bar'] = True
            elif c.k in ('dma', 'dsw'):
                if b['cur'] != rg[1]:
                    if b['unsafe'] or b.get('read_since_bar', False):
                        errs.append(f"[{name}] LDS WAR: '{c.t}' (idx {j}) overwrites {rg[0]} (content {b['cur']}) without barrier after its reads")
                    b['cur'] = rg[1]; b['landed'] = None; b['visible'] = None
                else:
                    b['landed'] = None; b['visible'] = None
                if c.k == 'dma': b['out'] += 1
                else: b['wr_out'] += 1
    return errs

def text_of(stream):
    out = []
    for x in stream:
        if x.k == 'label': out.append(x.t)
        else: out.append("    " + x.t)
    return "\n".join(out)

def dsr2st64_64(D, addr, o0, o1, reg=None):
    return I(f"ds_read2st64_b64 {T(D[0],D[1],4)}, v{addr} offset0:{o0} offset1:{o1}", 'dsr', [f"v{addr}"], R(D[0], D[1], 4), reg=reg)
def dsr2_32(D, addr, o0, o1, reg=None):
    return I(f"ds_read2_b32 {T(D[0],D[1],2)}, v{addr} offset0:{o0} offset1:{o1}", 'dsr', [f"v{addr}"], R(D[0], D[1], 2), reg=reg)
```

```python
import sys, argparse
from asmlib import *

NAME = "standalone__gqa_softmax__near_ridge"

class Cfg:
    E0 = 10
    LEAD = 4
    LAG = 3
    thresh = 0x4b800000
    stamps = False
    force_slow = False
    store_flags = ""
    inloop_merge = False
    fine = False
    qsplit = 8
    ld = "nt"
    qld = "nt"
    pfld = "nt"
    pf = False
    pf_slot = 65
cfg = Cfg()

L_OWN, L_SH, M_OWN, M_SH = 8, 9, 10, 11
KDMA = 12
VDMA = 16
VHALF = 17
VQ = 18
VLIN = 19
VPF, VPFD = 20, 21
KADDR = 24
VADDR = 56
P = 72
SA, SB = 80, 96
CI_OWN, CI_SH = 112, 128
Q_OWN = 144
O_OWN = 176
XT = 240
VMW, VMWB = 244, 248
VMLW, VMLWB = 252, 253
O_SH, Q_SH, KF, VF = 0, 64, 96, 128
sW, SQ, SK, SV, SO = 3, 8, 12, 16, 20
sW8192, sOff0, sOff1, sC, sMask = 24, 25, 26, 27, 28
sT = 29
sKill, sDelta = 34, 35
sQS, sQO1 = 54, 55
SP = 4
sM0 = 44
SCALE_BITS = 0x3e0293ee
LDS_K1, LDS_K0, LDS_X, LDS_V0, LDS_V1 = 0, 32768, 65536, 98304, 131072
LDS_MG = LDS_K0
LDS_ML = LDS_V0
LDS_QS = LDS_V1
LDS_MX = LDS_V1 + 8192
DROP = 0x30000
def koff(buf): return LDS_K0 if buf == 0 else LDS_K1
def Sbuf(par): return SA if par == 0 else SB

def mfma_at(step, slot):
    W, k = divmod(slot, 16)
    if k < 8:
        u = W + 1; st = step
        if u == 5: u = 0; st = step + 1
        S_ = Sbuf((st + u) % 2)
        sh = (u == 0)
        B = ('a', Q_SH + 4 * k) if sh else ('v', Q_OWN + 4 * k)
        C = ('v', CI_SH if sh else CI_OWN) if k == 0 else ('v', S_)
        return mfma(('v', S_), ('a', KF + 4 * k), B, C)
    else:
        idx = k - 8; ks, db = divmod(idx, 4)
        O = ('a', O_SH + 16 * db) if W == 0 else ('v', O_OWN + 16 * db)
        return mfma(O, ('a', VF + 4 * idx), ('v', P + 4 * ks), O)

def sm_ops(step, slot):
    ops = []
    for st, i in [(step, j) for j in range(5)] + [(step + 1, 0), (step - 1, 4)]:
        rel = slot + 80 * (step - st) - 16 * (i - 1) - cfg.E0
        S_ = Sbuf((st + i) % 2); Lr = L_SH if i == 0 else L_OWN
        if 0 <= rel < 16: ops.append((0, vexp(f"v{S_+rel}", f"v{S_+rel}")))
        if 0 <= rel - 1 < 16: ops.append((1, vadd(f"v{Lr}", f"v{Lr}", f"v{S_+rel-1}")))
        if rel >= 2 and rel % 2 == 0 and rel <= 16:
            m = (rel - 2) // 2
            ops.append((2, cvtpk(f"v{P+m}", f"v{S_+2*m}", f"v{S_+2*m+1}")))
    ops.sort(key=lambda x: x[0])
    return [o for _, o in ops]

def has_cvt(slot): return (slot - cfg.E0) % 2 == 0
B1, B2 = 47, 71

def build_mem_schedule():
    ops = []
    L = cfg.LEAD
    def add(d, e, l): ops.append([d, e, l])
    for j in range(8):
        add(('K', 0, j), 48 + j, 64 + j - L)
        add(('K', 1, j), 80 + j, 96 + j - L)
        add(('K', 2, j), 96 + j, 112 + j - L)
        add(('K', 3, j), 112 + j, min(128 + j - L, 80 + B1 - L))
    for idx in range(8):
        for hh in range(2):
            add(('V', 3, idx, hh), 56 + idx, min(72 + idx - L, B2 - L))
            add(('V', 0, idx, hh), 72 + idx, 88 + idx - L)
            add(('V', 1, idx, hh), 104 + idx, 120 + idx - L)
            add(('V', 2, idx, hh), 120 + idx, 136 + idx - L)
    sched = {s: [] for s in range(80)}
    for n, sl in enumerate(cfg.dk_slots): sched[sl % 80].append(('DK', n))
    for n, sl in enumerate(cfg.dv_slots): sched[sl % 80].append(('DV', n))
    def cap(s, hard):
        c = (1 if has_cvt(s) else 2) + (1 if hard else 0)
        if s in (B1, B2): c -= 1
        return c
    ops.sort(key=lambda o: (o[2] - o[1], o[2]))
    ops.sort(key=lambda o: (o[2], o[1]))
    for o in ops:
        d, e, l = o
        best = None
        for hard in (False, True):
            for t in range(e, l + 1):
                if len(sched[t % 80]) < cap(t % 80, hard): best = t; break
            if best is not None: break
        if best is None: raise Exception(f"cannot place {o}")
        sched[best % 80].append(d)
    if cfg.pf: sched[cfg.pf_slot].append(('PF',))
    for s in sched: sched[s].sort(key=lambda d: 1 if d[0] in ('DK', 'DV', 'PF') else 0)
    mg = {}
    if cfg.inloop_merge:
        todo = [16] + list(range(16))
        for hard in (False, True):
            for t in range(21, B1 - L):
                if todo and cap(t, hard) - len(sched[t]) - len(mg.get(t, [])) > 0: mg.setdefault(t, []).append(todo.pop(0))
        assert not todo, "no room for merge writes"
    return sched, mg
cfg.dk_slots = (49, 51, 53, 55, 57, 59, 61, 63)
cfg.dv_slots = (73, 75, 77, 79, 81, 83, 85, 87)

MEM = MGW = LGW = None

def mem_ins(step, slot, d):
    if d[0] == 'K':
        _, tp, j = d
        cs = step + 1 if tp == 0 else step
        buf = cs % 2
        return dsr128(('a', KF + 4 * j), KADDR + 8 * tp + j, koff(buf), reg=(('K', buf), cs, tp == 0) if cs < 8 else None)
    if d[0] == 'V':
        _, tp, idx, hh = d
        ks, db = divmod(idx, 4)
        cs = step + 1 if (tp == 0 and slot >= 64) else step
        buf = cs % 2
        return dstr(('a', VF + 4 * idx + 2 * hh), VADDR + 4 * tp + db, buf * 32768 + ks * 4096 + hh * 2048, reg=(('V', buf), cs, tp == 0))
    if d[0] == 'PF': return pf_ins(f"s{sOff0}")
    if d[0] == 'DK':
        n = d[1]; cs = step + 2; buf = cs % 2
        return dma(KDMA + n % 4, SK, f"s{sOff0 if n < 4 else sOff1}", 1024 * (n % 4), reg=(('K', buf), cs, True) if cs < 8 else None, flags=cfg.ld)
    if d[0] == 'DV':
        n = d[1]; cs = step + 2 if slot >= 64 else step + 1; buf = cs % 2
        return dma(VDMA, SV, f"s{sOff0 if n < 4 else sOff1}", 1024 * (n % 4), reg=(('V', buf), cs, True) if cs < 8 else None, flags=cfg.ld)

def pf_ins(soff): return vload(('v', VPFD), 1, VPF, SP, soff, 0, flags=cfg.pfld)

def merge_mem(step, slot):
    if step % 2 == 0 or slot not in MGW: return []
    o = []
    rg = (('MG', 0), 'mg', False) if step == 7 else None
    for q in MGW[slot]:
        if q == 16: o.append(I(f"ds_write_b32 v{VMLW}, v{L_SH}", 'dsw', [f"v{VMLW}", f"v{L_SH}"], [], reg=rg, mg=True))
        else:
            db, g = divmod(q, 4)
            x = dsw128(VMW + g, ('a', O_SH + 16 * db + 4 * g), 128 * db, reg=rg); x.x['mg'] = True
            o.append(x)
    return o

def merge_valu(step, slot):
    if step % 2 == 0 or not cfg.inloop_merge: return []
    if 16 <= slot <= 19: return [V("v_add_u32", f"v{VMW+slot-16}", f"s{sDelta}", f"v{VMWB+slot-16}")]
    if slot == 20: return [V("v_add_u32", f"v{VMLW}", f"s{sDelta}", f"v{VMLWB}")]
    return []

def m0_val_reg(kv, buf, grp): return sM0 + (0 if kv == 'K' else 4) + 2 * buf + grp

def scalar_ops(step, slot):
    o = []
    def m0(kv, buf, grp): return S("s_max_u32", "m0", f"s{m0_val_reg(kv, buf, grp)}", f"s{sKill}")
    dk, dv = [x % 80 for x in cfg.dk_slots], [x % 80 for x in cfg.dv_slots]
    if slot == dk[0] - 1: o.append(m0('K', step % 2, 0))
    if slot == dk[4] - 1: o.append(m0('K', step % 2, 1))
    if slot == dv[0] - 1: o.append(m0('V', (step if slot >= 64 else step + 1) % 2, 0))
    if slot == dv[4] - 1: o.append(m0('V', (step if slot >= 64 else step + 1) % 2, 1))
    if slot == 9: o.append(S("s_add_u32", f"s{sOff0}", f"s{sOff0}", "0x8000"))
    if slot == 10: o.append(S("s_add_u32", f"s{sOff1}", f"s{sOff1}", "0x8000"))
    if slot == 11: o.append(scmp("s_cmp_ge_u32", f"s{sOff0}", "0x40000"))
    if slot == 12: o.append(S("s_cselect_b32", f"s{sKill}", hex(DROP), 0, w_scc=False, r_scc=True))
    if step % 2 == 1 and cfg.inloop_merge:
        if slot == 14: o.append(scmp("s_cmp_eq_u32", f"s{sOff0}", hex(9 * 32768)))
        if slot == 15: o.append(S("s_cselect_b32", f"s{sDelta}", 0, hex(DROP), w_scc=False, r_scc=True))
    return o

def gap_mem(step, slot):
    return [mem_ins(step, slot, d) for d in MEM[slot]] + merge_mem(step, slot)

def compute_lgkm_waits():
    seq = []; prod = {}; covered = -1; res = {}
    for t in range(0, 480):
        st, sl = divmod(t, 80)
        nst, nsl = divmod(t + 1, 80)
        nm = mfma_at(nst, nsl)
        need = max([prod.get(r, -1) for r in nm.x['AB']] + [-1])
        if sl == B1: need = max([need] + [i for i, (tt, d) in enumerate(seq) if d in ('K', 'MG')])
        if sl == B2: need = max([need] + [i for i, (tt, d) in enumerate(seq) if d == 'V'])
        n = None
        if need > covered:
            tgt = need
            for i in range(len(seq) - 1, -1, -1):
                if seq[i][0] <= t - cfg.LAG: tgt = max(tgt, i); break
            n = len(seq) - 1 - tgt
            if n > 15: tgt = len(seq) - 1 - 15; n = 15
            covered = tgt
        res[(st, sl)] = n
        for ins in gap_mem(st % 2 + 2 * (st // 2 % 2), sl):
            if ins.k in ('dsr', 'dsw'):
                kind = 'MG' if ins.x.get('mg') else ('K' if 'b128' in ins.t else 'V')
                seq.append((t, kind))
                for r in ins.w: prod[r] = len(seq) - 1
    out = {}
    for par in range(2):
        for sl in range(80):
            assert res[(2 + par, sl)] == res[(4 + par, sl)]
            out[(par, sl)] = res[(4 + par, sl)]
    return out

def gap(step, slot, part='all'):
    head, rest = [], []
    head.append(mfma_at(step, slot))
    n = LGW[(step % 2, slot)]
    if slot == B1 or slot == B2:
        head.append(wait(vm=9 if cfg.pf else 8, lg=n)); head.append(barrier())
    elif n is not None: head.append(wait(lg=n))
    head += scalar_ops(step, slot)
    rest += gap_mem(step, slot)
    rest += sm_ops(step, slot) + merge_valu(step, slot)
    return head if part == 'head' else rest if part == 'rest' else head + rest

ENTRY = 7
EXIT = 63

def body_iter(st0, last=False):
    o = []
    o += gap(st0, ENTRY, 'rest')
    for s in range(ENTRY + 1, 80): o += gap(st0, s)
    for s in range(0, EXIT):
        g = gap(st0 + 1, s)
        if s == EXIT - 3:
            g = gap(st0 + 1, s, 'head') + [scmp("s_cmp_eq_u32", f"s{sOff0}", hex(9 * 32768))] + gap(st0 + 1, s, 'rest')
        o += g
    o += gap(st0 + 1, EXIT, 'head') + [branch("s_cbranch_scc1", "L_exit", ['scc'])]
    if last: return o
    o += gap(st0 + 1, EXIT, 'rest')
    for s in range(EXIT + 1, 80): o += gap(st0 + 1, s)
    for s in range(0, ENTRY): o += gap(st0 + 2, s)
    o += gap(st0 + 2, ENTRY, 'head') + [branch("s_branch", "L_loop")]
    return o

def scale4(src, tmp, pk=False):
    o = []
    for i in range(4): o.append(V("v_lshlrev_b32", f"v{tmp+2*i}", 16, f"v{src+i}"))
    for i in range(4): o.append(V("v_and_b32", f"v{tmp+2*i+1}", f"s{sMask}", f"v{src+i}"))
    if pk:
        for i in range(4): o.append(V("v_pk_mul_f32", f"v[{tmp+2*i}:{tmp+2*i+1}]", f"v[{tmp+2*i}:{tmp+2*i+1}]", f"s[{sC2}:{sC2+1}]"))
    else:
        for i in range(4): o.append(vmul(f"v{tmp+2*i}", f"s{sC}", f"v{tmp+2*i}"))
        for i in range(4): o.append(vmul(f"v{tmp+2*i+1}", f"s{sC}", f"v{tmp+2*i+1}"))
    for i in range(4): o.append(cvtpk(f"v{src+i}", f"v{tmp+2*i}", f"v{tmp+2*i+1}"))
    return o
sC2 = 52

def rowmax(Sb, mreg, t0, t1):
    o = []
    o.append(V("v_max3_f32", f"v{t0}", f"v{Sb}", f"v{Sb+1}", f"v{Sb+2}"))
    o.append(V("v_max3_f32", f"v{t1}", f"v{Sb+3}", f"v{Sb+4}", f"v{Sb+5}"))
    o.append(V("v_max3_f32", f"v{t0}", f"v{t0}", f"v{Sb+6}", f"v{Sb+7}"))
    o.append(V("v_max3_f32", f"v{t1}", f"v{t1}", f"v{Sb+8}", f"v{Sb+9}"))
    o.append(V("v_max3_f32", f"v{t0}", f"v{t0}", f"v{Sb+10}", f"v{Sb+11}"))
    o.append(V("v_max3_f32", f"v{t1}", f"v{t1}", f"v{Sb+12}", f"v{Sb+13}"))
    o.append(V("v_max3_f32", f"v{t0}", f"v{t0}", f"v{Sb+14}", f"v{Sb+15}"))
    o.append(V("v_max_f32", f"v{t0}", f"v{t0}", f"v{t1}"))
    o.append(vmov(f"v{t1}", f"v{t0}"))
    o.append(nop(1))
    o.append(swap32(f"v{t0}", f"v{t1}"))
    o.append(V("v_max_f32", f"v{mreg}", f"v{t0}", f"v{t1}"))
    return o

def stamp(idx, fine=0):
    if not cfg.stamps: return []
    if cfg.fine != fine and idx not in (0, 8, 9): return []
    return [raw(f"s_memtime s[{60+2*idx}:{61+2*idx}]", 'stampi')]

def prologue():
    o = []
    vmlist = []
    def a(x, tag=None):
        o.append(x)
        if x.k in ('vload', 'dma', 'vstore'): vmlist.append(tag)
    def wait_for(tag):
        last = max(i for i, t in enumerate(vmlist) if t == tag)
        return wait(vm=len(vmlist) - 1 - last)
    a(scmp("s_cmp_ge_u32", "s2", 256)); a(branch("s_cbranch_scc1", "L_end", ['scc']))
    a(raw("s_load_dwordx4 s[36:39], s[0:1], 0", 'smem', [], R('s', 36, 4)))
    a(raw("s_load_dwordx4 s[40:43], s[0:1], 16", 'smem', [], R('s', 40, 4)))
    if cfg.stamps:
        a(raw("s_load_dwordx2 s[58:59], s[0:1], 32", 'smem', [], R('s', 58, 2)))
        o += stamp(0)
        a(raw("s_memrealtime s[82:83]", 'stampi'))
    a(V("v_lshrrev_b32", "v1", 6, "v0"))
    a(V("v_and_b32", "v2", 63, "v0"))
    a(readfirst(f"s{sW}", "v1"))
    a(V("v_lshrrev_b32", "v3", 4, "v2"))
    a(V("v_and_b32", "v4", 15, "v2"))
    a(V("v_lshlrev_b32", f"v{VLIN}", 4, "v2"))
    a(S("s_and_b32", f"s{sT}", "s2", 7))
    a(S("s_lshr_b32", f"s{sT+1}", "s2", 3))
    a(S("s_lshr_b32", f"s{sT+2}", "s2", 5))
    a(S("s_lshl_b32", f"s{sW8192}", f"s{sW}", 13))
    a(S("s_lshl_b32", f"s{sT+3}", f"s{sT}", 5)); a(S("s_add_u32", f"s{sT+3}", f"s{sT+3}", f"s{sT+1}"))
    a(S("s_mul_i32", f"s{sT+3}", f"s{sT+3}", 40960, w_scc=False))
    a(S("s_lshl_b32", f"s{sT+4}", f"s{sT}", 3)); a(S("s_add_u32", f"s{sT+4}", f"s{sT+4}", f"s{sT+2}"))
    a(S("s_lshl_b32", f"s{sT+4}", f"s{sT+4}", 18))
    a(V("v_xor_b32", "v7", "v3", "v4"))
    a(V("v_lshlrev_b32", "v7", 4, "v7")); a(V("v_lshl_add_u32", "v7", "v3", 8, "v7"))
    a(V("v_add_u32", f"v{KDMA}", f"s{sW8192}", "v7"))
    for k in range(1, 4): a(V("v_xor_b32", f"v{KDMA+k}", 64 * k, f"v{KDMA}"))
    a(S("s_lshl_b32", f"s{sQS}", f"s{sW}", 11)); a(S("s_add_u32", f"s{sQS}", f"s{sQS}", 32768))
    a(S("s_add_u32", f"s{sQO1}", f"s{sW8192}", 4096))
    a(smov(f"s{sOff0}", 0)); a(smov(f"s{sOff1}", 4096))
    a(S("s_add_u32", "m0", f"s{sW8192}", LDS_K0))
    QW = XT
    TS = CI_SH
    TW = SB + 8
    TR = SB
    def setup1():
        for e in range(2):
            a(S("s_lshl_b32", f"s{sT}", f"s{sW}", 1)); a(S("s_add_u32", f"s{sT}", f"s{sT}", e))
            a(S("s_and_b32", f"s{sT+1}", f"s{sT}", 3)); a(S("s_lshl_b32", f"s{sT+1}", f"s{sT+1}", 6))
            a(S("s_lshl_b32", f"s{sT}", f"s{sT}", 10)); a(S("s_add_u32", f"s{sT}", f"s{sT}", LDS_QS))
            a(V("v_xor_b32", f"v{QW+e}", f"s{sT+1}", "v7")); a(V("v_add_u32", f"v{QW+e}", f"s{sT}", f"v{QW+e}"))
        a(V("v_and_b32", "v5", 31, "v2")); a(V("v_lshrrev_b32", "v6", 5, "v2"))
        a(V("v_and_b32", "v7", 15, "v5")); a(V("v_xor_b32", "v7", "v7", "v6"))
        a(V("v_lshlrev_b32", "v7", 4, "v7")); a(V("v_lshl_add_u32", "v7", "v5", 8, "v7"))
        a(V("v_add_u32", f"v{TS}", LDS_QS, "v7"))
        for j in range(1, 8): a(V("v_xor_b32", f"v{TS+j}", 32 * j, f"v{TS}"))
        a(V("v_add_u32", f"v{KADDR}", f"s{sW8192}", "v7"))
        for j in range(1, 8): a(V("v_xor_b32", f"v{KADDR+j}", 32 * j, f"v{KADDR}"))
        a(smov(f"s{sC}", hex(SCALE_BITS))); a(smov(f"s{sMask}", "0xffff0000"))
        a(smov(f"s{sC2}", hex(SCALE_BITS))); a(smov(f"s{sC2+1}", hex(SCALE_BITS)))
    setup1()
    a(wait(lg=0))
    def srd(base, p, off, n):
        a(S("s_add_u32", f"s{base}", f"s{p}", f"s{off}")); a(S("s_addc_u32", f"s{base+1}", f"s{p+1}", 0, r_scc=True))
        a(S("s_and_b32", f"s{base+1}", f"s{base+1}", "0xffff"))
        a(smov(f"s{base+2}", n)); a(smov(f"s{base+3}", "0x20000"))
    o += stamp(1, 1)
    srd(SQ, 36, sT + 3, 40960)
    for e in range(2): a(vload(('v', SA + 4 * e), 4, VLIN, SQ, f"s{sQS}", 1024 * e, cfg.qld), "QS")
    srd(SK, 38, sT + 4, 262144)
    for n in range(4): a(dma(KDMA + n, SK, f"s{sOff0}", 1024 * n, reg=(('K', 0), 0, True), flags=cfg.ld), "K0")
    a(S("s_add_u32", "m0", f"s{sW8192}", LDS_K0 + 4096)); a(nop(0))
    for n in range(4): a(dma(KDMA + n, SK, f"s{sOff1}", 1024 * n, reg=(('K', 0), 0, True), flags=cfg.ld), "K0")
    o += stamp(2, 1)
    def qown(n0, n1):
        for n in range(n0, n1): a(vload(('v', Q_OWN + 4 * n), 4, VLIN, SQ, f"s{sW8192 if n < 4 else sQO1}", 1024 * (n % 4), cfg.qld), f"QO{n}")
    qown(0, cfg.qsplit)
    o += stamp(1); o += stamp(3, 1)
    srd(SV, 40, sT + 4, 262144)
    srd(SO, 42, sT + 3, 40960)
    a(V("v_lshlrev_b32", "v1", 2, "v3")); a(V("v_xor_b32", "v1", "v1", "v4"))
    a(V("v_lshlrev_b32", "v1", 4, "v1")); a(V("v_lshl_add_u32", "v1", "v3", 8, "v1"))
    a(V("v_add_u32", f"v{VDMA}", f"s{sW8192}", "v1"))
    for i in range(1, 4):
        a(S("s_add_u32", f"s{sT+i}", f"s{sW}", i)); a(S("s_and_b32", f"s{sT+i}", f"s{sT+i}", 3))
        a(S("s_sub_u32", f"s{sT+i}", f"s{sT+i}", f"s{sW}")); a(S("s_lshl_b32", f"s{sT+i}", f"s{sT+i}", 13))
    for i in range(1, 4):
        for j in range(8): a(V("v_add_u32", f"v{KADDR+8*i+j}", f"s{sT+i}", f"v{KADDR+j}"))
    for k in range(4): a(V("v_add_u32", f"v{TW+k}", LDS_X, f"v{KDMA+k}"))
    for j in range(8): a(V("v_add_u32", f"v{TR+j}", LDS_X, f"v{KADDR+j}"))
    a(V("v_lshrrev_b32", "v1", 2, "v4"))
    a(V("v_lshl_add_u32", "v7", "v6", 2, "v1"))
    a(V("v_lshlrev_b32", "v7", 8, "v7"))
    a(V("v_lshl_add_u32", "v7", "v1", 6, "v7"))
    a(V("v_and_b32", "v1", 1, "v3")); a(V("v_lshl_add_u32", "v7", "v1", 5, "v7"))
    a(V("v_and_b32", "v1", 3, "v4")); a(V("v_lshl_add_u32", "v7", "v1", 3, "v7"))
    a(S("s_add_u32", f"s{sT+4}", f"s{sW8192}", LDS_V0))
    a(V("v_add_u32", f"v{VADDR}", f"s{sT+4}", "v7"))
    for db in range(1, 4): a(V("v_xor_b32", f"v{VADDR+db}", 64 * db, f"v{VADDR}"))
    for i in range(1, 4):
        for db in range(4): a(V("v_add_u32", f"v{VADDR+4*i+db}", f"s{sT+i}", f"v{VADDR+db}"))
    a(V("v_and_b32", "v1", 7, "v5")); a(V("v_xor_b32", "v1", "v1", "v6")); a(V("v_lshlrev_b32", "v1", 4, "v1"))
    a(V("v_lshl_add_u32", "v1", "v5", 9, "v1"))
    a(S("s_lshl_b32", f"s{sT}", f"s{sW}", 14)); a(S("s_add_u32", f"s{sT}", f"s{sT}", LDS_MG))
    a(V("v_add_u32", f"v{VMWB}", f"s{sT}", "v1"))
    for g in range(1, 4): a(V("v_xor_b32", f"v{VMWB+g}", 32 * g, f"v{VMWB}"))
    a(V("v_lshlrev_b32", "v1", 2, "v6")); a(V("v_lshl_add_u32", "v1", "v5", 5, "v1"))
    a(S("s_lshl_b32", f"s{sT}", f"s{sW}", 3)); a(S("s_add_u32", f"s{sT}", f"s{sT}", LDS_ML))
    a(V("v_add_u32", f"v{VMLWB}", f"s{sT}", "v1"))
    a(V("v_lshlrev_b32", f"v{VQ}", 4, "v6")); a(V("v_lshl_add_u32", f"v{VQ}", "v5", 8, f"v{VQ}"))
    a(vmov(f"v{VHALF}", "-0.5")); a(vmov(f"v{L_OWN}", 0)); a(vmov(f"v{L_SH}", 0))
    for i in range(4): a(vmov(f"v{P+i}", 0))
    MXW, MXR = 22, 23
    a(V("v_lshrrev_b32", f"v{MXR}", 2, f"v{VLIN}")); a(S("s_lshl_b32", f"s{sT}", f"s{sW}", 8)); a(S("s_add_u32", f"s{sT}", f"s{sT}", LDS_MX))
    a(V("v_add_u32", f"v{MXW}", f"s{sT}", f"v{MXR}")); a(V("v_add_u32", f"v{MXR}", LDS_MX, f"v{MXR}"))
    for kv, b0, b1 in (('K', LDS_K0, LDS_K1), ('V', LDS_V0, LDS_V1)):
        for buf, base in ((0, b0), (1, b1)):
            for grp in range(2):
                a(S("s_add_u32", f"s{m0_val_reg(kv, buf, grp)}", f"s{sW8192}", base + grp * 4096))
    a(smov(f"s{sKill}", 0))
    for db in range(4): a(mfma(('v', O_OWN + 16 * db), ('v', P), ('v', P), 0))
    for db in range(4): a(mfma(('a', O_SH + 16 * db), ('v', P), ('v', P), 0))
    o += stamp(2); o += stamp(4, 1)
    qown(cfg.qsplit, 8)
    TMPS = CI_OWN
    a(wait_for("QS"))
    o += stamp(5, 1)
    o += scale4(SA, TMPS, pk=True) + scale4(SA + 4, TMPS + 8, pk=True)
    for e in range(2): a(dsw128(QW + e, ('v', SA + 4 * e), 0, reg=(('QS', 0), 'qs', False)))
    a(wait_for("K0"))
    for j in range(8): a(dsr128(('a', KF + 4 * j), KADDR + j, koff(0), reg=(('K', 0), 0, True)))
    a(wait(lg=8)); a(barrier())
    for j in range(8): a(dsr128(('a', Q_SH + 4 * j), TS + j, 0, reg=(('QS', 0), 'qs', False)))
    o += stamp(6, 1)
    for j in range(8):
        a(wait(lg=7 - j))
        a(mfma(('v', SA), ('a', KF + 4 * j), ('a', Q_SH + 4 * j), 0 if j == 0 else ('v', SA)))
    o += stamp(3); o += stamp(7, 1)
    def piece(n, pk):
        a(wait_for(f"QO{n}"))
        o.extend(scale4(Q_OWN + 4 * n, TMPS + 8 * (n % 2), pk=pk))
        a(dsw128(TW + n % 4, ('v', Q_OWN + 4 * n), 1024 * n, reg=(('QO', 0), 'qo', True)))
    a(smov(f"s{sOff0}", 0)); a(smov(f"s{sOff1}", 4096))
    def vdma(buf, content, tag, only=None):
        for grp in range(2):
            a(S("s_mov_b32", "m0", f"s{m0_val_reg('V', buf, grp)}", w_scc=False)); a(nop(0))
            for n in range(4):
                if only is None or only(4 * grp + n):
                    a(dma(VDMA, SV, f"s{sOff0 if grp == 0 else sOff1}", 1024 * n, reg=(('V', buf), content, True), flags=cfg.ld), tag)
    a(nop(7)); a(nop(3))
    o += rowmax(SA, M_SH, 1, 2)
    a(I(f"ds_write_b32 v{MXW}, v{M_SH}", 'dsw', [f"v{MXW}", f"v{M_SH}"], [], reg=(('MX', 0), 'mx', False)))
    a(wait(lg=0)); a(barrier())
    for x in range(4): a(I(f"ds_read_b32 v{XT+x}, v{MXR}" + (f" offset:{256*x}" if x else ""), 'dsr', [f"v{MXR}"], [f"v{XT+x}"], reg=(('MX', 0), 'mx', False)))
    o += stamp(4)
    a(wait(lg=0))
    a(V("v_max3_f32", "v1", f"v{XT}", f"v{XT+1}", f"v{XT+2}")); a(V("v_max_f32", f"v{M_SH}", "v1", f"v{XT+3}"))
    a(nop(1))
    a(mfma_f32(('v', SA), VHALF, M_SH, ('v', SA)))
    a(mfma_f32(('v', CI_SH), VHALF, M_SH, 0))
    piece(0, False); piece(1, False)
    piece(2, True); piece(3, True)
    vdma(0, 0, "V0")
    smq = []
    for s in range(-6, ENTRY):
        st, sl = (0, s) if s >= 0 else (-1, s + 80)
        smq += [x for x in sm_ops(st, sl) if st == 0 or not (set(x.w) | set(x.r)) & set(R('v', SB, 16))]
    for n in range(4, 8):
        piece(n, True)
        o += smq[4 * (n - 4):4 * (n - 4) + 4]
    smq = smq[16:]
    o += stamp(5)
    a(smov(f"s{sOff0}", 32768)); a(smov(f"s{sOff1}", 32768 + 4096))
    a(wait(lg=0))
    for j in range(8): a(dsr128(('v', Q_OWN + 4 * j), TR + j, 0, reg=(('QO', 0), 'qo', True)))
    for grp in range(2):
        a(S("s_mov_b32", "m0", f"s{m0_val_reg('K', 1, grp)}", w_scc=False)); a(nop(0))
        for k in range(4): a(dma(KDMA + k, SK, f"s{sOff0 if grp == 0 else sOff1}", 1024 * k, reg=(('K', 1), 1, True), flags=cfg.ld), "K1")
    for j in range(8):
        a(wait(lg=7 - j))
        a(mfma(('v', SB), ('a', KF + 4 * j), ('v', Q_OWN + 4 * j), 0 if j == 0 else ('v', SB)))
        o += smq[2 * j:2 * j + 2]
    assert len(smq) <= 16
    o += stamp(6)
    a(wait_for("V0"))
    for st, rng in ((-1, range(72, 80)), (0, range(0, ENTRY))):
        for sl in rng:
            for d in MEM[sl]:
                if d[0] == 'V' and d[1] == 0: a(mem_ins(st, sl, d))
                elif d[0] == 'K' and st == 0: raise Exception("K reads before entry need the barrier first")
    a(barrier())
    def v1_in_prologue(n):
        gp = [sl for sl in range(80) if ('DV', n) in MEM[sl]][0]
        return gp >= 64 or gp < ENTRY
    vdma(1, 1, "V1", v1_in_prologue)
    o += rowmax(SB, M_OWN, 1, 2)
    a(nop(1))
    a(mfma_f32(('v', SB), VHALF, M_OWN, ('v', SB)))
    a(mfma_f32(('v', CI_OWN), VHALF, M_OWN, 0))
    a(wait(lg=0))
    o += stamp(7)
    if cfg.stamps: a(raw("s_memrealtime s[86:87]", 'stampi'))
    return o

def store_tile_rows(Oreg, rinv, soff):
    o = []
    for db in range(4):
        b = Oreg + 16 * db
        for i in range(16): o.append(vmul(f"v{b+i}", f"v{rinv}", f"v{b+i}"))
        for m in range(8): o.append(cvtpk(f"v{b+m}", f"v{b+2*m}", f"v{b+2*m+1}"))
        for pr in range(2):
            r0 = b + 4 * pr
            o.append(swap32(f"v{r0}", f"v{r0+2}")); o.append(swap32(f"v{r0+1}", f"v{r0+3}"))
        for pr in range(2): o.append(vstore(('v', b + 4 * pr), 4, VQ, SO, soff, db * 64 + pr * 32))
    return o

def epilogue():
    o = []; a = o.append
    st = 7
    SF = cfg.store_flags
    for s in range(EXIT, 80):
        for d in MEM[s]:
            if d[0] == 'V' and d[1] == 3: a(mem_ins(st, s, d))
    MGR = ('MG', 0), 'mg', False
    wr = []
    if not cfg.inloop_merge:
        wr.append(I(f"ds_write_b32 v{VMLWB}, v{L_SH}", 'dsw', [f"v{VMLWB}", f"v{L_SH}"], [], reg=MGR))
        for q in range(16):
            db, g = divmod(q, 4)
            wr.append(dsw128(VMWB + g, ('a', O_SH + 16 * db + 4 * g), 128 * db, reg=MGR))
    adr = []; b_ = adr.append
    b_(V("v_lshrrev_b32", "v3", 4, f"v{VLIN}"))
    b_(V("v_lshrrev_b32", "v4", 4, "v3"))
    b_(V("v_and_b32", "v5", 3, "v3"))
    b_(V("v_lshlrev_b32", "v5", 1, "v5")); b_(V("v_xor_b32", "v5", "v5", "v4")); b_(V("v_lshlrev_b32", "v5", 4, "v5"))
    b_(V("v_bfe_u32", "v6", "v3", 2, 2)); b_(V("v_lshl_add_u32", "v5", "v6", 7, "v5"))
    b_(V("v_lshl_add_u32", "v5", "v4", 9, "v5"))
    a(S("s_lshl_b32", f"s{sT}", f"s{sW}", 12)); a(S("s_add_u32", f"s{sT}", f"s{sT}", LDS_MG))
    a(S("s_lshl_b32", f"s{sT+1}", f"s{sW}", 8)); a(S("s_add_u32", f"s{sT+1}", f"s{sT+1}", LDS_ML))
    A00, A01, A10, A11 = XT, XT + 1, XT + 2, XT + 3
    b_(V("v_add_u32", f"v{A00}", f"s{sT}", "v5")); b_(V("v_xor_b32", f"v{A01}", 16, f"v{A00}"))
    b_(V("v_xor_b32", f"v{A10}", 64, f"v{A00}")); b_(V("v_add_u32", f"v{A10}", 2048, f"v{A10}")); b_(V("v_xor_b32", f"v{A11}", 16, f"v{A10}"))
    b_(V("v_lshlrev_b32", "v4", 5, "v4")); b_(V("v_add_u32", "v4", f"s{sT+1}", "v4"))
    LR = CI_OWN
    def dst(x, u, e): return [SA, CI_SH, Q_OWN, Q_OWN + 16][x] + 8 * u + 4 * e
    rd = []
    for u in range(2):
        for e in range(2): rd.append(dsr128(('v', LR + 8 * u + 4 * e), 4, 128 * u + 16 * e, reg=MGR))
    for x in range(4):
        for u in range(2):
            for e in range(2): rd.append(dsr128(('v', dst(x, u, e)), [[A00, A01], [A10, A11]][u][e], 16384 * x, reg=MGR))
    valu = []
    for s in range(EXIT, 80):
        valu.append((s, [x for x in sm_ops(st, s) if not (set(x.w) | set(x.r)) & set(R('v', SA, 16) + [f"v{L_SH}"])]))
    pv = [mfma_at(st, 72 + i) for i in range(8)]
    if cfg.inloop_merge:
        o += adr; o += rd
        for s, ops in valu:
            o += ops
            if s == 67: a(wait(lg=15))
            if 67 <= s < 71: a(pv[s - 67])
        a(nop(1))
        for i in range(4, 8): a(pv[i])
    else:
        nw = 0
        for s, ops in valu:
            for _ in range(2):
                if nw < len(wr): a(wr[nw]); nw += 1
            o += ops
            if s == 67: a(wait(lg=10))
            if 67 <= s < 71: a(pv[s - 67])
        assert nw == len(wr)
        a(nop(1))
        for i in range(4, 8): a(pv[i]); o += adr[4 * (i - 4):4 * (i - 4) + 4]
        o += stamp(1, 2)
        a(wait(lg=0)); o += stamp(2, 2); a(barrier()); o += stamp(3, 2)
        o += adr[16:]
        o += rd
    a(vmov("v1", f"v{L_OWN}")); a(wait(lg=0)); o += stamp(4, 2); a(nop(0)); a(swap32(f"v{L_OWN}", "v1")); a(vadd(f"v{L_OWN}", f"v{L_OWN}", "v1"))
    for u in range(2):
        b = LR + 8 * u
        for k in range(4): a(vadd(f"v{b+k}", f"v{b+k}", f"v{b+4+k}"))
    for u in range(2):
        b = LR + 8 * u
        a(vadd(f"v{b}", f"v{b}", f"v{b+1}")); a(vadd(f"v{b+2}", f"v{b+2}", f"v{b+3}"))
    for u in range(2): a(vadd(f"v{LR+8*u}", f"v{LR+8*u}", f"v{LR+8*u+2}"))
    a(smov(f"s{sT}", hex(cfg.thresh)))
    a(vrcp("v5", f"v{L_OWN}")); a(vrcp("v6", f"v{LR}")); a(vrcp("v7", f"v{LR+8}"))
    a(vcmp("v_cmp_nle_f32", "s[52:53]", f"v{L_OWN}", f"s{sT}"))
    a(vcmp("v_cmp_nle_f32", "s[54:55]", f"v{LR}", f"s{sT}"))
    a(vcmp("v_cmp_nle_f32", "s[56:57]", f"v{LR+8}", f"s{sT}"))
    for x in range(1, 4):
        for i in range(16): a(vadd(f"v{SA+i}", f"v{SA+i}", f"v{dst(x,0,0)+i}"))
    a(raw("s_or_b64 s[54:55], s[54:55], s[56:57]", 'salu', ['s54', 's55', 's56', 's57'], ['s54', 's55', 'scc']))
    if cfg.force_slow:
        a(raw("s_mov_b64 s[54:55], -1", 'salu', [], ['s54', 's55'])); a(raw("s_mov_b64 s[52:53], -1", 'salu', [], ['s52', 's53']))
    for u in range(2):
        for i in range(8): a(vmul(f"v{SA+8*u+i}", f"v{6+u}", f"v{SA+8*u+i}"))
    for m in range(8): a(cvtpk(f"v{SA+m}", f"v{SA+2*m}", f"v{SA+2*m+1}"))
    a(scmp("s_cmp_lg_u64", "s[54:55]", 0))
    a(S("s_lshl_b32", f"s{sT+1}", f"s{sW}", 11, w_scc=False) if False else raw(f"s_lshl_b32 s{sT+1}, s{sW}, 11", 'salu', [f"s{sW}"], [f"s{sT+1}"]) if False else nop(0))
    a(branch("s_cbranch_scc1", "L_skip_sh", ['scc']))
    a(S("s_lshl_b32", f"s{sT+1}", f"s{sW}", 11)); a(S("s_add_u32", f"s{sT+1}", f"s{sT+1}", 32768))
    for u in range(2): a(vstore(('v', SA + 4 * u), 4, VLIN, SO, f"s{sT+1}", 1024 * u, SF))
    a(label("L_skip_sh"))
    o += stamp(5, 2)
    a(scmp("s_cmp_lg_u64", "s[52:53]", 0))
    a(branch("s_cbranch_scc1", "L_skip_own", ['scc']))
    a(scmp("s_cmp_eq_u32", f"s{sW}", 3))
    a(S("s_mul_i32", f"s{sT}", f"s{sW}", 8704, w_scc=False))
    a(S("s_cselect_b32", f"s{sT}", LDS_V0 + 2048, f"s{sT}", w_scc=False, r_scc=True))
    a(V("v_lshrrev_b32", "v1", 8, f"v{VQ}")); a(V("v_bfe_u32", "v2", f"v{VQ}", 4, 1))
    a(V("v_mul_u32_u24", "v1", 272, "v1")); a(V("v_lshl_add_u32", "v1", "v2", 3, "v1")); a(V("v_add_u32", "v1", f"s{sT}", "v1"))
    a(V("v_lshrrev_b32", "v2", 8, f"v{VLIN}")); a(V("v_lshl_add_u32", "v2", "v2", 4, f"v{VLIN}")); a(V("v_add_u32", "v2", f"s{sT}", "v2"))
    for db in range(4):
        b = O_OWN + 16 * db
        for i in range(16): a(vmul(f"v{b+i}", "v5", f"v{b+i}"))
        for m in range(8): a(cvtpk(f"v{b+m}", f"v{b+2*m}", f"v{b+2*m+1}"))
        for g in range(4): a(dsw64(1, ('v', b + 2 * g), db * 64 + g * 16, reg=(('OT', 0), 'ot', True)))
    a(S("s_add_u32", f"s{sT+1}", f"s{sW8192}", 4096))
    o += stamp(6, 2)
    a(wait(lg=0))
    o += stamp(7, 2)
    for n in range(8): a(dsr128(('v', SA + 4 * n), 2, 1088 * n, reg=(('OT', 0), 'ot', True)))
    for n in range(8):
        a(wait(lg=7 - n))
        a(vstore(('v', SA + 4 * n), 4, VLIN, SO, f"s{sW8192 if n < 4 else sT+1}", 1024 * (n % 4), SF))
    a(label("L_skip_own"))
    o += stamp(9)
    a(raw("s_or_b64 s[56:57], s[52:53], s[54:55]", 'salu', ['s52', 's53', 's54', 's55'], ['s56', 's57', 'scc']))
    a(branch("s_cbranch_scc1", "L_slow", ['scc']))
    return o

def slow_path():
    o = []; a = o.append
    Kr, Sr, Vr, Or = 80, 112, 128, O_OWN
    mreg, lreg = M_OWN, L_OWN
    a(label("L_slow"))
    a(wait(vm=0, lg=0))
    a(scmp("s_cmp_lg_u64", "s[52:53]", 0)); a(branch("s_cbranch_scc0", "L_slow_sh", ['scc']))
    a(smov("s33", f"s{sW8192}"))
    a(raw("s_mov_b64 s[52:53], 0", 'salu', [], ['s52', 's53']))
    a(raw("s_mov_b64 s[56:57], -1", 'salu', [], ['s56', 's57']))
    a(branch("s_branch", "L_slow_tile"))
    a(label("L_slow_sh"))
    a(scmp("s_cmp_lg_u64", "s[54:55]", 0)); a(branch("s_cbranch_scc0", "L_end", ['scc']))
    a(smov("s33", 32768))
    a(raw("s_mov_b64 s[54:55], 0", 'salu', [], ['s54', 's55']))
    a(S("s_lshl_b32", "s34", f"s{sW}", 3)); a(S("s_lshl_b32", "s56", "0xff", "s34")); a(smov("s57", "s56"))
    a(label("L_slow_tile"))
    for j in range(8): a(vload(('v', Q_OWN + 4 * j), 4, VQ, SQ, "s33", 32 * j))
    a(wait(vm=0))
    for g in range(8): o.extend(scale4(Q_OWN + 4 * g, 240, pk=False))
    a(vmov(f"v{mreg}", "0xff800000"))
    def qk():
        for j in range(8): a(vload(('v', Kr + 4 * j), 4, VQ, SK, "s34", 32 * j))
        a(wait(vm=0))
        for j in range(8): a(mfma(('v', Sr), ('v', Kr + 4 * j), ('v', Q_OWN + 4 * j), 0 if j == 0 else ('v', Sr)))
        a(nop(15))
    a(smov("s34", 0))
    a(label("L_slow_p1"))
    qk()
    for i in range(16): a(V("v_max_f32", f"v{mreg}", f"v{mreg}", f"v{Sr+i}"))
    a(S("s_add_u32", "s34", "s34", 8192)); a(scmp("s_cmp_lt_u32", "s34", 262144)); a(branch("s_cbranch_scc1", "L_slow_p1", ['scc']))
    a(vmov("v1", f"v{mreg}")); a(nop(1)); a(swap32(f"v{mreg}", "v1")); a(V("v_max_f32", f"v{mreg}", f"v{mreg}", "v1"))
    a(vmov(f"v{lreg}", 0))
    for i in range(64): a(vmov(f"v{Or+i}", 0))
    a(V("v_lshrrev_b32", "v2", 8, f"v{VQ}"))
    a(V("v_bfe_u32", "v3", f"v{VQ}", 4, 1))
    a(V("v_lshlrev_b32", "v2", 1, "v2")); a(V("v_lshl_add_u32", "v2", "v3", 10, "v2"))
    a(smov("s34", 0))
    a(label("L_slow_p2"))
    qk()
    for i in range(16): a(V("v_sub_f32", f"v{Sr+i}", f"v{Sr+i}", f"v{mreg}"))
    for i in range(16): a(vexp(f"v{Sr+i}", f"v{Sr+i}"))
    a(nop(0))
    for i in range(16): a(vadd(f"v{lreg}", f"v{lreg}", f"v{Sr+i}"))
    for m in range(8): a(cvtpk(f"v{P+m}", f"v{Sr+2*m}", f"v{Sr+2*m+1}"))
    for ks in range(2):
        a(S("s_add_u32", "s35", "s34", ks * 4096))
        for db in range(4):
            for r in range(4):
                for e in range(2):
                    j = 2 * r + e
                    off = (8 * (j // 4) + j % 4) * 256 + db * 64
                    a(vload(('v', Kr + 8 * db + 2 * r + e), 1, 2, SV, "s35", off, op="buffer_load_ushort"))
        a(wait(vm=0))
        for db in range(4):
            for r in range(4): a(V("v_lshl_or_b32", f"v{Vr+4*db+r}", f"v{Kr+8*db+2*r+1}", 16, f"v{Kr+8*db+2*r}"))
        a(nop(1))
        for db in range(4): a(mfma(('v', Or + 16 * db), ('v', Vr + 4 * db), ('v', P + 4 * ks), ('v', Or + 16 * db)))
        a(nop(7))
    a(S("s_add_u32", "s34", "s34", 8192)); a(scmp("s_cmp_lt_u32", "s34", 262144)); a(branch("s_cbranch_scc1", "L_slow_p2", ['scc']))
    a(nop(15))
    a(vmov("v1", f"v{lreg}")); a(nop(1)); a(swap32(f"v{lreg}", "v1")); a(vadd(f"v{lreg}", f"v{lreg}", "v1"))
    a(vrcp("v5", f"v{lreg}")); a(nop(0))
    body = store_tile_rows(Or, 5, "s33")
    for x in body:
        if x.k == 'vstore':
            a(raw("s_mov_b64 exec, s[56:57]", 'salu', ['s56', 's57'], ['exec'])); a(x); a(raw("s_mov_b64 exec, -1", 'salu', [], ['exec'])); a(nop(1))
        else: a(x)
    a(wait(vm=0))
    a(branch("s_branch", "L_slow_sh"))
    return o

def stamp_out():
    o = []
    if not cfg.stamps: return o
    a = o.append
    a(raw("s_waitcnt vmcnt(0)", 'wait', vm=0)); o += [raw("s_memtime s[80:81]", 'stampi'), raw("s_memrealtime s[84:85]", 'stampi')]
    a(raw("s_waitcnt lgkmcnt(0)", 'wait', lg=0))
    if cfg.stamp_wg >= 0:
        a(scmp("s_cmp_lg_u32", "s2", cfg.stamp_wg)); a(branch("s_cbranch_scc1", "L_end", ['scc']))
        a(scmp("s_cmp_lg_u32", f"s{sW}", 0)); a(branch("s_cbranch_scc1", "L_end", ['scc']))
        a(vmov("v1", 0))
    else:
        a(raw("s_load_dwordx2 s[58:59], s[0:1], 40", 'smem', [], R('s', 58, 2))); a(wait(lg=0))
        a(S("s_lshl_b32", "s33", "s2", 2)); a(S("s_add_u32", "s33", "s33", f"s{sW}")); a(S("s_lshl_b32", "s33", "s33", 6))
        a(vmov("v1", "s33"))
    def put(off, x, y):
        if y is None: a(vmov("v2", x))
        else:
            a(S("s_sub_u32", "s33", x, y)); a(vmov("v2", "s33"))
        a(raw(f"global_store_dword v1, v2, s[58:59] offset:{off}", 'vstore', ['v1', 'v2', 's58', 's59'], [], data=['v2']))
        a(nop(1))
    for i in range(11): put(4 * i, f"s{60+2*i}", "s60")
    put(44, "s84", "s82"); put(48, "s86", "s82"); put(52, "s88", "s82"); put(56, "s82", None)
    return o

def build():
    global MEM, MGW, LGW
    MEM, MGW = build_mem_schedule()
    LGW = compute_lgkm_waits()
    pro = prologue()
    body = body_iter(0)
    epi = epilogue()
    slow = slow_path()
    static = pro + [raw(".p2align 6", 'label'), label("L_loop")] + body + [label("L_exit")] + stamp(8) + \
             ([raw("s_memrealtime s[88:89]", 'stampi')] if cfg.stamps else []) + epi + stamp_out() + \
             [label("L_end"), raw("s_endpgm", 'branch')] + slow
    trace = list(pro)
    for it in range(4):
        b = body_iter(2 * it, last=(it == 3))
        assert [x.t for x in b] == [x.t for x in body[:len(b)]], "loop body is not periodic"
        trace += b
    trace += epi
    errs = verify(trace, "main")
    errs += verify(slow, "slow", check_lds=False)
    return static, errs, (pro, body, epi)

HEADER = """; Kernarg layout for this problem (48 bytes, ptrs only, base s[0:1]):
; One workgroup per (batch, q-head): 4 waves, wave w owns q rows 32w..32w+31 against all keys and
; @launch grid=(256,1,1) block=(256,1,1) lds=163840
.amdgcn_target "amdgcn-amd-amdhsa--gfx950"
.text
.globl {n}_kernel
.p2align 8
.type {n}_kernel,@function
{n}_kernel:
"""
FOOTER = """
.section .rodata,"a"
.p2align 6
.amdhsa_kernel {n}_kernel
  .amdhsa_next_free_vgpr 512
  .amdhsa_next_free_sgpr 96
  .amdhsa_accum_offset 256
  .amdhsa_group_segment_fixed_size 0
  .amdhsa_kernarg_size 48
  .amdhsa_user_sgpr_count 2
  .amdhsa_user_sgpr_kernarg_segment_ptr 1
  .amdhsa_system_sgpr_workgroup_id_x 1
.end_amdhsa_kernel
"""

def main(argv=None):
    ap = argparse.ArgumentParser()
    ap.add_argument("-o", default="cdna_kernels/%s.s" % NAME)
    ap.add_argument("--stamps", action="store_true")
    ap.add_argument("--stamp-wg", type=int, default=0)
    ap.add_argument("--force-slow", action="store_true")
    ap.add_argument("--thresh", default=None)
    ap.add_argument("--store-flags", default="nt")
    ap.add_argument("--show", action="store_true")
    ap.add_argument("--qsplit", type=int, default=8)
    ap.add_argument("--ld", default="nt"); ap.add_argument("--qld", default="nt"); ap.add_argument("--pfld", default="nt")
    ap.add_argument("--no-pf", action="store_true")
    ap.add_argument("--fine", type=int, default=0)
    ap.add_argument("--inloop-merge", action="store_true")
    args = ap.parse_args(argv)
    cfg.stamps = args.stamps; cfg.stamp_wg = args.stamp_wg; cfg.force_slow = args.force_slow; cfg.store_flags = args.store_flags
    cfg.qsplit = args.qsplit
    cfg.pf = False; cfg.ld = args.ld; cfg.qld = args.qld; cfg.pfld = args.pfld
    cfg.inloop_merge = args.inloop_merge; cfg.fine = args.fine
    if args.thresh: cfg.thresh = int(args.thresh, 0)
    static, errs, parts = build()
    if args.show:
        for s in range(80):
            print(s, "cvt" if has_cvt(s) else "   ", LGW[(0, s)], LGW[(1, s)], MEM[s], MGW.get(s, ""))
    for e in errs[:40]: print("ERR", e)
    cnt = lambda L: sum(1 for x in L if x.k != 'label')
    print("errors:", len(errs), " instructions:", cnt(static), " pro/body/epi:", [cnt(p) for p in parts])
    open(args.o, "w").write(HEADER.format(n=NAME) + text_of(static) + FOOTER.format(n=NAME))

if __name__ == "__main__": main()
```

```python
import sys, argparse, re
from asmlib import *

NAME = "standalone__gqa_softmax__near_ridge"

class Cfg:
    E0 = 10
    LEAD = 4
    LAG = 3
    thresh = 0x4b800000
    stamps = False; stamp_wg = 0; fine = 0
    force_slow = False
    store_flags = "nt"; ld = "nt"; qld = "nt"
    qsplit = 2
    sched = "balanced"
    inc_slot = 16
    pw64 = False
    pw64_addr = 10
    wr_slots = (36, 38, 40, 42, 43)
    drop = ()
    dk_slots = (49, 51, 53, 55, 57, 59, 61, 63)
    dv_slots = (73, 75, 77, 79, 81, 83, 85, 87)
cfg = Cfg()

L_OWN, L_SH, PXW, MLW = 8, 9, 10, 11
KDMA = 12
VDMA, VHALF, VQ, VLIN = 16, 17, 18, 19
M_SH, MXW, MXR = 20, 22, 23
M_OWN = 80
PS = (0, 20)
PXR = 4
KADDR = 24
VADDR = 56
P = 72
SA, SB = 80, 96
CI_OWN, CI_SH = 112, 128
Q_OWN = 144
O_OWN = 176
O_SH = 240
Q_SH, KF, VF0, VFP, PSH = 0, 32, 64, 96, 120
def vf(i, ks, p): return VF0 + 8 * i + 4 * ks if p == 0 else VFP + 12 * ks + 4 * (p - 1)
def psh(i, ks): return PSH + 8 * i + 4 * ks
sW, SQ, SK, SV, SO = 3, 8, 12, 16, 20
sW8192, sOff0, sOff1, sC, sMask = 24, 25, 26, 27, 28
sT = 29
sKill = 34
sM0 = 44
sC2 = 52
sQS, sQO1 = 54, 55
SCALE_BITS = 0x3e0293ee
LDS_K1, LDS_K0, LDS_X, LDS_V0, LDS_V1 = 0, 32768, 65536, 98304, 131072
LDS_PX = LDS_X
LDS_ML = LDS_X + 16384
LDS_QS = LDS_V1
LDS_MX = LDS_V1 + 8192
DROP = 0x30000
def koff(buf): return LDS_K0 if buf == 0 else LDS_K1
def Sbuf(par): return SA if par == 0 else SB

def mfma_at(step, slot):
    W, k = divmod(slot, 16)
    if k < 8:
        u = W + 1; st = step
        if u == 5: u = 0; st = step + 1
        S_ = Sbuf((st + u) % 2)
        sh = (u == 0)
        B = ('a', Q_SH + 4 * k) if sh else ('v', Q_OWN + 4 * k)
        C = ('v', CI_SH if sh else CI_OWN) if k == 0 else ('v', S_)
        return mfma(('v', S_), ('a', KF + 4 * k), B, C)
    idx = k - 8
    if W == 0:
        i, ks = divmod(idx, 2)
        return mfma(('v', O_SH), ('a', vf(i, ks, 0)), ('a', psh(i, ks)), ('v', O_SH))
    ks, p = divmod(idx, 4)
    O = ('v', O_OWN + 16 * p)
    return mfma(O, ('a', vf(W - 1, ks, p)), ('v', P + 4 * ks), O)

def sm_ops(step, slot):
    ops = []
    for st, i in [(step, j) for j in range(5)] + [(step + 1, 0), (step - 1, 4)]:
        rel = slot + 80 * (step - st) - 16 * (i - 1) - cfg.E0
        S_ = Sbuf((st + i) % 2); Lr = L_SH if i == 0 else L_OWN
        if 0 <= rel < 16: ops.append((0, vexp(f"v{S_+rel}", f"v{S_+rel}")))
        if 0 <= rel - 1 < 16: ops.append((1, vadd(f"v{Lr}", f"v{Lr}", f"v{S_+rel-1}")))
        if rel >= 2 and rel % 2 == 0 and rel <= 16:
            m = (rel - 2) // 2
            dst = (PS[m // 4] + m % 4) if i == 0 else P + m
            ops.append((2, cvtpk(f"v{dst}", f"v{S_+2*m}", f"v{S_+2*m+1}")))
    ops.sort(key=lambda x: x[0])
    return [o for _, o in ops]

def has_cvt(slot): return (slot - cfg.E0) % 2 == 0
B1, B2 = 47, 71

def build_mem_schedule():
    ops = []
    L = cfg.LEAD; E0 = cfg.E0
    def add(d, e, l):
        assert e <= l, (d, e, l)
        ops.append([d, e, l])
    for j in range(8):
        add(('K', 0, j), 48 + j, 64 + j - L)
        add(('K', 1, j), 80 + j, 96 + j - L)
        add(('K', 2, j), 96 + j, 112 + j - L)
        add(('K', 3, j), 112 + j, min(128 + j - L, 80 + B1 - L))
    for i in range(4):
        for idx in range(8):
            ks, p = divmod(idx, 4)
            use = 16 * (i + 1) + 8 + idx
            late = use - L if i < 3 else min(use - L, B2 - L)
            if p == 0: early = 8 + 2 * i + ks
            else: early = use - 16 if i > 0 else (72 + idx - 80)
            for hh in range(2): add(('V', i, idx, hh), early + 80, late + 80)
    fixedw = [('PW', 0, 0), ('PW', 0, 1), ('PW', 1, 0), ('PW', 1, 1), ('LW',)]
    pw_late = cfg.wr_slots[0] > B1
    for i in range(4):
        for ks in range(2): add(('PR', i, ks), (B2 + 1) if pw_late else 48, 80 + 8 + 2 * i + ks - L)
    sched = {s: [] for s in range(80)}
    for n, sl in enumerate(cfg.dk_slots): sched[sl % 80].append(('DK', n))
    for n, sl in enumerate(cfg.dv_slots): sched[sl % 80].append(('DV', n))
    for d, sl in zip(fixedw, cfg.wr_slots): sched[sl % 80].append(d)
    def soft(s):
        c = 1.0 if has_cvt(s) else 2.0
        if s in (B1, B2): c -= 0.9
        return c
    def hard(s): return (2 if has_cvt(s) else 3) - (1 if s in (B1, B2) else 0)
    ops.sort(key=lambda o: (o[2] - o[1], o[2]))
    when = {}
    if cfg.sched == "edf": ops.sort(key=lambda o: (o[2], o[1]))
    for d, e, l in ops:
        best = None
        for t in range(e, l + 1):
            n = len(sched[t % 80])
            if n >= hard(t % 80): continue
            c = (n + 1) / soft(t % 80)
            if cfg.sched == "edf": c = 0 if c <= 1.0 else c
            if best is None or c < best[0] - 1e-9: best = (c, t)
        if best is None: raise Exception(f"cannot place {d} in [{e},{l}]")
        sched[best[1] % 80].append(d); when[d] = best[1]
    dl = {tuple(o[0]): o[2] for o in ops}
    for s in sched:
        sched[s].sort(key=lambda d: (1, 0) if d[0] in ('DK', 'DV', 'PW', 'LW') else (0, (dl[d] - s) % 80))
    return sched

MEM = LGW = None

def mem_ins(step, slot, d):
    if d[0] == 'K':
        _, tp, j = d
        cs = step + 1 if tp == 0 else step
        buf = cs % 2
        return dsr128(('a', KF + 4 * j), KADDR + 8 * tp + j, koff(buf), reg=(('K', buf), cs, tp == 0) if cs < 8 else None)
    if d[0] == 'V':
        _, i, idx, hh = d
        ks, p = divmod(idx, 4)
        cs = step + 1 if (i == 0 and slot >= 64) else step
        buf = cs % 2
        return dstr(('a', vf(i, ks, p) + 2 * hh), VADDR + 4 * i + p, buf * 32768 + ks * 4096 + hh * 2048,
                    reg=(('V', buf), cs, i == 0) if cs < 8 else None)
    if d[0] == 'PW':
        _, ks, h = d
        return dsw64(PXW, ('v', PS[ks] + 2 * h), (step % 2) * 8192 + ks * 1024 + h * 512, reg=(('PX', step % 2), step, True))
    if d[0] == 'PR':
        _, i, ks = d
        cs = step if slot >= 48 else step - 1
        o0 = 16 * (cs % 2) + 2 * ks
        return dsr2st64_64(('a', psh(i, ks)), PXR + i, o0, o0 + 1, reg=(('PX', cs % 2), cs, i == 0) if cs >= 0 else None)
    if d[0] == 'LW':
        return I(f"ds_write_b32 v{MLW}, v{L_SH}", 'dsw', [f"v{MLW}", f"v{L_SH}"], [], reg=(('ML', 0), 'ml', False) if step == 7 else None, fence=True)
    if d[0] == 'DK':
        n = d[1]; cs = step + 2; buf = cs % 2
        return dma(KDMA + n % 4, SK, f"s{sOff0 if n < 4 else sOff1}", 1024 * (n % 4), reg=(('K', buf), cs, True) if cs < 8 else None, flags=cfg.ld)
    if d[0] == 'DV':
        n = d[1]; cs = step + 2 if slot >= 64 else step + 1; buf = cs % 2
        return dma(VDMA, SV, f"s{sOff0 if n < 4 else sOff1}", 1024 * (n % 4), reg=(('V', buf), cs, True) if cs < 8 else None, flags=cfg.ld)

def m0_val_reg(kv, buf, grp): return sM0 + (0 if kv == 'K' else 4) + 2 * buf + grp

def scalar_ops(step, slot):
    o = []
    def m0(kv, buf, grp): return S("s_max_u32", "m0", f"s{m0_val_reg(kv, buf, grp)}", f"s{sKill}")
    dk, dv = [x % 80 for x in cfg.dk_slots], [x % 80 for x in cfg.dv_slots]
    if slot == dk[0] - 1: o.append(m0('K', step % 2, 0))
    if slot == dk[4] - 1: o.append(m0('K', step % 2, 1))
    if slot == dv[0] - 1: o.append(m0('V', (step if slot >= 64 else step + 1) % 2, 0))
    if slot == dv[4] - 1: o.append(m0('V', (step if slot >= 64 else step + 1) % 2, 1))
    x = cfg.inc_slot
    if slot == x: o.append(S("s_add_u32", f"s{sOff0}", f"s{sOff0}", "0x8000"))
    if slot == x + 2: o.append(S("s_add_u32", f"s{sOff1}", f"s{sOff1}", "0x8000"))
    if slot == x + 4: o.append(scmp("s_cmp_ge_u32", f"s{sOff0}", "0x40000"))
    if slot == x + 5: o.append(S("s_cselect_b32", f"s{sKill}", hex(DROP), 0, w_scc=False, r_scc=True))
    return o

def expand(x):
    if cfg.pw64 and x.k == 'dsw' and 'ds_write_b128' in x.t:
        m = re.match(r"ds_write_b128 v(\d+), v\[(\d+):(\d+)\](?: offset:(\d+))?", x.t)
        ad, r0, off = int(m.group(1)), int(m.group(2)), int(m.group(4) or 0)
        o = []
        for h in range(2):
            y = dsw64(cfg.pw64_addr, ('v', r0 + 2 * h), off + 512 * h, reg=x.x.get('reg')); y.x['fence'] = True
            o.append(y)
        return o
    return [x]
def gap_mem(step, slot): return [y for d in MEM[slot] if d[0] not in cfg.drop for y in [mem_ins(step, slot, d)]]

def compute_lgkm_waits():
    seq = []; prod = {}; covered = -1; res = {}
    for t in range(0, 480):
        st, sl = divmod(t, 80)
        nst, nsl = divmod(t + 1, 80)
        nm = mfma_at(nst, nsl)
        need = max([prod.get(r, -1) for r in nm.x['AB']] + [-1])
        if sl == B1: need = max([need] + [i for i, (tt, d) in enumerate(seq) if d in ('K', 'PW', 'LW')])
        if sl == B2: need = max([need] + [i for i, (tt, d) in enumerate(seq) if d in ('V', 'PW')])
        n = None
        if need > covered:
            tgt = need
            for i in range(len(seq) - 1, -1, -1):
                if seq[i][0] <= t - cfg.LAG: tgt = max(tgt, i); break
            n = len(seq) - 1 - tgt
            if n > 15: tgt = len(seq) - 1 - 15; n = 15
            covered = tgt
        res[(st, sl)] = n
        for d in MEM[sl]:
            if d[0] in ('DK', 'DV') or d[0] in cfg.drop: continue
            for ins in [mem_ins(2 + st % 2, sl, d)]:
                seq.append((t, d[0]))
                for r in ins.w: prod[r] = len(seq) - 1
    out = {}
    for sl in range(80):
        assert len({res[(s, sl)] for s in range(2, 6)}) == 1
        out[sl] = res[(4, sl)]
    return out

def gap(step, slot, part='all', nomfma=False):
    head, rest = [], []
    if not nomfma: head.append(mfma_at(step, slot))
    n = LGW[slot]
    if slot == B1 or slot == B2:
        head.append(wait(vm=8, lg=n)); head.append(barrier())
    elif n is not None: head.append(wait(lg=n))
    head += scalar_ops(step, slot)
    rest += gap_mem(step, slot)
    rest += sm_ops(step, slot)
    return head if part == 'head' else rest if part == 'rest' else head + rest

ENTRY = 15
EXIT = 63

def body_iter(st0, last=False):
    o = []
    o += gap(st0, ENTRY, 'rest')
    for s in range(ENTRY + 1, 80): o += gap(st0, s)
    for s in range(0, EXIT):
        g = gap(st0 + 1, s)
        if s == EXIT - 3:
            g = gap(st0 + 1, s, 'head') + [scmp("s_cmp_eq_u32", f"s{sOff0}", hex(9 * 32768))] + gap(st0 + 1, s, 'rest')
        o += g
    o += gap(st0 + 1, EXIT, 'head') + [branch("s_cbranch_scc1", "L_exit", ['scc'])]
    if last: return o
    o += gap(st0 + 1, EXIT, 'rest')
    for s in range(EXIT + 1, 80): o += gap(st0 + 1, s)
    for s in range(0, ENTRY): o += gap(st0 + 2, s)
    o += gap(st0 + 2, ENTRY, 'head') + [branch("s_branch", "L_loop")]
    return o

def scale4(src, tmp, pk=False):
    o = []
    for i in range(4): o.append(V("v_lshlrev_b32", f"v{tmp+2*i}", 16, f"v{src+i}"))
    for i in range(4): o.append(V("v_and_b32", f"v{tmp+2*i+1}", f"s{sMask}", f"v{src+i}"))
    if pk:
        for i in range(4): o.append(V("v_pk_mul_f32", f"v[{tmp+2*i}:{tmp+2*i+1}]", f"v[{tmp+2*i}:{tmp+2*i+1}]", f"s[{sC2}:{sC2+1}]"))
    else:
        for i in range(4): o.append(vmul(f"v{tmp+2*i}", f"s{sC}", f"v{tmp+2*i}"))
        for i in range(4): o.append(vmul(f"v{tmp+2*i+1}", f"s{sC}", f"v{tmp+2*i+1}"))
    for i in range(4): o.append(cvtpk(f"v{src+i}", f"v{tmp+2*i}", f"v{tmp+2*i+1}"))
    return o

def rowmax(Sb, mreg, t0, t1):
    o = []
    o.append(V("v_max3_f32", f"v{t0}", f"v{Sb}", f"v{Sb+1}", f"v{Sb+2}"))
    o.append(V("v_max3_f32", f"v{t1}", f"v{Sb+3}", f"v{Sb+4}", f"v{Sb+5}"))
    o.append(V("v_max3_f32", f"v{t0}", f"v{t0}", f"v{Sb+6}", f"v{Sb+7}"))
    o.append(V("v_max3_f32", f"v{t1}", f"v{t1}", f"v{Sb+8}", f"v{Sb+9}"))
    o.append(V("v_max3_f32", f"v{t0}", f"v{t0}", f"v{Sb+10}", f"v{Sb+11}"))
    o.append(V("v_max3_f32", f"v{t1}", f"v{t1}", f"v{Sb+12}", f"v{Sb+13}"))
    o.append(V("v_max3_f32", f"v{t0}", f"v{t0}", f"v{Sb+14}", f"v{Sb+15}"))
    o.append(V("v_max_f32", f"v{t0}", f"v{t0}", f"v{t1}"))
    o.append(vmov(f"v{t1}", f"v{t0}"))
    o.append(nop(1))
    o.append(swap32(f"v{t0}", f"v{t1}"))
    o.append(V("v_max_f32", f"v{mreg}", f"v{t0}", f"v{t1}"))
    return o

def stamp(idx, fine=0):
    if not cfg.stamps: return []
    if cfg.fine != fine and idx not in (0, 8, 9): return []
    return [raw(f"s_memtime s[{60+2*idx}:{61+2*idx}]", 'stampi')]

def prologue():
    o = []
    vmlist = []
    def a(x, tag=None):
        o.append(x)
        if x.k in ('vload', 'dma', 'vstore'): vmlist.append(tag)
    def wait_for(tag):
        last = max(i for i, t in enumerate(vmlist) if t == tag)
        return wait(vm=len(vmlist) - 1 - last)
    a(scmp("s_cmp_ge_u32", "s2", 256)); a(branch("s_cbranch_scc1", "L_end", ['scc']))
    a(raw("s_load_dwordx4 s[36:39], s[0:1], 0", 'smem', [], R('s', 36, 4)))
    a(raw("s_load_dwordx4 s[40:43], s[0:1], 16", 'smem', [], R('s', 40, 4)))
    if cfg.stamps:
        a(raw("s_load_dwordx2 s[58:59], s[0:1], 32", 'smem', [], R('s', 58, 2)))
        o += stamp(0)
        a(raw("s_memrealtime s[82:83]", 'stampi'))
    a(V("v_lshrrev_b32", "v1", 6, "v0"))
    a(V("v_and_b32", "v2", 63, "v0"))
    a(readfirst(f"s{sW}", "v1"))
    a(V("v_lshrrev_b32", "v3", 4, "v2"))
    a(V("v_and_b32", "v4", 15, "v2"))
    a(V("v_lshlrev_b32", f"v{VLIN}", 4, "v2"))
    a(S("s_and_b32", f"s{sT}", "s2", 7))
    a(S("s_lshr_b32", f"s{sT+1}", "s2", 3))
    a(S("s_lshr_b32", f"s{sT+2}", "s2", 5))
    a(S("s_lshl_b32", f"s{sW8192}", f"s{sW}", 13))
    a(S("s_lshl_b32", f"s{sT+3}", f"s{sT}", 5)); a(S("s_add_u32", f"s{sT+3}", f"s{sT+3}", f"s{sT+1}"))
    a(S("s_mul_i32", f"s{sT+3}", f"s{sT+3}", 40960, w_scc=False))
    a(S("s_lshl_b32", f"s{sT+4}", f"s{sT}", 3)); a(S("s_add_u32", f"s{sT+4}", f"s{sT+4}", f"s{sT+2}"))
    a(S("s_lshl_b32", f"s{sT+4}", f"s{sT+4}", 18))
    a(V("v_xor_b32", "v7", "v3", "v4"))
    a(V("v_lshlrev_b32", "v7", 4, "v7")); a(V("v_lshl_add_u32", "v7", "v3", 8, "v7"))
    a(V("v_add_u32", f"v{KDMA}", f"s{sW8192}", "v7"))
    for k in range(1, 4): a(V("v_xor_b32", f"v{KDMA+k}", 64 * k, f"v{KDMA}"))
    a(S("s_lshl_b32", f"s{sQS}", f"s{sW}", 11)); a(S("s_add_u32", f"s{sQS}", f"s{sQS}", 32768))
    a(S("s_add_u32", f"s{sQO1}", f"s{sW8192}", 4096))
    a(smov(f"s{sOff0}", 0)); a(smov(f"s{sOff1}", 4096))
    a(S("s_add_u32", "m0", f"s{sW8192}", LDS_K0))
    QW = CI_SH + 8
    MXV = CI_SH + 10
    TS = CI_SH
    TW = SB + 8
    TR = SB
    for e in range(2):
        a(S("s_lshl_b32", f"s{sT}", f"s{sW}", 1)); a(S("s_add_u32", f"s{sT}", f"s{sT}", e))
        a(S("s_and_b32", f"s{sT+1}", f"s{sT}", 3)); a(S("s_lshl_b32", f"s{sT+1}", f"s{sT+1}", 6))
        a(S("s_lshl_b32", f"s{sT}", f"s{sT}", 10)); a(S("s_add_u32", f"s{sT}", f"s{sT}", LDS_QS))
        a(V("v_xor_b32", f"v{QW+e}", f"s{sT+1}", "v7")); a(V("v_add_u32", f"v{QW+e}", f"s{sT}", f"v{QW+e}"))
    a(V("v_and_b32", "v5", 31, "v2")); a(V("v_lshrrev_b32", "v6", 5, "v2"))
    a(V("v_and_b32", "v7", 15, "v5")); a(V("v_xor_b32", "v7", "v7", "v6"))
    a(V("v_lshlrev_b32", "v7", 4, "v7")); a(V("v_lshl_add_u32", "v7", "v5", 8, "v7"))
    a(V("v_add_u32", f"v{TS}", LDS_QS, "v7"))
    for j in range(1, 8): a(V("v_xor_b32", f"v{TS+j}", 32 * j, f"v{TS}"))
    a(V("v_add_u32", f"v{KADDR}", f"s{sW8192}", "v7"))
    for j in range(1, 8): a(V("v_xor_b32", f"v{KADDR+j}", 32 * j, f"v{KADDR}"))
    a(smov(f"s{sC}", hex(SCALE_BITS))); a(smov(f"s{sMask}", "0xffff0000"))
    a(smov(f"s{sC2}", hex(SCALE_BITS))); a(smov(f"s{sC2+1}", hex(SCALE_BITS)))
    a(wait(lg=0))
    def srd(base, p, off, n):
        a(S("s_add_u32", f"s{base}", f"s{p}", f"s{off}")); a(S("s_addc_u32", f"s{base+1}", f"s{p+1}", 0, r_scc=True))
        a(S("s_and_b32", f"s{base+1}", f"s{base+1}", "0xffff"))
        a(smov(f"s{base+2}", n)); a(smov(f"s{base+3}", "0x20000"))
    o += stamp(1, 1)
    srd(SQ, 36, sT + 3, 40960)
    for e in range(2): a(vload(('v', SA + 4 * e), 4, VLIN, SQ, f"s{sQS}", 1024 * e, cfg.qld), "QS")
    srd(SK, 38, sT + 4, 262144)
    for n in range(4): a(dma(KDMA + n, SK, f"s{sOff0}", 1024 * n, reg=(('K', 0), 0, True), flags=cfg.ld), "K0")
    a(S("s_add_u32", "m0", f"s{sW8192}", LDS_K0 + 4096)); a(nop(0))
    for n in range(4): a(dma(KDMA + n, SK, f"s{sOff1}", 1024 * n, reg=(('K', 0), 0, True), flags=cfg.ld), "K0")
    o += stamp(2, 1)
    def qown(n0, n1):
        for n in range(n0, n1): a(vload(('v', Q_OWN + 4 * n), 4, VLIN, SQ, f"s{sW8192 if n < 4 else sQO1}", 1024 * (n % 4), cfg.qld), f"QO{n}")
    qown(0, cfg.qsplit)
    o += stamp(1); o += stamp(3, 1)
    srd(SV, 40, sT + 4, 262144)
    srd(SO, 42, sT + 3, 40960)
    a(V("v_lshlrev_b32", "v1", 2, "v3")); a(V("v_xor_b32", "v1", "v1", "v4"))
    a(V("v_lshlrev_b32", "v1", 4, "v1")); a(V("v_lshl_add_u32", "v1", "v3", 8, "v1"))
    a(V("v_add_u32", f"v{VDMA}", f"s{sW8192}", "v1"))
    for i in range(1, 4):
        a(S("s_add_u32", f"s{sT+i}", f"s{sW}", i)); a(S("s_and_b32", f"s{sT+i}", f"s{sT+i}", 3))
        a(S("s_lshl_b32", f"s{56+i}", f"s{sT+i}", 11))
        a(S("s_sub_u32", f"s{sT+i}", f"s{sT+i}", f"s{sW}")); a(S("s_lshl_b32", f"s{sT+i}", f"s{sT+i}", 13))
    for i in range(1, 4):
        for j in range(8): a(V("v_add_u32", f"v{KADDR+8*i+j}", f"s{sT+i}", f"v{KADDR+j}"))
    for k in range(4): a(V("v_add_u32", f"v{TW+k}", LDS_X, f"v{KDMA+k}"))
    for j in range(8): a(V("v_add_u32", f"v{TR+j}", LDS_X, f"v{KADDR+j}"))
    a(V("v_lshrrev_b32", "v1", 2, "v4"))
    a(V("v_lshl_add_u32", "v7", "v6", 2, "v1"))
    a(V("v_lshlrev_b32", "v7", 8, "v7"))
    a(V("v_xor_b32", "v1", f"s{sW}", "v1"))
    a(V("v_lshl_add_u32", "v7", "v1", 6, "v7"))
    a(V("v_and_b32", "v1", 1, "v3")); a(V("v_lshl_add_u32", "v7", "v1", 5, "v7"))
    a(V("v_and_b32", "v1", 3, "v4")); a(V("v_lshl_add_u32", "v7", "v1", 3, "v7"))
    a(S("s_add_u32", f"s{sT+4}", f"s{sW8192}", LDS_V0))
    a(V("v_add_u32", f"v{VADDR}", f"s{sT+4}", "v7"))
    for p in range(1, 4): a(V("v_xor_b32", f"v{VADDR+p}", 64 * p, f"v{VADDR}"))
    for i in range(1, 4):
        for p in range(4): a(V("v_add_u32", f"v{VADDR+4*i+p}", f"s{sT+i}", f"v{VADDR+p}"))
    a(S("s_lshl_b32", "s56", f"s{sW}", 11)); a(S("s_add_u32", f"s{sT}", "s56", LDS_PX))
    a(V("v_lshrrev_b32", "v1", 1, f"v{VLIN}")); a(V("v_add_u32", f"v{PXW}", f"s{sT}", "v1"))
    a(V("v_lshrrev_b32", "v1", 2, f"v{VLIN}"))
    a(S("s_lshl_b32", f"s{sT}", f"s{sW}", 8)); a(S("s_add_u32", f"s{sT}", f"s{sT}", LDS_ML))
    a(V("v_add_u32", f"v{MLW}", f"s{sT}", "v1"))
    a(V("v_lshlrev_b32", f"v{VQ}", 4, "v6")); a(V("v_lshl_add_u32", f"v{VQ}", "v5", 8, f"v{VQ}"))
    a(vmov(f"v{VHALF}", "-0.5")); a(vmov(f"v{L_OWN}", 0)); a(vmov(f"v{L_SH}", 0))
    for i in range(4): a(vmov(f"v{P+i}", 0))
    a(V("v_lshrrev_b32", f"v{MXR}", 2, f"v{VLIN}")); a(S("s_lshl_b32", f"s{sT}", f"s{sW}", 8)); a(S("s_add_u32", f"s{sT}", f"s{sT}", LDS_MX))
    a(V("v_add_u32", f"v{MXW}", f"s{sT}", f"v{MXR}")); a(V("v_add_u32", f"v{MXR}", LDS_MX, f"v{MXR}"))
    a(V("v_lshrrev_b32", "v1", 1, f"v{VLIN}")); a(V("v_add_u32", "v1", LDS_PX, "v1"))
    for i in range(4): a(V("v_add_u32", f"v{PXR+i}", f"s{56+i}", "v1"))
    for kv, b0, b1 in (('K', LDS_K0, LDS_K1), ('V', LDS_V0, LDS_V1)):
        for buf, base in ((0, b0), (1, b1)):
            for grp in range(2):
                a(S("s_add_u32", f"s{m0_val_reg(kv, buf, grp)}", f"s{sW8192}", base + grp * 4096))
    a(smov(f"s{sKill}", 0))
    for db in range(4): a(mfma(('v', O_OWN + 16 * db), ('v', P), ('v', P), 0))
    a(mfma(('v', O_SH), ('v', P), ('v', P), 0))
    o += stamp(2); o += stamp(4, 1)
    qown(cfg.qsplit, 8)
    TMPS = CI_OWN
    a(wait_for("QS"))
    o += stamp(5, 1)
    o += scale4(SA, TMPS, pk=True) + scale4(SA + 4, TMPS + 8, pk=True)
    for e in range(2): a(dsw128(QW + e, ('v', SA + 4 * e), 0, reg=(('QS', 0), 'qs', False)))
    a(wait_for("K0"))
    for j in range(8): a(dsr128(('a', KF + 4 * j), KADDR + j, koff(0), reg=(('K', 0), 0, True)))
    a(wait(lg=8)); a(barrier())
    for j in range(8): a(dsr128(('a', Q_SH + 4 * j), TS + j, 0, reg=(('QS', 0), 'qs', False)))
    o += stamp(6, 1)
    for j in range(8):
        a(wait(lg=7 - j))
        a(mfma(('v', SA), ('a', KF + 4 * j), ('a', Q_SH + 4 * j), 0 if j == 0 else ('v', SA)))
    o += stamp(3); o += stamp(7, 1)
    def piece(n, pk):
        a(wait_for(f"QO{n}"))
        o.extend(scale4(Q_OWN + 4 * n, TMPS + 8 * (n % 2), pk=pk))
        a(dsw128(TW + n % 4, ('v', Q_OWN + 4 * n), 1024 * n, reg=(('QO', 0), 'qo', True)))
    a(smov(f"s{sOff0}", 0)); a(smov(f"s{sOff1}", 4096))
    def vdma(buf, content, tag, only=None):
        for grp in range(2):
            a(S("s_mov_b32", "m0", f"s{m0_val_reg('V', buf, grp)}", w_scc=False)); a(nop(0))
            for n in range(4):
                if only is None or only(4 * grp + n):
                    a(dma(VDMA, SV, f"s{sOff0 if grp == 0 else sOff1}", 1024 * n, reg=(('V', buf), content, True), flags=cfg.ld), tag)
    a(nop(7)); a(nop(3))
    o += rowmax(SA, M_SH, 1, 2)
    a(I(f"ds_write_b32 v{MXW}, v{M_SH}", 'dsw', [f"v{MXW}", f"v{M_SH}"], [], reg=(('MX', 0), 'mx', False)))
    a(wait(lg=0)); a(barrier())
    for x in range(4): a(I(f"ds_read_b32 v{MXV+x}, v{MXR}" + (f" offset:{256*x}" if x else ""), 'dsr', [f"v{MXR}"], [f"v{MXV+x}"], reg=(('MX', 0), 'mx', False)))
    o += stamp(4)
    a(wait(lg=0))
    a(V("v_max3_f32", "v1", f"v{MXV}", f"v{MXV+1}", f"v{MXV+2}")); a(V("v_max_f32", f"v{M_SH}", "v1", f"v{MXV+3}"))
    a(nop(1))
    a(mfma_f32(('v', SA), VHALF, M_SH, ('v', SA)))
    a(mfma_f32(('v', CI_SH), VHALF, M_SH, 0))
    piece(0, False); piece(1, False)
    piece(2, True); piece(3, True)
    vdma(0, 0, "V0")
    def sm_range(s0, s1):
        q = []
        for s in range(s0, s1):
            st, sl = (0, s) if s >= 0 else (-1, s + 80)
            q += [x for x in sm_ops(st, sl) if st == 0 or not (set(x.w) | set(x.r)) & set(R('v', SB, 16))]
        return q
    smq = sm_range(cfg.E0 - 16, cfg.E0)
    for n in range(4, 8):
        piece(n, True)
        o += smq[4 * (n - 4):4 * (n - 4) + 4]
    smq = smq[16:]
    o += stamp(5)
    a(smov(f"s{sOff0}", 32768)); a(smov(f"s{sOff1}", 32768 + 4096))
    a(wait(lg=0))
    for j in range(8): a(dsr128(('v', Q_OWN + 4 * j), TR + j, 0, reg=(('QO', 0), 'qo', True)))
    for grp in range(2):
        a(S("s_mov_b32", "m0", f"s{m0_val_reg('K', 1, grp)}", w_scc=False)); a(nop(0))
        for k in range(4): a(dma(KDMA + k, SK, f"s{sOff0 if grp == 0 else sOff1}", 1024 * k, reg=(('K', 1), 1, True), flags=cfg.ld), "K1")
    nper = (len(smq) + 7) // 8
    for j in range(8):
        a(wait(lg=7 - j))
        a(mfma(('v', SB), ('a', KF + 4 * j), ('v', Q_OWN + 4 * j), 0 if j == 0 else ('v', SB)))
        o += smq[nper * j:nper * (j + 1)]
    o += stamp(6)
    a(wait_for("V0"))
    a(barrier())
    def v1_in_prologue(n):
        gp = [sl for sl in range(80) if ('DV', n) in MEM[sl]][0]
        return gp >= 64 or gp < ENTRY
    vdma(1, 1, "V1", v1_in_prologue)
    pre = []
    for st, rng in ((-1, range(64, 80)), (0, range(0, ENTRY))):
        for sl in rng:
            for d in MEM[sl]:
                if d[0] == 'V' and (st == 0 or d[1] == 0): pre.append(mem_ins(st, sl, d))
                elif d[0] in ('K', 'PW', 'LW') and st == 0: pre.append(mem_ins(st, sl, d))
    tail = sm_range(cfg.E0, ENTRY)
    u0_tail = [x for x in tail if (set(x.w) | set(x.r)) & set(R('v', SA, 16))]
    u1_head = [x for x in tail if x not in u0_tail]
    o += u0_tail
    a(nop(2))
    o += rowmax(SB, M_OWN, SA + 1, SA + 2)
    a(nop(1))
    a(mfma_f32(('v', SB), VHALF, M_OWN, ('v', SB)))
    a(mfma_f32(('v', CI_OWN), VHALF, M_OWN, 0))
    o += pre
    assert len(pre) >= 17
    o += u1_head
    a(wait(lg=0))
    o += stamp(7)
    if cfg.stamps: a(raw("s_memrealtime s[86:87]", 'stampi'))
    return o

def store_tile_rows(Oreg, rinv, soff):
    o = []
    for db in range(4):
        b = Oreg + 16 * db
        for i in range(16): o.append(vmul(f"v{b+i}", f"v{rinv}", f"v{b+i}"))
        for m in range(8): o.append(cvtpk(f"v{b+m}", f"v{b+2*m}", f"v{b+2*m+1}"))
        for pr in range(2):
            r0 = b + 4 * pr
            o.append(swap32(f"v{r0}", f"v{r0+2}")); o.append(swap32(f"v{r0+1}", f"v{r0+3}"))
        for pr in range(2): o.append(vstore(('v', b + 4 * pr), 4, VQ, SO, soff, db * 64 + pr * 32))
    return o

def epilogue():
    o = []; a = o.append
    st = 7
    SF = cfg.store_flags
    late = cfg.wr_slots[0] > B1
    if late: a(wait(lg=0)); a(barrier())
    for s in range(EXIT, 80):
        for d in MEM[s]:
            if (d[0] == 'V' and d[1] == 3) or d[0] == 'PR': a(mem_ins(st, s, d))
    for s in range(0, 16):
        for d in MEM[s]:
            if d[0] == 'PR': a(mem_ins(8, s, d))
    LR = CI_OWN
    a(V("v_lshrrev_b32", "v1", 8, f"v{VQ}")); a(V("v_lshlrev_b32", "v2", 2, "v1")); a(V("v_add_u32", "v2", LDS_ML, "v2"))
    for x in range(4): a(dsr2_32(('v', LR + 2 * x), 2, 64 * x, 64 * x + 32, reg=(('ML', 0), 'ml', False)))
    valu = []
    for s in range(EXIT, 80):
        valu.append((s, [x for x in sm_ops(st, s) if not (set(x.w) | set(x.r)) & set(R('v', SA, 16) + [f"v{L_SH}"])]))
    pv = [mfma_at(st, 72 + i) for i in range(8)]
    pvs = [mfma_at(8, 8 + i) for i in range(8)]
    adr = []; b_ = adr.append
    b_(V("v_bfe_u32", "v3", f"v{VQ}", 4, 1))
    b_(V("v_mul_u32_u24", "v1", 272, "v1")); b_(V("v_lshl_add_u32", "v1", "v3", 3, "v1"))
    b_(S("s_mul_i32", f"s{sT}", f"s{sW}", 8704, w_scc=False))
    b_(V("v_add_u32", "v1", f"s{sT}", "v1"))
    b_(V("v_lshrrev_b32", "v3", 8, f"v{VLIN}")); b_(V("v_lshl_add_u32", "v3", "v3", 4, f"v{VLIN}")); b_(V("v_add_u32", "v3", f"s{sT}", "v3"))
    for p in range(4):
        b_(S("s_xor_b32", f"s{sT+1}", f"s{sW}", p)); b_(S("s_lshl_b32", f"s{sT+1}", f"s{sT+1}", 6))
        b_(V("v_add_u32", f"v{PXR+p}", f"s{sT+1}", "v1"))
    k = 0
    for s, ops in valu:
        o += ops
        if s == 66:
            a(wait(lg=0))
        if 66 <= s < 74: a(pvs[s - 66])
        if s >= 66 and k < len(adr): o += adr[k:k + 3]; k += 3
    o += adr[k:]
    a(nop(0))
    for i in range(8): a(pv[i])
    a(vmov("v2", f"v{L_OWN}"))
    for i in range(4): a(vadd(f"v{LR+i}", f"v{LR+i}", f"v{LR+4+i}"))
    a(swap32(f"v{L_OWN}", "v2"))
    a(vadd(f"v{LR}", f"v{LR}", f"v{LR+1}")); a(vadd(f"v{LR+2}", f"v{LR+2}", f"v{LR+3}"))
    a(vadd(f"v{L_OWN}", f"v{L_OWN}", "v2")); a(vadd(f"v{LR}", f"v{LR}", f"v{LR+2}"))
    a(smov(f"s{sT+2}", hex(cfg.thresh)))
    a(vrcp(f"v{LR+1}", f"v{L_OWN}")); a(vrcp(f"v{LR+2}", f"v{LR}"))
    a(vcmp("v_cmp_nle_f32", "s[52:53]", f"v{L_OWN}", f"s{sT+2}"))
    a(vcmp("v_cmp_nle_f32", "s[54:55]", f"v{LR}", f"s{sT+2}"))
    if cfg.force_slow:
        a(nop(1)); a(raw("s_mov_b64 s[54:55], -1", 'salu', [], ['s54', 's55'])); a(raw("s_mov_b64 s[52:53], -1", 'salu', [], ['s52', 's53']))
    o += stamp(1, 2)
    for i in range(16): a(vmul(f"v{O_SH+i}", f"v{LR+2}", f"v{O_SH+i}"))
    for m in range(8): a(cvtpk(f"v{O_SH+m}", f"v{O_SH+2*m}", f"v{O_SH+2*m+1}"))
    a(scmp("s_cmp_lg_u64", "s[54:55]", 0))
    a(nop(0))
    for pr in range(2):
        r0 = O_SH + 4 * pr
        a(swap32(f"v{r0}", f"v{r0+2}")); a(swap32(f"v{r0+1}", f"v{r0+3}"))
    a(branch("s_cbranch_scc1", "L_skip_sh", ['scc']))
    a(S("s_lshl_b32", f"s{sT+1}", f"s{sW}", 6)); a(S("s_add_u32", f"s{sT+1}", f"s{sT+1}", 32768))
    for pr in range(2): a(vstore(('v', O_SH + 4 * pr), 4, VQ, SO, f"s{sT+1}", pr * 32, SF))
    a(label("L_skip_sh"))
    o += stamp(2, 2)
    a(scmp("s_cmp_lg_u64", "s[52:53]", 0))
    a(branch("s_cbranch_scc1", "L_skip_own", ['scc']))
    for p in range(4):
        b = O_OWN + 16 * p
        for i in range(0, 16, 2): a(V("v_pk_mul_f32", f"v[{b+i}:{b+i+1}]", f"v[{b+i}:{b+i+1}]", f"v[{LR}:{LR+1}]", mods="op_sel:[0,1] op_sel_hi:[1,1]"))
        for m in range(8): a(cvtpk(f"v{b+m}", f"v{b+2*m}", f"v{b+2*m+1}"))
        for g in range(4): a(dsw64(PXR + p, ('v', b + 2 * g), g * 16, reg=(('OT', 0), 'ot', True)))
    a(S("s_add_u32", f"s{sT+1}", f"s{sW8192}", 4096))
    o += stamp(3, 2)
    a(wait(lg=0))
    o += stamp(4, 2)
    for n in range(8): a(dsr128(('v', SA + 4 * n), 3, 1088 * n, reg=(('OT', 0), 'ot', True)))
    for n in range(8):
        a(wait(lg=7 - n))
        a(vstore(('v', SA + 4 * n), 4, VLIN, SO, f"s{sW8192 if n < 4 else sT+1}", 1024 * (n % 4), SF))
    a(label("L_skip_own"))
    o += stamp(9)
    a(raw("s_or_b64 s[56:57], s[52:53], s[54:55]", 'salu', ['s52', 's53', 's54', 's55'], ['s56', 's57', 'scc']))
    a(branch("s_cbranch_scc1", "L_slow", ['scc']))
    return o

def slow_path():
    o = []; a = o.append
    Kr, Sr, Vr, Or = 80, 112, 128, O_OWN
    mreg, lreg = 10, L_OWN
    a(label("L_slow"))
    a(wait(vm=0, lg=0))
    a(scmp("s_cmp_lg_u64", "s[52:53]", 0)); a(branch("s_cbranch_scc0", "L_slow_sh", ['scc']))
    a(smov("s33", f"s{sW8192}"))
    a(raw("s_mov_b64 s[52:53], 0", 'salu', [], ['s52', 's53']))
    a(branch("s_branch", "L_slow_tile"))
    a(label("L_slow_sh"))
    a(scmp("s_cmp_lg_u64", "s[54:55]", 0)); a(branch("s_cbranch_scc0", "L_end", ['scc']))
    a(scmp("s_cmp_lg_u32", f"s{sW}", 0)); a(branch("s_cbranch_scc1", "L_end", ['scc']))
    a(smov("s33", 32768))
    a(raw("s_mov_b64 s[54:55], 0", 'salu', [], ['s54', 's55']))
    a(label("L_slow_tile"))
    for j in range(8): a(vload(('v', Q_OWN + 4 * j), 4, VQ, SQ, "s33", 32 * j))
    a(wait(vm=0))
    for g in range(8): o.extend(scale4(Q_OWN + 4 * g, 240, pk=False))
    a(vmov(f"v{mreg}", "0xff800000"))
    def qk():
        for j in range(8): a(vload(('v', Kr + 4 * j), 4, VQ, SK, "s34", 32 * j))
        a(wait(vm=0))
        for j in range(8): a(mfma(('v', Sr), ('v', Kr + 4 * j), ('v', Q_OWN + 4 * j), 0 if j == 0 else ('v', Sr)))
        a(nop(15))
    a(smov("s34", 0))
    a(label("L_slow_p1"))
    qk()
    for i in range(16): a(V("v_max_f32", f"v{mreg}", f"v{mreg}", f"v{Sr+i}"))
    a(S("s_add_u32", "s34", "s34", 8192)); a(scmp("s_cmp_lt_u32", "s34", 262144)); a(branch("s_cbranch_scc1", "L_slow_p1", ['scc']))
    a(vmov("v1", f"v{mreg}")); a(nop(1)); a(swap32(f"v{mreg}", "v1")); a(V("v_max_f32", f"v{mreg}", f"v{mreg}", "v1"))
    a(vmov(f"v{lreg}", 0))
    for i in range(64): a(vmov(f"v{Or+i}", 0))
    a(V("v_lshrrev_b32", "v2", 8, f"v{VQ}"))
    a(V("v_bfe_u32", "v3", f"v{VQ}", 4, 1))
    a(V("v_lshlrev_b32", "v2", 1, "v2")); a(V("v_lshl_add_u32", "v2", "v3", 10, "v2"))
    a(smov("s34", 0))
    a(label("L_slow_p2"))
    qk()
    for i in range(16): a(V("v_sub_f32", f"v{Sr+i}", f"v{Sr+i}", f"v{mreg}"))
    for i in range(16): a(vexp(f"v{Sr+i}", f"v{Sr+i}"))
    a(nop(0))
    for i in range(16): a(vadd(f"v{lreg}", f"v{lreg}", f"v{Sr+i}"))
    for m in range(8): a(cvtpk(f"v{P+m}", f"v{Sr+2*m}", f"v{Sr+2*m+1}"))
    for ks in range(2):
        a(S("s_add_u32", "s35", "s34", ks * 4096))
        for db in range(4):
            for r in range(4):
                for e in range(2):
                    j = 2 * r + e
                    off = (8 * (j // 4) + j % 4) * 256 + db * 64
                    a(vload(('v', Kr + 8 * db + 2 * r + e), 1, 2, SV, "s35", off, op="buffer_load_ushort"))
        a(wait(vm=0))
        for db in range(4):
            for r in range(4): a(V("v_lshl_or_b32", f"v{Vr+4*db+r}", f"v{Kr+8*db+2*r+1}", 16, f"v{Kr+8*db+2*r}"))
        a(nop(1))
        for db in range(4): a(mfma(('v', Or + 16 * db), ('v', Vr + 4 * db), ('v', P + 4 * ks), ('v', Or + 16 * db)))
        a(nop(7))
    a(S("s_add_u32", "s34", "s34", 8192)); a(scmp("s_cmp_lt_u32", "s34", 262144)); a(branch("s_cbranch_scc1", "L_slow_p2", ['scc']))
    a(nop(15))
    a(vmov("v1", f"v{lreg}")); a(nop(1)); a(swap32(f"v{lreg}", "v1")); a(vadd(f"v{lreg}", f"v{lreg}", "v1"))
    a(vrcp("v5", f"v{lreg}")); a(nop(0))
    o += store_tile_rows(Or, 5, "s33")
    a(wait(vm=0))
    a(branch("s_branch", "L_slow_sh"))
    return o

def stamp_out():
    o = []
    if not cfg.stamps: return o
    a = o.append
    a(raw("s_waitcnt vmcnt(0)", 'wait', vm=0)); o += [raw("s_memtime s[80:81]", 'stampi'), raw("s_memrealtime s[84:85]", 'stampi')]
    a(raw("s_waitcnt lgkmcnt(0)", 'wait', lg=0))
    if cfg.stamp_wg >= 0:
        a(scmp("s_cmp_lg_u32", "s2", cfg.stamp_wg)); a(branch("s_cbranch_scc1", "L_end", ['scc']))
        a(scmp("s_cmp_lg_u32", f"s{sW}", 0)); a(branch("s_cbranch_scc1", "L_end", ['scc']))
        a(vmov("v1", 0))
    else:
        a(raw("s_load_dwordx2 s[58:59], s[0:1], 40", 'smem', [], R('s', 58, 2))); a(wait(lg=0))
        a(S("s_lshl_b32", "s33", "s2", 2)); a(S("s_add_u32", "s33", "s33", f"s{sW}")); a(S("s_lshl_b32", "s33", "s33", 6))
        a(vmov("v1", "s33"))
    def put(off, x, y):
        if y is None: a(vmov("v2", x))
        else:
            a(S("s_sub_u32", "s33", x, y)); a(vmov("v2", "s33"))
        a(raw(f"global_store_dword v1, v2, s[58:59] offset:{off}", 'vstore', ['v1', 'v2', 's58', 's59'], [], data=['v2']))
        a(nop(1))
    for i in range(11): put(4 * i, f"s{60+2*i}", "s60")
    put(44, "s84", "s82"); put(48, "s86", "s82"); put(52, "s88", "s82"); put(56, "s82", None)
    return o

def build():
    global MEM, LGW
    MEM = build_mem_schedule()
    LGW = compute_lgkm_waits()
    pro = prologue()
    body = body_iter(0)
    epi = epilogue()
    slow = slow_path()
    static = pro + [raw(".p2align 6", 'label'), label("L_loop")] + body + [label("L_exit")] + stamp(8) + \
             ([raw("s_memrealtime s[88:89]", 'stampi')] if cfg.stamps else []) + epi + stamp_out() + \
             [label("L_end"), raw("s_endpgm", 'branch')] + slow
    trace = list(pro)
    for it in range(4):
        b = body_iter(2 * it, last=(it == 3))
        assert [x.t for x in b] == [x.t for x in body[:len(b)]], "loop body is not periodic"
        trace += b
    trace += epi
    errs = verify(trace, "main")
    errs += verify(slow, "slow", check_lds=False)
    return static, errs, (pro, body, epi)

HEADER = """; Kernarg layout for this problem (48 bytes, ptrs only, base s[0:1]):
; One workgroup per (batch, q-head): 4 waves; wave w owns q rows 32w..32w+31 against all keys.  For the shared
; @launch grid=(256,1,1) block=(256,1,1) lds=163840
.amdgcn_target "amdgcn-amd-amdhsa--gfx950"
.text
.globl {n}_kernel
.p2align 8
.type {n}_kernel,@function
{n}_kernel:
"""
FOOTER = """
.section .rodata,"a"
.p2align 6
.amdhsa_kernel {n}_kernel
  .amdhsa_next_free_vgpr 512
  .amdhsa_next_free_sgpr 96
  .amdhsa_accum_offset 256
  .amdhsa_group_segment_fixed_size 0
  .amdhsa_kernarg_size 48
  .amdhsa_user_sgpr_count 2
  .amdhsa_user_sgpr_kernarg_segment_ptr 1
  .amdhsa_system_sgpr_workgroup_id_x 1
.end_amdhsa_kernel
"""

def main(argv=None):
    ap = argparse.ArgumentParser()
    ap.add_argument("-o", default="cdna_kernels/%s.s" % NAME)
    ap.add_argument("--stamps", action="store_true")
    ap.add_argument("--stamp-wg", type=int, default=0)
    ap.add_argument("--force-slow", action="store_true")
    ap.add_argument("--thresh", default=None)
    ap.add_argument("--store-flags", default="nt")
    ap.add_argument("--ld", default="nt"); ap.add_argument("--qld", default="nt")
    ap.add_argument("--fine", type=int, default=0)
    ap.add_argument("--qsplit", type=int, default=2)
    ap.add_argument("--show", action="store_true")
    ap.add_argument("--pw64", action="store_true")
    ap.add_argument("--wr", default="36,38,40,42,43")
    ap.add_argument("--dv", default=None); ap.add_argument("--dk", default=None); ap.add_argument("--inc", type=int, default=16)
    ap.add_argument("--sched", default="balanced"); ap.add_argument("--drop", default="")
    ap.add_argument("--lead", type=int, default=4); ap.add_argument("--lag", type=int, default=3)
    args = ap.parse_args(argv)
    cfg.stamps = args.stamps; cfg.stamp_wg = args.stamp_wg; cfg.force_slow = args.force_slow; cfg.store_flags = args.store_flags
    cfg.ld = args.ld; cfg.qld = args.qld; cfg.fine = args.fine; cfg.qsplit = args.qsplit
    cfg.sched = args.sched; cfg.drop = tuple(x for x in args.drop.split(",") if x); cfg.LEAD = args.lead; cfg.LAG = args.lag
    if args.dv: cfg.dv_slots = tuple(int(x) for x in args.dv.split(","))
    if args.dk: cfg.dk_slots = tuple(int(x) for x in args.dk.split(","))
    cfg.pw64 = args.pw64
    cfg.inc_slot = args.inc; cfg.wr_slots = tuple(int(x) for x in args.wr.split(","))
    if args.thresh: cfg.thresh = int(args.thresh, 0)
    static, errs, parts = build()
    if args.show:
        for s in range(80): print(s, "cvt" if has_cvt(s) else "   ", LGW[s], MEM[s])
    for e in errs[:40]: print("ERR", e)
    cnt = lambda L: sum(1 for x in L if x.k != 'label')
    print("errors:", len(errs), " instructions:", cnt(static), " pro/body/epi:", [cnt(p) for p in parts])
    open(args.o, "w").write(HEADER.format(n=NAME) + text_of(static) + FOOTER.format(n=NAME))

if __name__ == "__main__": main()
```

```python
import re

def R(f, b, n=1):
    return [f"{f}{b+i}" for i in range(n)]
def T(f, b, n=1):
    return f"{f}{b}" if n == 1 else f"{f}[{b}:{b+n-1}]"

class I:
    __slots__ = ('t', 'k', 'r', 'w', 'x')
    def __init__(self, t, k, r=(), w=(), **x):
        self.t = t; self.k = k; self.r = tuple(r); self.w = tuple(w); self.x = x
    def __repr__(self): return self.t

def mfma(D, A, B, C):
    ct = "0" if C == 0 else T(C[0], C[1], 16)
    r = R(A[0], A[1], 4) + R(B[0], B[1], 4) + ([] if C == 0 else R(C[0], C[1], 16))
    return I(f"v_mfma_f32_32x32x16_bf16 {T(D[0],D[1],16)}, {T(A[0],A[1],4)}, {T(B[0],B[1],4)}, {ct}", 'mfma',
             r, R(D[0], D[1], 16), passes=8, cls='xdl', C=([] if C == 0 else R(C[0], C[1], 16)),
             AB=R(A[0], A[1], 4) + R(B[0], B[1], 4))
def mfma16(D, A, B, C):
    ct = "0" if C == 0 else T(C[0], C[1], 4)
    r = R(A[0], A[1], 4) + R(B[0], B[1], 4) + ([] if C == 0 else R(C[0], C[1], 4))
    return I(f"v_mfma_f32_16x16x32_bf16 {T(D[0],D[1],4)}, {T(A[0],A[1],4)}, {T(B[0],B[1],4)}, {ct}", 'mfma',
             r, R(D[0], D[1], 4), passes=4, cls='xdl', C=([] if C == 0 else R(C[0], C[1], 4)),
             AB=R(A[0], A[1], 4) + R(B[0], B[1], 4))
def mfma16_f32(D, a, b, C):
    ct = "0" if C == 0 else T(C[0], C[1], 4)
    r = [f"v{a}", f"v{b}"] + ([] if C == 0 else R(C[0], C[1], 4))
    return I(f"v_mfma_f32_16x16x4_f32 {T(D[0],D[1],4)}, v{a}, v{b}, {ct}", 'mfma', r, R(D[0], D[1], 4),
             passes=8, cls='sgemm', C=([] if C == 0 else R(C[0], C[1], 4)), AB=[f"v{a}", f"v{b}"])
def swap16(a, b): return I(f"v_permlane16_swap_b32 {a}, {b}", 'perm', [a, b], [a, b])
def mfma_f32(D, a, b, C):
    ct = "0" if C == 0 else T(C[0], C[1], 16)
    r = [f"v{a}", f"v{b}"] + ([] if C == 0 else R(C[0], C[1], 16))
    return I(f"v_mfma_f32_32x32x2_f32 {T(D[0],D[1],16)}, v{a}, v{b}, {ct}", 'mfma', r, R(D[0], D[1], 16),
             passes=16, cls='sgemm', C=([] if C == 0 else R(C[0], C[1], 16)), AB=[f"v{a}", f"v{b}"])
def _regs(*ops):
    out = []
    for o in ops:
        if isinstance(o, str):
            m = re.fullmatch(r'-?\|?([vas])(\d+)\|?', o)
            if m: out.append(m.group(1) + m.group(2)); continue
            m = re.fullmatch(r'([vas])\[(\d+):(\d+)\]', o)
            if m: out += R(m.group(1), int(m.group(2)), int(m.group(3)) - int(m.group(2)) + 1); continue
            if o in ('vcc', 'exec', 'm0', 'scc'): out.append(o)
    return out
def V(op, d, *srcs, trans=False, rmw=False, extra_r=(), extra_w=(), mods=""):
    srcs = [str(s) for s in srcs]
    t = f"{op} {d}, " + ", ".join(srcs) + (" " + mods if mods else "")
    r = _regs(*srcs) + list(extra_r) + (_regs(d) if rmw else [])
    return I(t, 'trans' if trans else 'valu', r, _regs(d) + list(extra_w))
def vexp(d, s): return V("v_exp_f32", d, s, trans=True)
def vrcp(d, s): return V("v_rcp_f32", d, s, trans=True)
def vadd(d, a, b): return V("v_add_f32", d, a, b)
def vmul(d, a, b): return V("v_mul_f32", d, a, b)
def cvtpk(d, a, b): return V("v_cvt_pk_bf16_f32", d, a, b)
def vmov(d, s): return V("v_mov_b32", d, s)
def accw(d, s): return V("v_accvgpr_write_b32", d, s)
def accr(d, s): return V("v_accvgpr_read_b32", d, s)
def swap32(a, b): return I(f"v_permlane32_swap_b32 {a}, {b}", 'perm', [a, b], [a, b])
def vcmp(op, d, a, b):
    return I(f"{op} {d}, {a}, {b}", 'valu', _regs(a, b), _regs(d) if d != 'vcc' else ['vcc'])
def readfirst(s, v): return I(f"v_readfirstlane_b32 {s}, {v}", 'valu', [v], [s], rfl=True)
def S(op, d, *srcs, w_scc=True, r_scc=False):
    srcs = [str(s) for s in srcs]
    t = f"{op} {d}" + ("".join(", " + s for s in srcs))
    return I(t, 'salu', _regs(*srcs) + (['scc'] if r_scc else []), _regs(d) + (['scc'] if w_scc else []))
def smov(d, s): return S("s_mov_b32", d, s, w_scc=False)
def scmp(op, a, b): return I(f"{op} {a}, {b}", 'salu', _regs(str(a), str(b)), ['scc'])
def dsr128(D, addr, off, reg=None):
    return I(f"ds_read_b128 {T(D[0],D[1],4)}, v{addr}" + (f" offset:{off}" if off else ""), 'dsr', [f"v{addr}"], R(D[0], D[1], 4), reg=reg)
def dsr64(D, addr, off, reg=None):
    return I(f"ds_read_b64 {T(D[0],D[1],2)}, v{addr}" + (f" offset:{off}" if off else ""), 'dsr', [f"v{addr}"], R(D[0], D[1], 2), reg=reg)
def dstr(D, addr, off, reg=None):
    return I(f"ds_read_b64_tr_b16 {T(D[0],D[1],2)}, v{addr}" + (f" offset:{off}" if off else ""), 'dsr', [f"v{addr}"], R(D[0], D[1], 2), reg=reg)
def dsw128(addr, Sr, off, reg=None):
    return I(f"ds_write_b128 v{addr}, {T(Sr[0],Sr[1],4)}" + (f" offset:{off}" if off else ""), 'dsw', [f"v{addr}"] + R(Sr[0], Sr[1], 4), [], reg=reg)
def dsw64(addr, Sr, off, reg=None):
    return I(f"ds_write_b64 v{addr}, {T(Sr[0],Sr[1],2)}" + (f" offset:{off}" if off else ""), 'dsw', [f"v{addr}"] + R(Sr[0], Sr[1], 2), [], reg=reg)
def dma(voff, srd, soff, off, reg=None, flags=""):
    so = soff if isinstance(soff, str) else str(soff)
    return I(f"buffer_load_dwordx4 v{voff}, s[{srd}:{srd+3}], {so} offen" + (f" offset:{off}" if off else "") + (" " + flags if flags else "") + " lds",
             'dma', [f"v{voff}", 'm0'] + R('s', srd, 4) + _regs(so), [], reg=reg)
def vload(D, n, voff, srd, soff, off, flags="", op=None):
    so = soff if isinstance(soff, str) else str(soff)
    op = op or {1: "buffer_load_dword", 2: "buffer_load_dwordx2", 4: "buffer_load_dwordx4"}[n]
    return I(f"{op} {T(D[0],D[1],n)}, v{voff}, s[{srd}:{srd+3}], {so} offen" + (f" offset:{off}" if off else "") + (" " + flags if flags else ""),
             'vload', [f"v{voff}"] + R('s', srd, 4) + _regs(so), R(D[0], D[1], n))
def vstore(Sr, n, voff, srd, soff, off, flags=""):
    so = soff if isinstance(soff, str) else str(soff)
    op = {1: "buffer_store_dword", 2: "buffer_store_dwordx2", 4: "buffer_store_dwordx4"}[n]
    return I(f"{op} {T(Sr[0],Sr[1],n)}, v{voff}, s[{srd}:{srd+3}], {so} offen" + (f" offset:{off}" if off else "") + (" " + flags if flags else ""),
             'vstore', [f"v{voff}"] + R('s', srd, 4) + _regs(so) + R(Sr[0], Sr[1], n), [], data=R(Sr[0], Sr[1], n), wide=(n >= 3))
def wait(vm=None, lg=None):
    p = []
    if vm is not None: p.append(f"vmcnt({vm})")
    if lg is not None: p.append(f"lgkmcnt({lg})")
    return I("s_waitcnt " + " ".join(p), 'wait', vm=vm, lg=lg)
def barrier(): return I("s_barrier", 'bar')
def nop(n): return I(f"s_nop {n}", 'nop', n=n)
def label(name): return I(f"{name}:", 'label')
def branch(op, target, r=()): return I(f"{op} {target}", 'branch', r)
def raw(t, k='salu', r=(), w=(), **x): return I(t, k, r, w, **x)
def comment(t): return I(f"; {t}", 'label')

class VerifyError(Exception): pass

def verify(trace, name="trace", check_lds=True, verbose=False):
    errs = []
    real = [x for x in trace if x.k != 'label']
    def states_between(i, j):
        n = 0
        for q in range(i + 1, j):
            n += (real[q].x['n'] + 1) if real[q].k == 'nop' else 1
        return n
    VAL = ('valu', 'trans', 'perm')
    for j, c in enumerate(real):
        cr, cw = set(c.r), set(c.w)
        n = 0
        for i in range(j - 1, max(-1, j - 26), -1):
            p = real[i]
            if n > 21: break
            pw, pr = set(p.w), set(p.r)
            need = 0; why = None
            def req(k, s):
                nonlocal need, why
                if k > need: need, why = k, s
            if p.k in VAL:
                vw = {x for x in pw if x[0] in 'va' and x != 'vcc'}
                sw = {x for x in pw if x[0] == 's' and x != 'scc' or x == 'vcc'}
                if c.k == 'mfma' and vw & cr: req(2, "VALU->MFMA read")
                if c.k == 'perm' and vw & cr: req(2, "VALU->permlane")
                if c.x.get('rfl') and vw & cr: req(1, "VALU->readfirstlane")
                if p.k == 'trans' and c.k in ('valu', 'perm') and vw & cr: req(1, "trans->valu")
                if p.k == 'trans' and c.k in ('dsw', 'vstore', 'mfma') and vw & cr: req(2, "trans->mem/mfma (conservative)")
                if sw & cr:
                    if c.k in VAL: req(2, "VALU sgpr/vcc->VALU read")
                    if c.k in ('dma', 'vload', 'vstore'): req(5, "VALU sgpr->VMEM")
                    if c.k in ('salu', 'branch'): req(1, "VALU sgpr->SALU (conservative)")
            if p.k == 'mfma':
                ps = p.x['passes']; D = pw
                xdl = p.x['cls'] == 'xdl'
                if c.k == 'mfma':
                    cC = set(c.x['C']); cAB = set(c.x['AB'])
                    if cAB & D: req({4: 8, 8: 12, 16: 20}[ps] if xdl else {8: 10, 16: 18}[ps], "MFMA D->MFMA A/B")
                    if cC & D:
                        exact = (cC == D and c.x['cls'] == p.x['cls'])
                        if not exact:
                            if xdl: req({4: 6, 8: 10}[ps], "XDL D->overlap SrcC")
                            elif c.x['cls'] == 'sgemm': req({8: 8, 16: 16}[ps], "SGEMM D->SGEMM C overlap")
                            else: req(4, "SGEMM D->XDL C (padded)")
                    if (cw & D) and not (cC & D):
                        req({4: 6, 8: 10, 16: 18}[ps], "MFMA D WAW MFMA")
                else:
                    k = ({4: 8, 8: 12}[ps] if xdl else {8: 10, 16: 18}[ps])
                    if c.k in VAL and ((cr | cw) & D): req(k, "MFMA D->VALU")
                    if c.k in ('dsw', 'vstore', 'dsr', 'vload', 'dma') and ((cr | cw) & D): req(k, "MFMA D->mem")
                    pc = set(p.x['C'])
                    if c.k in VAL and (cw & pc) and xdl: req({4: 3, 8: 7}[ps], "XDL SrcC WAR VALU")
            if p.k == 'salu' and 'm0' in pw and c.k == 'dma': req(1, "M0->DMA")
            if p.k == 'vstore' and p.x.get('wide') and c.k in VAL and (cw & set(p.x['data'])): req(2, "store data WAR")
            if p.k == 'vstore' and p.x.get('wide') and c.k in ('dsr', 'vload') and (cw & set(p.x['data'])): req(1, "store data WAR(load)")
            if need > n:
                errs.append(f"[{name}] hazard '{why}': '{p.t}' -> '{c.t}' has {n} states, needs {need} (idx {i}->{j})")
            n += (p.x['n'] + 1) if p.k == 'nop' else 1
    lgq = []
    vmq = []
    pend = {}
    seq = 0
    bufs = {}
    def B(b):
        return bufs.setdefault(b, dict(cur=None, out=0, landed=None, visible=None, reads_out=0, unsafe=False, wr_out=0))
    for j, c in enumerate(real):
        if c.k == 'wait':
            if c.x.get('lg') is not None:
                while len(lgq) > c.x['lg']:
                    o = lgq.pop(0)
                    for w in o.w:
                        if pend.get(w) is o: del pend[w]
                    rg = o.x.get('reg')
                    if rg is not None:
                        b = B(rg[0])
                        if o.k == 'dsr': b['reads_out'] -= 1
                        else:
                            b['wr_out'] -= 1
                            if b['wr_out'] == 0 and b['out'] == 0: b['landed'] = b['cur']
            if c.x.get('vm') is not None:
                while len(vmq) > c.x['vm']:
                    o = vmq.pop(0)
                    for w in o.w:
                        if pend.get(w) is o: del pend[w]
                    if o.k == 'dma' and o.x.get('reg') is not None:
                        b = B(o.x['reg'][0]); b['out'] -= 1
                        if b['out'] == 0 and b.get('expect_more', 0) == 0: b['landed'] = b['cur']
            continue
        if c.k == 'bar':
            for b in bufs.values():
                if b['out'] == 0 and b['wr_out'] == 0 and b['landed'] == b['cur']: b['visible'] = b['landed']
                b['unsafe'] = b['reads_out'] > 0
                b['read_since_bar'] = False
            continue
        for r in c.r:
            if r in pend: errs.append(f"[{name}] '{c.t}' (idx {j}) reads {r} with load outstanding: '{pend[r].t}'")
        for w in c.w:
            if w in pend and not (c.k in ('dsr',) and pend[w].k == 'dsr') and not (c.k == 'vload' and pend[w].k == 'vload'):
                errs.append(f"[{name}] '{c.t}' (idx {j}) writes {w} with load outstanding: '{pend[w].t}'")
        if c.k in ('dsr', 'dsw', 'smem'):
            lgq.append(c)
            if len(lgq) > 15 + 48: pass
            for w in c.w: pend[w] = c
        if c.k in ('vload', 'dma', 'vstore'):
            vmq.append(c)
            if len(vmq) > 63: errs.append(f"[{name}] vmcnt overflow at idx {j}")
            for w in c.w: pend[w] = c
        rg = c.x.get('reg')
        if check_lds and rg is not None:
            b = B(rg[0])
            if c.k == 'dsr':
                ok = (b['visible'] == rg[1]) or (rg[2] and b['landed'] == rg[1])
                if not ok: errs.append(f"[{name}] LDS read '{c.t}' (idx {j}) of {rg}: landed={b['landed']} visible={b['visible']}")
                b['reads_out'] += 1; b['read_since_bar'] = True
            elif c.k in ('dma', 'dsw'):
                if b['cur'] != rg[1]:
                    if b['unsafe'] or b.get('read_since_bar', False):
                        errs.append(f"[{name}] LDS WAR: '{c.t}' (idx {j}) overwrites {rg[0]} (content {b['cur']}) without barrier after its reads")
                    b['cur'] = rg[1]; b['landed'] = None; b['visible'] = None
                else:
                    b['landed'] = None; b['visible'] = None
                if c.k == 'dma': b['out'] += 1
                else: b['wr_out'] += 1
    return errs

def text_of(stream):
    out = []
    for x in stream:
        if x.k == 'label': out.append(x.t)
        else: out.append("    " + x.t)
    return "\n".join(out)

def dsr2st64_64(D, addr, o0, o1, reg=None):
    return I(f"ds_read2st64_b64 {T(D[0],D[1],4)}, v{addr} offset0:{o0} offset1:{o1}", 'dsr', [f"v{addr}"], R(D[0], D[1], 4), reg=reg)
def dsr2_32(D, addr, o0, o1, reg=None):
    return I(f"ds_read2_b32 {T(D[0],D[1],2)}, v{addr} offset0:{o0} offset1:{o1}", 'dsr', [f"v{addr}"], R(D[0], D[1], 2), reg=reg)
```

```python
import sys, argparse, re
from asmlib import *

NAME = "standalone__gqa_softmax__near_ridge"
WL, STEP = 34, 170

class Cfg:
    E0 = 7
    LEAD = 8
    LAG = 6
    thresh = 0x4b800000
    stamps = False; stamp_wg = 0; fine = 0
    force_slow = False
    store_flags = "nt"; ld = "nt"; qld = "nt"
    qsplit = 2
    dk_slots = (104, 110, 114, 118, 122, 126, 130, 134)
    dv_slots = (164, 168, 172, 176, 178, 182, 186, 190)
    wr_slots = (78, 82, 86, 90)
    inc_slot = 20
    B1 = 102; B2 = 160
cfg = Cfg()

PS = (0, 20)
PXR = 4
PXW, MLW = 8, 9
SLM, SLL = 10, 11
KDMA = 12
VDMA = 16
VQ, VLIN = 18, 19
KADDR = 24
VADDR = 40
P = 72
S0 = 88
CI_OWN, CI_SH = 120, 128
VQRT = 136
MM = 138
MXW, MXR = 140, 141
Q_OWN = 144
O_OWN = 176
O_SH = 240
Q_SH, KF, VF0, VFP, PSH, L_OWN, L_SH, ONES = 0, 32, 64, 96, 120, 152, 160, 168
def vf(i, p): return VF0 + 8 * i + 4 * p if p < 2 else VFP + 4 * (p - 2)
def psh(i, c): return PSH + 8 * i + 4 * c
def Sb(par): return S0 + 16 * par
def Pb(par): return P + 8 * par
sW, SQ, SK, SV, SO = 3, 8, 12, 16, 20
sW8192, sOff0, sOff1, sC, sMask = 24, 25, 26, 27, 28
sT = 29
sKill = 34
sM0 = 44
sC2 = 52
sQS, sQO1 = 54, 55
SCALE_BITS = 0x3e0293ee
LDS_K1, LDS_K0, LDS_X, LDS_V0, LDS_V1 = 0, 32768, 65536, 98304, 131072
LDS_PX = LDS_X
LDS_ML = LDS_X + 16384
LDS_QS = LDS_V1
LDS_MX = LDS_V1 + 8192
DROP = 0x30000
def koff(buf): return LDS_K0 if buf == 0 else LDS_K1

def qk_mfma(u, par, k, first_c=True):
    x, j = divmod(k, 4); a, c = x % 2, x // 2
    sh = (u == 0)
    D = ('v', Sb(par) + 4 * x)
    B = ('a', Q_SH + 16 * c + 4 * j) if sh else ('v', Q_OWN + 16 * c + 4 * j)
    C = (('v', (CI_SH if sh else CI_OWN) + 4 * c) if first_c else 0) if j == 0 else D
    return mfma16(D, ('a', KF + 16 * a + 4 * j), B, C)
def ones_mfma(Lreg, c, Breg): return mfma16(('a', Lreg + 4 * c), ('a', ONES), ('v', Breg), ('a', Lreg + 4 * c))
def pvsh_mfma(n):
    i, c, p = n // 4, (n // 2) % 2, n % 2
    O = ('v', O_SH + 8 * p + 4 * c)
    return mfma16(O, ('a', vf(i, p)), ('a', psh(i, c)), O)
def pv_mfma(i, par, c, p):
    O = ('v', O_OWN + 32 * c + 4 * p)
    return mfma16(O, ('a', vf(i, p)), ('v', Pb(par) + 4 * c), O)

def mfma_at(step, g):
    W, k = divmod(g, WL)
    if k < 16:
        u = W + 1; st = step
        if u == 5: u = 0; st = step + 1
        return qk_mfma(u, (st + u) % 2, k)
    idx = k - 16
    if W == 0:
        if idx == 8: return ones_mfma(L_SH, 0, PS[0])
        if idx == 17: return ones_mfma(L_SH, 1, PS[1])
        return pvsh_mfma(idx if idx < 8 else idx - 1)
    par = (step + W) % 2
    if idx == 8: return ones_mfma(L_OWN, 0, Pb(par))
    if idx == 17: return ones_mfma(L_OWN, 1, Pb(par) + 4)
    c, p = (0, idx) if idx < 8 else (1, idx - 9)
    return pv_mfma(W - 1, par, c, p)

def sm_ops(step, g):
    ops = []
    for st, i in [(step, j) for j in range(5)] + [(step + 1, 0), (step - 1, 4)]:
        rel = g + STEP * (step - st) - WL * (i - 1) - cfg.E0
        par = (st + i) % 2; S_ = Sb(par)
        if 0 <= rel <= 30 and rel % 2 == 0: ops.append(vexp(f"v{S_+rel//2}", f"v{S_+rel//2}"))
        if 3 <= rel <= 31 and rel % 4 == 3:
            m = (rel - 3) // 4
            dst = (PS[m // 4] + m % 4) if i == 0 else Pb(par) + m
            ops.append(cvtpk(f"v{dst}", f"v{S_+2*m}", f"v{S_+2*m+1}"))
    return ops

def sm_kind(g):
    o = sm_ops(2, g % STEP)
    return 'exp' if any(x.k == 'trans' for x in o) else 'cvt' if o else None

def build_mem_schedule():
    ops = []
    L = cfg.LEAD; B1, B2 = cfg.B1, cfg.B2
    def add(d, e, l):
        assert e <= l, (d, e, l)
        ops.append([d, e, l])
    for a in range(2):
        for j in range(4):
            o = 4 * a + j
            add(('K', 1, a, j), 0 + 8 + o, 34 + o - L)
            add(('K', 2, a, j), 34 + 8 + o, 68 + o - L)
            add(('K', 3, a, j), 68 + 8 + o, min(102 + o - L, B1 - L))
            add(('K', 0, a, j), max(102 + 8 + o, B1 + 1), 136 + o - L)
    def idx_of(n): return n if n < 8 else n + 1
    for i in range(4):
        for p in range(8):
            use = WL * (i + 1) + 16 + p
            late = use - L if i < 3 else min(use - L, B2 - L)
            if p < 2: early = 16 + idx_of(4 * i + 2 + p)
            elif i > 0: early = WL * i + 25 + p
            else: early = 136 + 25 + p - STEP
            for hh in range(2): add(('V', i, p, hh), early, late)
    for i in range(4):
        for c in range(2): add(('PR', i, c), B1 + 1, STEP - 1)
    sched = {s: [] for s in range(STEP)}
    for n, sl in enumerate(cfg.dk_slots): sched[sl % STEP].append(('DK', n))
    for n, sl in enumerate(cfg.dv_slots): sched[sl % STEP].append(('DV', n))
    for d, sl in zip([('PW', 0, 0), ('PW', 0, 1), ('PW', 1, 0), ('PW', 1, 1)], cfg.wr_slots): sched[sl % STEP].append(d)
    def cap(s):
        k = sm_kind(s)
        c = 0 if k == 'exp' else 1 if k == 'cvt' else 2
        if s in (B1, B2): c -= 1
        return c
    for s in sched: assert len(sched[s]) <= cap(s), (s, sched[s], cap(s))
    fixed0 = {g: list(v) for g, v in sched.items()}
    slots = []
    for g in range(STEP):
        for k in range(cap(g) - len(sched[g])): slots.append((g, k))
    by_gap = {}
    for sl in slots: by_gap.setdefault(sl[0], []).append(sl)
    def cands(e, l):
        ts = list(range(e, l + 1))
        if cfg.sched == "late": ts.reverse()
        elif cfg.sched == "mid":
            mid = (e + l) / 2; ts.sort(key=lambda t: abs(t - mid))
        busy = lambda g: cfg.excl and any(d[0] in ('DK', 'DV', 'PW') for d in fixed0[g])
        first = [sl for t in ts for sl in by_gap.get(t % STEP, []) if sl[1] == 0 and not busy(sl[0])]
        second = [sl for t in ts for sl in by_gap.get(t % STEP, []) if sl[1] > 0 and not busy(sl[0])]
        last = [sl for t in ts for sl in by_gap.get(t % STEP, []) if busy(sl[0])]
        return (first + second if cfg.spread else [sl for t in ts for sl in by_gap.get(t % STEP, []) if not busy(sl[0])]) + last
    order = sorted(range(len(ops)), key=lambda i: (ops[i][2] - ops[i][1], ops[i][2]))
    match = {}
    cand = {i: cands(ops[i][1], ops[i][2]) for i in order}
    def aug(i, seen):
        for sl in cand[i]:
            if sl not in match: match[sl] = i; return True
        for sl in cand[i]:
            if sl in seen: continue
            seen.add(sl)
            if aug(match[sl], seen): match[sl] = i; return True
        return False
    sys.setrecursionlimit(10000)
    if cfg.excl:
        full = cand
        cand = {i: [sl for sl in full[i] if not any(d[0] in ('DK', 'DV', 'PW') for d in fixed0[sl[0]])] for i in order}
        left = [i for i in order if not aug(i, set())]
        cand = full
        for i in left:
            if not aug(i, set()): raise Exception(f"cannot place {ops[i]}")
        print("ops sharing a gap with DMA/PW:", len(left))
    else:
        for i in order:
            if not aug(i, set()): raise Exception(f"cannot place {ops[i]}")
    for sl, i in match.items(): sched[sl[0]].append(ops[i][0])
    dl = {tuple(o[0]): o[2] for o in ops}
    for s in sched: sched[s].sort(key=lambda d: (1, 0) if d[0] in ('DK', 'DV', 'PW') else (0, (dl[d] - s) % STEP))
    return sched
Cfg.sched = "early"
Cfg.spread = True
Cfg.drop = ()
Cfg.excl = False
Cfg.nobar = False

MEM = LGW = None

def mem_ins(step, g, d):
    if d[0] == 'K':
        _, tp, a, j = d
        cs = step + 1 if tp == 0 else step
        buf = cs % 2
        return dsr128(('a', KF + 16 * a + 4 * j), KADDR + 4 * tp + j, koff(buf) + 4096 * a, reg=(('K', buf), cs, tp == 0) if cs < 8 else None)
    if d[0] == 'V':
        _, i, p, hh = d
        cs = step + 1 if (i == 0 and g > cfg.B2) else step
        buf = cs % 2
        return dstr(('a', vf(i, p) + 2 * hh), VADDR + 8 * i + p, buf * 32768 + hh * 4096, reg=(('V', buf), cs, i == 0) if cs < 8 else None)
    if d[0] == 'PW':
        _, c, h = d
        return dsw64(PXW, ('v', PS[c] + 2 * h), (step % 2) * 8192 + c * 1024 + h * 512, reg=(('PX', step % 2), step, True))
    if d[0] == 'PR':
        _, i, c = d
        o0 = 16 * (step % 2) + 2 * c
        return dsr2st64_64(('a', psh(i, c)), PXR + i, o0, o0 + 1, reg=(('PX', step % 2), step, i == 0))
    if d[0] == 'DK':
        n = d[1]; cs = step + 2; buf = cs % 2
        return dma(KDMA + n % 4, SK, f"s{sOff0 if n < 4 else sOff1}", 1024 * (n % 4), reg=(('K', buf), cs, True) if cs < 8 else None, flags=cfg.ld)
    if d[0] == 'DV':
        n = d[1]; cs = step + 2 if g > cfg.B2 else step + 1; buf = cs % 2
        return dma(VDMA + n % 2, SV, f"s{sOff0 if n < 4 else sOff1}", 1024 * (n % 4), reg=(('V', buf), cs, True) if cs < 8 else None, flags=cfg.ld)

def m0_val_reg(kv, buf, grp): return sM0 + (0 if kv == 'K' else 4) + 2 * buf + grp

def scalar_ops(step, g):
    o = []
    def m0(kv, buf, grp): return S("s_max_u32", "m0", f"s{m0_val_reg(kv, buf, grp)}", f"s{sKill}")
    dk, dv = [x % STEP for x in cfg.dk_slots], [x % STEP for x in cfg.dv_slots]
    if g == dk[0] - 1: o.append(m0('K', step % 2, 0))
    if g == dk[4] - 1: o.append(m0('K', step % 2, 1))
    if g == dv[0] - 1: o.append(m0('V', (step if g > cfg.B2 else step + 1) % 2, 0))
    if g == dv[4] - 1: o.append(m0('V', (step if g > cfg.B2 else step + 1) % 2, 1))
    x = cfg.inc_slot + 4
    if g == x + 1: o.append(S("s_add_u32", f"s{sOff0}", f"s{sOff0}", "0x8000"))
    if g == x + 3: o.append(S("s_add_u32", f"s{sOff1}", f"s{sOff1}", "0x8000"))
    if g == x + 5: o.append(scmp("s_cmp_ge_u32", f"s{sOff0}", "0x40000"))
    if g == x + 7: o.append(S("s_cselect_b32", f"s{sKill}", hex(DROP), 0, w_scc=False, r_scc=True))
    return o

def gap_mem(step, g): return [mem_ins(step, g, d) for d in MEM[g] if d[0] not in cfg.drop]

def compute_lgkm_waits():
    seq = []; prod = {}; covered = -1; res = {}
    for t in range(0, 6 * STEP):
        st, sl = divmod(t, STEP)
        nst, nsl = divmod(t + 1, STEP)
        nm = mfma_at(nst, nsl)
        need = max([prod.get(r, -1) for r in nm.x['AB']] + [-1])
        if sl == cfg.B1: need = max([need] + [i for i, (tt, d) in enumerate(seq) if d in ('K', 'PW')])
        if sl == cfg.B2: need = max([need] + [i for i, (tt, d) in enumerate(seq) if d == 'V'])
        n = None
        if need > covered:
            tgt = need
            for i in range(len(seq) - 1, -1, -1):
                if seq[i][0] <= t - cfg.LAG: tgt = max(tgt, i); break
            n = len(seq) - 1 - tgt
            if n > 15: tgt = len(seq) - 1 - 15; n = 15
            covered = tgt
        res[(st, sl)] = n
        for d in MEM[sl]:
            if d[0] in ('DK', 'DV') or d[0] in cfg.drop: continue
            ins = mem_ins(2 + st % 2, sl, d)
            seq.append((t, d[0]))
            for r in ins.w: prod[r] = len(seq) - 1
    out = {}
    for sl in range(STEP):
        assert len({res[(s, sl)] for s in range(2, 6)}) == 1
        out[sl] = res[(4, sl)]
    return out

def gap(step, g, part='all'):
    head = [mfma_at(step, g)]
    n = LGW[g]
    if g == cfg.B1 or g == cfg.B2:
        head.append(wait(vm=8 if not cfg.drop.count('DK') else None, lg=n if n is not None else (None if not cfg.drop.count('DK') else 15)))
        if not cfg.nobar: head.append(barrier())
    elif n is not None: head.append(wait(lg=n))
    head += scalar_ops(step, g)
    rest = gap_mem(step, g) + sm_ops(step, g)
    return head if part == 'head' else rest if part == 'rest' else head + rest

ENTRY = 15
EXIT = 135

def body_iter(st0, last=False):
    o = []
    o += gap(st0, ENTRY, 'rest')
    for s in range(ENTRY + 1, STEP): o += gap(st0, s)
    for s in range(0, EXIT):
        g = gap(st0 + 1, s)
        if s == EXIT - 2:
            g = gap(st0 + 1, s, 'head') + [scmp("s_cmp_eq_u32", f"s{sOff0}", hex(9 * 32768))] + gap(st0 + 1, s, 'rest')
        o += g
    o += gap(st0 + 1, EXIT, 'head') + [branch("s_cbranch_scc1", "L_exit", ['scc'])]
    if last: return o
    o += gap(st0 + 1, EXIT, 'rest')
    for s in range(EXIT + 1, STEP): o += gap(st0 + 1, s)
    for s in range(0, ENTRY): o += gap(st0 + 2, s)
    o += gap(st0 + 2, ENTRY, 'head') + [branch("s_branch", "L_loop")]
    return o

def scale4(src, tmp, pk=False):
    o = []
    for i in range(4): o.append(V("v_lshlrev_b32", f"v{tmp+2*i}", 16, f"v{src+i}"))
    for i in range(4): o.append(V("v_and_b32", f"v{tmp+2*i+1}", f"s{sMask}", f"v{src+i}"))
    if pk:
        for i in range(4): o.append(V("v_pk_mul_f32", f"v[{tmp+2*i}:{tmp+2*i+1}]", f"v[{tmp+2*i}:{tmp+2*i+1}]", f"s[{sC2}:{sC2+1}]"))
    else:
        for i in range(4): o.append(vmul(f"v{tmp+2*i}", f"s{sC}", f"v{tmp+2*i}"))
        for i in range(4): o.append(vmul(f"v{tmp+2*i+1}", f"s{sC}", f"v{tmp+2*i+1}"))
    for i in range(4): o.append(cvtpk(f"v{src+i}", f"v{tmp+2*i}", f"v{tmp+2*i+1}"))
    return o

def rowmax16(Sbase, t):
    o = []
    for c in range(2):
        b = Sbase + 8 * c
        o.append(V("v_max3_f32", f"v{t+2*c}", f"v{b}", f"v{b+1}", f"v{b+2}"))
        o.append(V("v_max3_f32", f"v{t+2*c+1}", f"v{b+3}", f"v{b+4}", f"v{b+5}"))
    for c in range(2):
        b = Sbase + 8 * c
        o.append(V("v_max3_f32", f"v{t+2*c}", f"v{t+2*c}", f"v{b+6}", f"v{b+7}"))
    for c in range(2): o.append(V("v_max_f32", f"v{t+2*c}", f"v{t+2*c}", f"v{t+2*c+1}"))
    for sw in (swap16, swap32):
        for c in range(2): o.append(vmov(f"v{t+2*c+1}", f"v{t+2*c}"))
        o.append(nop(0))
        for c in range(2): o.append(sw(f"v{t+2*c}", f"v{t+2*c+1}"))
        dst = [f"v{t}", f"v{t+2}"] if sw is swap16 else [f"v{MM}", f"v{MM+1}"]
        for c in range(2): o.append(V("v_max_f32", dst[c], f"v{t+2*c}", f"v{t+2*c+1}"))
    return o

def shift_by_max(Sbase, CI):
    o = []
    for x in range(4): o.append(mfma16_f32(('v', Sbase + 4 * x), VQRT, MM + x // 2, ('v', Sbase + 4 * x)))
    for c in range(2): o.append(mfma16_f32(('v', CI + 4 * c), VQRT, MM + c, 0))
    return o

def dense(ops):
    out = list(ops)
    i = 0
    while i < len(out) - 1:
        if out[i].k == 'trans' and out[i + 1].k == 'valu' and set(out[i].w) & set(out[i + 1].r):
            if i + 2 < len(out) and out[i + 2].k == 'trans': out[i + 1], out[i + 2] = out[i + 2], out[i + 1]; i += 1
            else: out.insert(i + 1, nop(0))
        i += 1
    return out

def stamp(idx, fine=0):
    if not cfg.stamps: return []
    if cfg.fine == 9 and idx != 0: return []
    if cfg.fine != fine and idx not in (0, 8, 9): return []
    return [raw(f"s_memtime s[{60+2*idx}:{61+2*idx}]", 'stampi')]

def prologue():
    o = []
    vmlist = []
    def a(x, tag=None):
        o.append(x)
        if x.k in ('vload', 'dma', 'vstore'): vmlist.append(tag)
    def wait_for(tag):
        last = max(i for i, t in enumerate(vmlist) if t == tag)
        return wait(vm=len(vmlist) - 1 - last)
    a(scmp("s_cmp_ge_u32", "s2", 256)); a(branch("s_cbranch_scc1", "L_end", ['scc']))
    a(raw("s_load_dwordx4 s[36:39], s[0:1], 0", 'smem', [], R('s', 36, 4)))
    a(raw("s_load_dwordx4 s[40:43], s[0:1], 16", 'smem', [], R('s', 40, 4)))
    if cfg.stamps:
        a(raw("s_load_dwordx2 s[58:59], s[0:1], 32", 'smem', [], R('s', 58, 2)))
        o += stamp(0)
        a(raw("s_memrealtime s[82:83]", 'stampi'))
    a(V("v_lshrrev_b32", "v1", 6, "v0"))
    a(V("v_and_b32", "v2", 63, "v0"))
    a(readfirst(f"s{sW}", "v1"))
    a(V("v_lshrrev_b32", "v3", 4, "v2"))
    a(V("v_and_b32", "v4", 15, "v2"))
    a(V("v_lshlrev_b32", f"v{VLIN}", 4, "v2"))
    a(S("s_and_b32", f"s{sT}", "s2", 7))
    a(S("s_lshr_b32", f"s{sT+1}", "s2", 3))
    a(S("s_lshr_b32", f"s{sT+2}", "s2", 5))
    a(S("s_lshl_b32", f"s{sW8192}", f"s{sW}", 13))
    a(S("s_lshl_b32", f"s{sT+3}", f"s{sT}", 5)); a(S("s_add_u32", f"s{sT+3}", f"s{sT+3}", f"s{sT+1}"))
    a(S("s_mul_i32", f"s{sT+3}", f"s{sT+3}", 40960, w_scc=False))
    a(S("s_lshl_b32", f"s{sT+4}", f"s{sT}", 3)); a(S("s_add_u32", f"s{sT+4}", f"s{sT+4}", f"s{sT+2}"))
    a(S("s_lshl_b32", f"s{sT+4}", f"s{sT+4}", 18))
    a(V("v_xor_b32", "v5", "v3", "v4"))
    a(V("v_lshlrev_b32", "v5", 4, "v5"))
    a(V("v_lshl_add_u32", "v7", "v3", 8, "v5"))
    a(V("v_lshl_add_u32", "v6", "v4", 8, "v5"))
    a(V("v_add_u32", f"v{KDMA}", f"s{sW8192}", "v7"))
    for k in range(1, 4): a(V("v_xor_b32", f"v{KDMA+k}", 64 * k, f"v{KDMA}"))
    a(S("s_lshl_b32", f"s{sQS}", f"s{sW}", 11)); a(S("s_add_u32", f"s{sQS}", f"s{sQS}", 32768))
    a(S("s_add_u32", f"s{sQO1}", f"s{sW8192}", 4096))
    a(smov(f"s{sOff0}", 0)); a(smov(f"s{sOff1}", 4096))
    a(S("s_add_u32", "m0", f"s{sW8192}", LDS_K0))
    SA, SB = Sb(0), Sb(1)
    QW = CI_SH
    TS = CI_SH + 2
    MXV = CI_OWN
    TW = SB + 8
    TR = SB
    TMPS = P
    for e in range(2):
        a(S("s_lshl_b32", f"s{sT}", f"s{sW}", 1)); a(S("s_add_u32", f"s{sT}", f"s{sT}", e))
        a(S("s_and_b32", f"s{sT+1}", f"s{sT}", 3)); a(S("s_lshl_b32", f"s{sT+1}", f"s{sT+1}", 6))
        a(S("s_lshl_b32", f"s{sT}", f"s{sT}", 10)); a(S("s_add_u32", f"s{sT}", f"s{sT}", LDS_QS))
        a(V("v_xor_b32", f"v{QW+e}", f"s{sT+1}", "v7")); a(V("v_add_u32", f"v{QW+e}", f"s{sT}", f"v{QW+e}"))
    a(V("v_add_u32", f"v{TS}", LDS_QS, "v6"))
    for j in range(1, 4): a(V("v_xor_b32", f"v{TS+j}", 64 * j, f"v{TS}"))
    a(V("v_add_u32", f"v{KADDR}", f"s{sW8192}", "v6"))
    for j in range(1, 4): a(V("v_xor_b32", f"v{KADDR+j}", 64 * j, f"v{KADDR}"))
    a(smov(f"s{sC}", hex(SCALE_BITS))); a(smov(f"s{sMask}", "0xffff0000"))
    a(smov(f"s{sC2}", hex(SCALE_BITS))); a(smov(f"s{sC2+1}", hex(SCALE_BITS)))
    a(wait(lg=0))
    def srd(base, p, off, n):
        a(S("s_add_u32", f"s{base}", f"s{p}", f"s{off}")); a(S("s_addc_u32", f"s{base+1}", f"s{p+1}", 0, r_scc=True))
        a(S("s_and_b32", f"s{base+1}", f"s{base+1}", "0xffff"))
        a(smov(f"s{base+2}", n)); a(smov(f"s{base+3}", "0x20000"))
    o += stamp(1, 1)
    srd(SQ, 36, sT + 3, 40960)
    for e in range(2): a(vload(('v', SA + 4 * e), 4, VLIN, SQ, f"s{sQS}", 1024 * e, cfg.qld), "QS")
    srd(SK, 38, sT + 4, 262144)
    for n in range(4): a(dma(KDMA + n, SK, f"s{sOff0}", 1024 * n, reg=(('K', 0), 0, True), flags=cfg.ld), "K0")
    a(S("s_add_u32", "m0", f"s{sW8192}", LDS_K0 + 4096)); a(nop(0))
    for n in range(4): a(dma(KDMA + n, SK, f"s{sOff1}", 1024 * n, reg=(('K', 0), 0, True), flags=cfg.ld), "K0")
    o += stamp(2, 1)
    def qown(n0, n1):
        for n in range(n0, n1): a(vload(('v', Q_OWN + 4 * n), 4, VLIN, SQ, f"s{sW8192 if n < 4 else sQO1}", 1024 * (n % 4), cfg.qld), f"QO{n}")
    qown(0, cfg.qsplit)
    o += stamp(1); o += stamp(3, 1)
    srd(SV, 40, sT + 4, 262144)
    srd(SO, 42, sT + 3, 40960)
    a(V("v_lshlrev_b32", "v1", 1, "v3")); a(V("v_xor_b32", "v1", "v1", "v4"))
    a(V("v_lshlrev_b32", "v1", 4, "v1")); a(V("v_lshl_add_u32", "v1", "v3", 8, "v1"))
    a(V("v_add_u32", f"v{VDMA}", f"s{sW8192}", "v1")); a(V("v_xor_b32", f"v{VDMA+1}", 128, f"v{VDMA}"))
    for i in range(1, 4):
        a(S("s_add_u32", f"s{sT+i}", f"s{sW}", i)); a(S("s_and_b32", f"s{sT+i}", f"s{sT+i}", 3))
        a(S("s_lshl_b32", f"s{56+i}", f"s{sT+i}", 11))
        a(S("s_sub_u32", f"s{sT+i}", f"s{sT+i}", f"s{sW}")); a(S("s_lshl_b32", f"s{sT+i}", f"s{sT+i}", 13))
    for i in range(1, 4):
        for j in range(4): a(V("v_add_u32", f"v{KADDR+4*i+j}", f"s{sT+i}", f"v{KADDR+j}"))
    for k in range(4): a(V("v_add_u32", f"v{TW+k}", LDS_X, f"v{KDMA+k}"))
    for j in range(4): a(V("v_add_u32", f"v{TR+j}", LDS_X, f"v{KADDR+j}"))
    a(V("v_lshrrev_b32", "v1", 2, "v4")); a(V("v_lshl_add_u32", "v1", "v3", 2, "v1"))
    a(V("v_and_b32", "v5", 7, "v1"))
    a(S("s_lshl_b32", f"s{sT}", f"s{sW}", 1)); a(V("v_xor_b32", "v5", f"s{sT}", "v5"))
    a(V("v_lshlrev_b32", "v5", 5, "v5")); a(V("v_lshl_add_u32", "v5", "v1", 8, "v5"))
    a(V("v_and_b32", "v1", 3, "v4")); a(V("v_lshl_add_u32", "v5", "v1", 3, "v5"))
    a(S("s_add_u32", f"s{sT+4}", f"s{sW8192}", LDS_V0))
    a(V("v_add_u32", f"v{VADDR}", f"s{sT+4}", "v5"))
    for p in range(1, 8): a(V("v_xor_b32", f"v{VADDR+p}", 32 * p, f"v{VADDR}"))
    for i in range(1, 4):
        for p in range(8): a(V("v_add_u32", f"v{VADDR+8*i+p}", f"s{sT+i}", f"v{VADDR+p}"))
    a(S("s_lshl_b32", "s56", f"s{sW}", 11)); a(S("s_add_u32", f"s{sT}", "s56", LDS_PX))
    a(V("v_lshrrev_b32", "v1", 1, f"v{VLIN}")); a(V("v_add_u32", f"v{PXW}", f"s{sT}", "v1"))
    a(V("v_lshrrev_b32", "v5", 2, f"v{VLIN}"))
    a(S("s_lshl_b32", f"s{sT}", f"s{sW}", 9)); a(S("s_add_u32", f"s{sT}", f"s{sT}", LDS_ML))
    a(V("v_add_u32", f"v{MLW}", f"s{sT}", "v5"))
    a(S("s_lshl_b32", f"s{sT}", f"s{sW}", 9)); a(S("s_add_u32", f"s{sT}", f"s{sT}", LDS_MX))
    a(V("v_add_u32", f"v{MXW}", f"s{sT}", "v1")); a(V("v_add_u32", f"v{MXR}", LDS_MX, "v1"))
    a(V("v_and_b32", "v5", 31, "v2")); a(V("v_lshrrev_b32", "v6", 5, "v2"))
    a(V("v_lshlrev_b32", f"v{VQ}", 4, "v6")); a(V("v_lshl_add_u32", f"v{VQ}", "v5", 8, f"v{VQ}"))
    a(vmov(f"v{VQRT}", "0xbe800000"))
    a(vmov("v2", "0x3f803f80"))
    for i in range(4): a(accw(f"a{ONES+i}", "v2"))
    for i in range(4): a(vmov(f"v{P+i}", 0))
    a(V("v_add_u32", "v1", LDS_PX, "v1"))
    for i in range(4): a(V("v_add_u32", f"v{PXR+i}", f"s{56+i}", "v1"))
    for kv, b0, b1 in (('K', LDS_K0, LDS_K1), ('V', LDS_V0, LDS_V1)):
        for buf, base in ((0, b0), (1, b1)):
            for grp in range(2):
                a(S("s_add_u32", f"s{m0_val_reg(kv, buf, grp)}", f"s{sW8192}", base + grp * 4096))
    a(smov(f"s{sKill}", 0))
    for db in range(5): a(mfma(('v', O_OWN + 16 * db), ('v', P), ('v', P), 0))
    for b in (VF0, VF0 + 16, PSH, PSH + 16, L_OWN): a(mfma(('a', b), ('v', P), ('v', P), 0))
    o += stamp(2); o += stamp(4, 1)
    qown(cfg.qsplit, 8)
    a(wait_for("QS"))
    o += stamp(5, 1)
    o += scale4(SA, TMPS, pk=True) + scale4(SA + 4, TMPS + 8, pk=True)
    for e in range(2): a(dsw128(QW + e, ('v', SA + 4 * e), 0, reg=(('QS', 0), 'qs', False)))
    a(wait_for("K0"))
    for aa in range(2):
        for j in range(4): a(dsr128(('a', KF + 16 * aa + 4 * j), KADDR + j, koff(0) + 4096 * aa, reg=(('K', 0), 0, True)))
    a(wait(lg=8)); a(barrier())
    for c in range(2):
        for j in range(4): a(dsr128(('a', Q_SH + 16 * c + 4 * j), TS + j, 4096 * c, reg=(('QS', 0), 'qs', False)))
    o += stamp(6, 1)
    for k in range(16):
        if k < 4: a(wait(lg=7 - k))
        if k == 8: a(wait(lg=0))
        a(qk_mfma(0, 0, k, first_c=False))
    o += stamp(3); o += stamp(7, 1)
    def piece(n, pk):
        a(wait_for(f"QO{n}"))
        o.extend(scale4(Q_OWN + 4 * n, TMPS + 8 * (n % 2), pk=pk))
        a(dsw128(TW + n % 4, ('v', Q_OWN + 4 * n), 1024 * n, reg=(('QO', 0), 'qo', True)))
    a(smov(f"s{sOff0}", 0)); a(smov(f"s{sOff1}", 4096))
    def vdma(buf, content, tag, only=None):
        for grp in range(2):
            a(S("s_mov_b32", "m0", f"s{m0_val_reg('V', buf, grp)}", w_scc=False)); a(nop(0))
            for n in range(4):
                if only is None or only(4 * grp + n):
                    a(dma(VDMA + n % 2, SV, f"s{sOff0 if grp == 0 else sOff1}", 1024 * n, reg=(('V', buf), content, True), flags=cfg.ld), tag)
    a(nop(4))
    o += rowmax16(SA, 4 + 0 if False else TMPS)
    a(dsw64(MXW, ('v', MM), 0, reg=(('MX', 0), 'mx', False)))
    a(wait(lg=0)); a(barrier())
    for x in range(4): a(dsr64(('v', MXV + 2 * x), MXR, 512 * x, reg=(('MX', 0), 'mx', False)))
    o += stamp(4)
    a(wait(lg=0))
    for c in range(2):
        a(V("v_max3_f32", f"v{MM+c}", f"v{MXV+c}", f"v{MXV+2+c}", f"v{MXV+4+c}"))
    for c in range(2): a(V("v_max_f32", f"v{MM+c}", f"v{MM+c}", f"v{MXV+6+c}"))
    a(nop(1))
    o += shift_by_max(SA, CI_SH)
    piece(0, False); piece(1, False)
    piece(2, True); piece(3, True)
    vdma(0, 0, "V0")
    def sm_range(s0, s1):
        q = []
        for s in range(s0, s1):
            st, sl = (0, s) if s >= 0 else (-1, s + STEP)
            q += [x for x in sm_ops(st, sl) if st == 0 or not (set(x.w) | set(x.r)) & set(R('v', SB, 16) + R('v', Pb(1), 8))]
        return q
    smq = dense(sm_range(cfg.E0 - WL, cfg.E0))
    for n in range(4, 8):
        piece(n, True)
        o += smq[3 * (n - 4):3 * (n - 4) + 3]
    smq = smq[12:]
    o += stamp(5)
    a(smov(f"s{sOff0}", 32768)); a(smov(f"s{sOff1}", 32768 + 4096))
    a(wait(lg=0))
    for c in range(2):
        for j in range(4): a(dsr128(('v', Q_OWN + 16 * c + 4 * j), TR + j, 4096 * c, reg=(('QO', 0), 'qo', True)))
    for grp in range(2):
        a(S("s_mov_b32", "m0", f"s{m0_val_reg('K', 1, grp)}", w_scc=False)); a(nop(0))
        for k in range(4): a(dma(KDMA + k, SK, f"s{sOff0 if grp == 0 else sOff1}", 1024 * k, reg=(('K', 1), 1, True), flags=cfg.ld), "K1")
    for k in range(16):
        if k < 4: a(wait(lg=7 - k))
        if k == 8: a(wait(lg=0))
        a(qk_mfma(1, 1, k, first_c=False))
        o += smq[k:k + 1]
    assert len(smq) <= 16
    o += stamp(6)
    a(wait_for("V0"))
    a(barrier())
    def v1_in_prologue(n):
        gp = [sl for sl in range(STEP) if ('DV', n) in MEM[sl]][0]
        return gp > cfg.B2 or gp < ENTRY
    vdma(1, 1, "V1", v1_in_prologue)
    pre = []
    for st, rng in ((-1, range(cfg.B2 + 1, STEP)), (0, range(0, ENTRY))):
        for sl in rng:
            for d in MEM[sl]:
                if d[0] == 'V' and (st == 0 or d[1] == 0): pre.append(mem_ins(st, sl, d))
                elif d[0] == 'K' and st == 0: pre.append(mem_ins(st, sl, d))
    head = dense(sm_range(cfg.E0, ENTRY))
    o += rowmax16(SB, TMPS + 8)
    a(nop(1))
    o += shift_by_max(SB, CI_OWN)
    o += pre
    if len(pre) < 10: a(nop(10 - len(pre)))
    o += head
    a(wait(lg=0))
    o += stamp(7)
    if cfg.stamps: a(raw("s_memrealtime s[86:87]", 'stampi'))
    return o

def epilogue():
    o = []; a = o.append
    st = 7
    SF = cfg.store_flags
    par = (st + 4) % 2
    for s in range(EXIT, STEP):
        for d in MEM[s]:
            if (d[0] == 'V' and d[1] == 3) or d[0] == 'PR': a(mem_ins(st, s, d))
    MLR = (('ML', 0), 'ml', False)
    for c in range(2): a(I(f"ds_write_b32 v{MLW}, a{L_SH+4*c}" + (f" offset:{256*c}" if c else ""), 'dsw', [f"v{MLW}", f"a{L_SH+4*c}"], [], reg=MLR))
    tail = []
    for s in range(EXIT, STEP): tail += [x for x in sm_ops(st, s) if not (set(x.w) | set(x.r)) & set(R('v', Sb(1 - par), 16))]
    o += dense(tail)
    LR = CI_OWN
    a(V("v_lshrrev_b32", "v1", 2, f"v{VLIN}")); a(V("v_add_u32", "v1", LDS_ML, "v1"))
    a(wait(lg=0)); a(barrier())
    for c in range(2):
        for h in range(2):
            a(I(f"ds_read2st64_b32 v[{LR+4*c+2*h}:{LR+4*c+2*h+1}], v1 offset0:{4*h+c} offset1:{4*h+2+c}", 'dsr', ["v1"], R('v', LR + 4 * c + 2 * h, 2), reg=MLR))
    adr = []; b_ = adr.append
    b_(V("v_bfe_u32", "v2", f"v{VLIN}", 4, 4)); b_(V("v_lshrrev_b32", "v3", 8, f"v{VLIN}"))
    b_(V("v_mul_u32_u24", "v2", 272, "v2")); b_(V("v_lshl_add_u32", "v2", "v3", 3, "v2"))
    b_(S("s_mul_i32", f"s{sT}", f"s{sW}", 8704, w_scc=False))
    b_(V("v_add_u32", "v2", f"s{sT}", "v2"))
    b_(V("v_lshl_add_u32", "v3", "v3", 4, f"v{VLIN}")); b_(V("v_add_u32", "v3", f"s{sT}", "v3"))
    for h in range(4):
        b_(S("s_xor_b32", f"s{sT+1}", f"s{sW}", h)); b_(S("s_lshl_b32", f"s{sT+1}", f"s{sT+1}", 6))
        b_(V("v_add_u32", f"v{PXR+h}", f"s{sT+1}", "v2"))
    mm = [ones_mfma(L_OWN, 0, Pb(par))] + [pv_mfma(3, par, 0, p) for p in range(8)] + \
         [ones_mfma(L_OWN, 1, Pb(par) + 4)] + [pv_mfma(3, par, 1, p) for p in range(8)] + [pvsh_mfma(n) for n in range(16)]
    k = 0
    for n, m in enumerate(mm):
        a(m)
        o += adr[k:k + 2]; k += 2
        if n == 19:
            a(wait(lg=0))
            for c in range(2): a(accr(f"v{P+c}", f"a{L_OWN+4*c}"))
            for c in range(2):
                a(vadd(f"v{LR+4*c}", f"v{LR+4*c}", f"v{LR+4*c+1}")); a(vadd(f"v{LR+4*c+2}", f"v{LR+4*c+2}", f"v{LR+4*c+3}"))
        if n == 21:
            for c in range(2): a(vadd(f"v{LR+4*c}", f"v{LR+4*c}", f"v{LR+4*c+2}"))
            a(smov(f"s{sT+2}", hex(cfg.thresh)))
            for c in range(2): a(vrcp(f"v{P+2+c}", f"v{P+c}"))
        if n == 23:
            for c in range(2): a(vrcp(f"v{P+4+c}", f"v{LR+4*c}"))
            a(vcmp("v_cmp_nle_f32", "s[52:53]", f"v{P}", f"s{sT+2}")); a(vcmp("v_cmp_nle_f32", "s[56:57]", f"v{P+1}", f"s{sT+2}"))
        if n == 25:
            a(raw("s_or_b64 s[52:53], s[52:53], s[56:57]", 'salu', ['s52', 's53', 's56', 's57'], ['s52', 's53', 'scc']))
            a(vcmp("v_cmp_nle_f32", "s[54:55]", f"v{LR}", f"s{sT+2}")); a(vcmp("v_cmp_nle_f32", "s[56:57]", f"v{LR+4}", f"s{sT+2}"))
        if n == 27:
            a(raw("s_or_b64 s[54:55], s[54:55], s[56:57]", 'salu', ['s54', 's55', 's56', 's57'], ['s54', 's55', 'scc']))
    o += adr[k:]
    if cfg.force_slow:
        a(raw("s_mov_b64 s[54:55], -1", 'salu', [], ['s54', 's55'])); a(raw("s_mov_b64 s[52:53], -1", 'salu', [], ['s52', 's53']))
    o += stamp(1, 2)
    a(scmp("s_cmp_lg_u64", "s[52:53]", 0))
    a(branch("s_cbranch_scc1", "L_skip_own", ['scc']))
    RI = P + 2
    for c in range(2):
        for p in range(8):
            b = O_OWN + 32 * c + 4 * p
            sel = "op_sel:[0,0] op_sel_hi:[1,0]" if c == 0 else "op_sel:[0,1] op_sel_hi:[1,1]"
            for i in (0, 2): a(V("v_pk_mul_f32", f"v[{b+i}:{b+i+1}]", f"v[{b+i}:{b+i+1}]", f"v[{RI}:{RI+1}]", mods=sel))
            a(cvtpk(f"v{b}", f"v{b}", f"v{b+1}")); a(cvtpk(f"v{b+1}", f"v{b+2}", f"v{b+3}"))
            a(dsw64(PXR + (p >> 1), ('v', b), (p & 1) * 32 + c * 4352, reg=(('OT', 0), 'ot', True)))
    a(S("s_add_u32", f"s{sT+1}", f"s{sW8192}", 4096))
    o += stamp(3, 2)
    a(wait(lg=0))
    o += stamp(4, 2)
    for n in range(8): a(dsr128(('v', S0 + 4 * n), 3, 1088 * n, reg=(('OT', 0), 'ot', True)))
    for n in range(8):
        a(wait(lg=7 - n))
        a(vstore(('v', S0 + 4 * n), 4, VLIN, SO, f"s{sW8192 if n < 4 else sT+1}", 1024 * (n % 4), SF))
    a(label("L_skip_own"))
    o += stamp(2, 2)
    a(scmp("s_cmp_lg_u64", "s[54:55]", 0))
    a(branch("s_cbranch_scc1", "L_skip_sh", ['scc']))
    a(V("v_bfe_u32", "v2", f"v{VLIN}", 4, 4)); a(V("v_lshrrev_b32", "v3", 8, f"v{VLIN}"))
    a(V("v_mul_u32_u24", "v2", 80, "v2")); a(V("v_lshl_add_u32", "v2", "v3", 3, "v2"))
    a(S("s_add_u32", f"s{sT}", f"s{sW8192}", LDS_V0)); a(V("v_add_u32", "v2", f"s{sT}", "v2"))
    for p in range(2):
        for c in range(2):
            b = O_SH + 8 * p + 4 * c
            sel = "op_sel:[0,0] op_sel_hi:[1,0]" if c == 0 else "op_sel:[0,1] op_sel_hi:[1,1]"
            for i in (0, 2): a(V("v_pk_mul_f32", f"v[{b+i}:{b+i+1}]", f"v[{b+i}:{b+i+1}]", f"v[{P+4}:{P+5}]", mods=sel))
            a(cvtpk(f"v{b}", f"v{b}", f"v{b+1}")); a(cvtpk(f"v{b+1}", f"v{b+2}", f"v{b+3}"))
            a(dsw64(2, ('v', b), p * 32 + c * 1280, reg=(('ST', 0), 'st', True)))
    a(V("v_lshrrev_b32", "v3", 6, f"v{VLIN}")); a(V("v_bfe_u32", "v4", f"v{VLIN}", 4, 2))
    a(V("v_mul_u32_u24", "v5", 80, "v3")); a(V("v_lshl_add_u32", "v5", "v4", 4, "v5")); a(V("v_add_u32", "v5", f"s{sT}", "v5"))
    a(V("v_lshlrev_b32", "v6", 8, "v3")); a(V("v_lshl_add_u32", "v6", "v4", 4, "v6"))
    a(S("s_lshl_b32", f"s{sT+1}", f"s{sW}", 6)); a(S("s_add_u32", f"s{sT+1}", f"s{sT+1}", 32768)); a(S("s_add_u32", f"s{sT+2}", f"s{sT+1}", 4096))
    a(wait(lg=0))
    for n in range(2): a(dsr128(('v', O_SH + 4 * n), 5, 1280 * n, reg=(('ST', 0), 'st', True)))
    for n in range(2):
        a(wait(lg=1 - n))
        a(vstore(('v', O_SH + 4 * n), 4, 6, SO, f"s{sT+1+n}", 0, SF))
    a(label("L_skip_sh"))
    o += stamp(9)
    a(raw("s_or_b64 s[56:57], s[52:53], s[54:55]", 'salu', ['s52', 's53', 's54', 's55'], ['s56', 's57', 'scc']))
    a(branch("s_cbranch_scc1", "L_slow", ['scc']))
    return o

def store_tile_rows(Oreg, rinv, soff):
    o = []
    for db in range(4):
        b = Oreg + 16 * db
        for i in range(16): o.append(vmul(f"v{b+i}", f"v{rinv}", f"v{b+i}"))
        for m in range(8): o.append(cvtpk(f"v{b+m}", f"v{b+2*m}", f"v{b+2*m+1}"))
        for pr in range(2):
            r0 = b + 4 * pr
            o.append(swap32(f"v{r0}", f"v{r0+2}")); o.append(swap32(f"v{r0+1}", f"v{r0+3}"))
        for pr in range(2): o.append(vstore(('v', b + 4 * pr), 4, VQ, SO, soff, db * 64 + pr * 32))
    return o

def slow_path():
    o = []; a = o.append
    Kr, Sr, Vr, Or, Pr = 80, 112, 128, O_OWN, 72
    mreg, lreg = SLM, SLL
    a(label("L_slow"))
    a(wait(vm=0, lg=0))
    a(scmp("s_cmp_lg_u64", "s[52:53]", 0)); a(branch("s_cbranch_scc0", "L_slow_sh", ['scc']))
    a(smov("s33", f"s{sW8192}"))
    a(raw("s_mov_b64 s[52:53], 0", 'salu', [], ['s52', 's53']))
    a(branch("s_branch", "L_slow_tile"))
    a(label("L_slow_sh"))
    a(scmp("s_cmp_lg_u64", "s[54:55]", 0)); a(branch("s_cbranch_scc0", "L_end", ['scc']))
    a(scmp("s_cmp_lg_u32", f"s{sW}", 0)); a(branch("s_cbranch_scc1", "L_end", ['scc']))
    a(smov("s33", 32768))
    a(raw("s_mov_b64 s[54:55], 0", 'salu', [], ['s54', 's55']))
    a(label("L_slow_tile"))
    for j in range(8): a(vload(('v', Q_OWN + 4 * j), 4, VQ, SQ, "s33", 32 * j))
    a(wait(vm=0))
    for g in range(8): o.extend(scale4(Q_OWN + 4 * g, 240, pk=False))
    a(vmov(f"v{mreg}", "0xff800000"))
    def qk():
        for j in range(8): a(vload(('v', Kr + 4 * j), 4, VQ, SK, "s34", 32 * j))
        a(wait(vm=0))
        for j in range(8): a(mfma(('v', Sr), ('v', Kr + 4 * j), ('v', Q_OWN + 4 * j), 0 if j == 0 else ('v', Sr)))
        a(nop(15))
    a(smov("s34", 0))
    a(label("L_slow_p1"))
    qk()
    for i in range(16): a(V("v_max_f32", f"v{mreg}", f"v{mreg}", f"v{Sr+i}"))
    a(S("s_add_u32", "s34", "s34", 8192)); a(scmp("s_cmp_lt_u32", "s34", 262144)); a(branch("s_cbranch_scc1", "L_slow_p1", ['scc']))
    a(vmov("v1", f"v{mreg}")); a(nop(1)); a(swap32(f"v{mreg}", "v1")); a(V("v_max_f32", f"v{mreg}", f"v{mreg}", "v1"))
    a(vmov(f"v{lreg}", 0))
    for i in range(64): a(vmov(f"v{Or+i}", 0))
    a(V("v_lshrrev_b32", "v2", 8, f"v{VQ}"))
    a(V("v_bfe_u32", "v3", f"v{VQ}", 4, 1))
    a(V("v_lshlrev_b32", "v2", 1, "v2")); a(V("v_lshl_add_u32", "v2", "v3", 10, "v2"))
    a(smov("s34", 0))
    a(label("L_slow_p2"))
    qk()
    for i in range(16): a(V("v_sub_f32", f"v{Sr+i}", f"v{Sr+i}", f"v{mreg}"))
    for i in range(16): a(vexp(f"v{Sr+i}", f"v{Sr+i}"))
    a(nop(0))
    for i in range(16): a(vadd(f"v{lreg}", f"v{lreg}", f"v{Sr+i}"))
    for m in range(8): a(cvtpk(f"v{Pr+m}", f"v{Sr+2*m}", f"v{Sr+2*m+1}"))
    for ks in range(2):
        a(S("s_add_u32", "s35", "s34", ks * 4096))
        for db in range(4):
            for r in range(4):
                for e in range(2):
                    j = 2 * r + e
                    off = (8 * (j // 4) + j % 4) * 256 + db * 64
                    a(vload(('v', Kr + 8 * db + 2 * r + e), 1, 2, SV, "s35", off, op="buffer_load_ushort"))
        a(wait(vm=0))
        for db in range(4):
            for r in range(4): a(V("v_lshl_or_b32", f"v{Vr+4*db+r}", f"v{Kr+8*db+2*r+1}", 16, f"v{Kr+8*db+2*r}"))
        a(nop(1))
        for db in range(4): a(mfma(('v', Or + 16 * db), ('v', Vr + 4 * db), ('v', Pr + 4 * ks), ('v', Or + 16 * db)))
        a(nop(7))
    a(S("s_add_u32", "s34", "s34", 8192)); a(scmp("s_cmp_lt_u32", "s34", 262144)); a(branch("s_cbranch_scc1", "L_slow_p2", ['scc']))
    a(nop(15))
    a(vmov("v1", f"v{lreg}")); a(nop(1)); a(swap32(f"v{lreg}", "v1")); a(vadd(f"v{lreg}", f"v{lreg}", "v1"))
    a(vrcp("v5", f"v{lreg}")); a(nop(0))
    o += store_tile_rows(Or, 5, "s33")
    a(wait(vm=0))
    a(branch("s_branch", "L_slow_sh"))
    return o

def stamp_out():
    o = []
    if not cfg.stamps: return o
    a = o.append
    a(raw("s_waitcnt vmcnt(0)", 'wait', vm=0)); o += [raw("s_memtime s[80:81]", 'stampi'), raw("s_memrealtime s[84:85]", 'stampi')]
    a(raw("s_waitcnt lgkmcnt(0)", 'wait', lg=0))
    if cfg.stamp_wg >= 0:
        a(scmp("s_cmp_lg_u32", "s2", cfg.stamp_wg)); a(branch("s_cbranch_scc1", "L_end", ['scc']))
        a(scmp("s_cmp_lg_u32", f"s{sW}", 0)); a(branch("s_cbranch_scc1", "L_end", ['scc']))
        a(vmov("v1", 0))
    else:
        a(raw("s_load_dwordx2 s[58:59], s[0:1], 40", 'smem', [], R('s', 58, 2))); a(wait(lg=0))
        a(S("s_lshl_b32", "s33", "s2", 2)); a(S("s_add_u32", "s33", "s33", f"s{sW}")); a(S("s_lshl_b32", "s33", "s33", 6))
        a(vmov("v1", "s33"))
    def put(off, x, y):
        if y is None: a(vmov("v2", x))
        else:
            a(S("s_sub_u32", "s33", x, y)); a(vmov("v2", "s33"))
        a(raw(f"global_store_dword v1, v2, s[58:59] offset:{off}", 'vstore', ['v1', 'v2', 's58', 's59'], [], data=['v2']))
        a(nop(1))
    if cfg.fine != 9:
        for i in range(11): put(4 * i, f"s{60+2*i}", "s60")
    else: put(40, "s80", "s60")
    put(44, "s84", "s82"); put(48, "s86", "s82"); put(52, "s88", "s82"); put(56, "s82", None)
    return o

def build():
    global MEM, LGW
    MEM = build_mem_schedule()
    LGW = compute_lgkm_waits()
    pro = prologue()
    body = body_iter(0)
    epi = epilogue()
    slow = slow_path()
    static = pro + [raw(".p2align 6", 'label'), label("L_loop")] + body + [label("L_exit")] + stamp(8) + \
             ([raw("s_memrealtime s[88:89]", 'stampi')] if cfg.stamps else []) + epi + stamp_out() + \
             [label("L_end"), raw("s_endpgm", 'branch')] + slow
    trace = list(pro)
    for it in range(4):
        b = body_iter(2 * it, last=(it == 3))
        assert [x.t for x in b] == [x.t for x in body[:len(b)]], "loop body is not periodic"
        trace += b
    trace += epi
    errs = verify(trace, "main")
    errs += verify(slow, "slow", check_lds=False)
    return static, errs, (pro, body, epi)

HEADER = """; Kernarg layout for this problem (48 bytes, ptrs only, base s[0:1]):
; One workgroup per (batch, q-head): 4 waves; wave w owns q rows 32w..32w+31 against all keys.  For the shared
; LDS and wave w accumulates output columns 32w..32w+31.
; @launch grid=(256,1,1) block=(256,1,1) lds=163840
.amdgcn_target "amdgcn-amd-amdhsa--gfx950"
.text
.globl {n}_kernel
.p2align 8
.type {n}_kernel,@function
{n}_kernel:
"""
FOOTER = """
.section .rodata,"a"
.p2align 6
.amdhsa_kernel {n}_kernel
  .amdhsa_next_free_vgpr 512
  .amdhsa_next_free_sgpr 96
  .amdhsa_accum_offset 256
  .amdhsa_group_segment_fixed_size 0
  .amdhsa_kernarg_size 48
  .amdhsa_user_sgpr_count 2
  .amdhsa_user_sgpr_kernarg_segment_ptr 1
  .amdhsa_system_sgpr_workgroup_id_x 1
.end_amdhsa_kernel
"""

def main(argv=None):
    ap = argparse.ArgumentParser()
    ap.add_argument("-o", default="cdna_kernels/%s.s" % NAME)
    ap.add_argument("--stamps", action="store_true")
    ap.add_argument("--stamp-wg", type=int, default=0)
    ap.add_argument("--force-slow", action="store_true")
    ap.add_argument("--thresh", default=None)
    ap.add_argument("--store-flags", default="nt")
    ap.add_argument("--ld", default="nt"); ap.add_argument("--qld", default="nt")
    ap.add_argument("--fine", type=int, default=0)
    ap.add_argument("--qsplit", type=int, default=2)
    ap.add_argument("--lead", type=int, default=8); ap.add_argument("--lag", type=int, default=6)
    ap.add_argument("--wr", default=None); ap.add_argument("--dv", default=None); ap.add_argument("--dk", default=None)
    ap.add_argument("--sched", default="early"); ap.add_argument("--nospread", action="store_true")
    ap.add_argument("--show", action="store_true")
    ap.add_argument("--b1", type=int, default=102); ap.add_argument("--b2", type=int, default=160); ap.add_argument("--inc", type=int, default=20)
    ap.add_argument("--noexcl", action="store_true")
    ap.add_argument("--drop", default=""); ap.add_argument("--nobar", action="store_true")
    args = ap.parse_args(argv)
    cfg.stamps = args.stamps; cfg.stamp_wg = args.stamp_wg; cfg.force_slow = args.force_slow; cfg.store_flags = args.store_flags
    cfg.ld = args.ld; cfg.qld = args.qld; cfg.fine = args.fine; cfg.qsplit = args.qsplit
    cfg.LEAD = args.lead; cfg.LAG = args.lag; cfg.sched = args.sched; cfg.spread = not args.nospread
    cfg.excl = not args.noexcl; cfg.B1 = args.b1; cfg.B2 = args.b2; cfg.inc_slot = args.inc
    cfg.drop = tuple(x for x in args.drop.split(",") if x); cfg.nobar = args.nobar
    if args.wr: cfg.wr_slots = tuple(int(x) for x in args.wr.split(","))
    if args.dv: cfg.dv_slots = tuple(int(x) for x in args.dv.split(","))
    if args.dk: cfg.dk_slots = tuple(int(x) for x in args.dk.split(","))
    if args.thresh: cfg.thresh = int(args.thresh, 0)
    static, errs, parts = build()
    if args.show:
        for s in range(STEP): print(s, sm_kind(s) or "", LGW[s], MEM[s])
    for e in errs[:40]: print("ERR", e)
    cnt = lambda L: sum(1 for x in L if x.k != 'label')
    print("errors:", len(errs), " instructions:", cnt(static), " pro/body/epi:", [cnt(p) for p in parts])
    open(args.o, "w").write(HEADER.format(n=NAME) + text_of(static) + FOOTER.format(n=NAME))

if __name__ == "__main__": main()
```

```python
import sys, argparse, re
from asmlib import *

NAME = "standalone__gqa_softmax__near_ridge"
WL, STEP = 34, 170

class Cfg:
    E0 = 7
    LEAD = 8
    LAG = 6
    thresh = 0x4b800000
    stamps = False; stamp_wg = 0; fine = 0
    force_slow = False
    store_flags = "nt"; ld = "nt"; qld = "nt"
    qsplit = 2
    dk_slots = (108, 114, 118, 122, 126, 130, 134, 138)
    dv_slots = (164, 168, 172, 176, 178, 182, 186, 190)
    wr_slots = (94, 96, 98, 100)
    inc_slot = 20
    B1 = 106; B2 = 160
cfg = Cfg()

PS = (0, 20)
PXR = 4
PXW, MLW = 8, 9
SLM, SLL = 6, 7
AW, AR, SW, SR, SG = 137, 142, 143, 10, 11
MLRD = 18
KDMA = 12
VDMA = 16
VQ, VLIN = 4, 19
KADDR = 24
VADDR = 40
P = 72
S0 = 88
CI_OWN, CI_SH = 120, 128
VQRT = 136
MM = 138
MXW, MXR = 140, 141
Q_OWN = 144
O_OWN = 176
O_SH = 240
Q_SH, KF, VF0, VFP, PSH, L_OWN, L_SH, ONES = 0, 32, 64, 96, 120, 152, 160, 168
def vf(i, p): return VF0 + 8 * i + 4 * p if p < 2 else VFP + 4 * (p - 2)
def psh(i, c): return PSH + 8 * i + 4 * c
def Sb(par): return S0 + 16 * par
def Pb(par): return P + 8 * par
sW, SQ, SK, SV, SO = 3, 8, 12, 16, 20
sW8192, sOff0, sOff1, sC, sMask = 24, 25, 26, 27, 28
sT = 29
sKill = 34
sM0 = 44
sC2 = 52
sQS, sQO1 = 54, 55
SCALE_BITS = 0x3e0293ee
LDS_K1, LDS_K0, LDS_X, LDS_V0, LDS_V1 = 0, 32768, 65536, 98304, 131072
LDS_PX = LDS_X
LDS_ML = LDS_X + 16384
LDS_QS = LDS_V1
LDS_MX = LDS_V1 + 8192
DROP = 0x30000
def koff(buf): return LDS_K0 if buf == 0 else LDS_K1

def qk_mfma(u, par, k, first_c=True):
    x, j = divmod(k, 4); a, c = x % 2, x // 2
    sh = (u == 0)
    D = ('v', Sb(par) + 4 * x)
    B = ('a', Q_SH + 16 * c + 4 * j) if sh else ('v', Q_OWN + 16 * c + 4 * j)
    C = (('v', (CI_SH if sh else CI_OWN) + 4 * c) if first_c else 0) if j == 0 else D
    return mfma16(D, ('a', KF + 16 * a + 4 * j), B, C)
def ones_mfma(Lreg, c, Breg): return mfma16(('a', Lreg + 4 * c), ('a', ONES), ('v', Breg), ('a', Lreg + 4 * c))
def pvsh_mfma(n):
    i, c, p = n // 4, (n // 2) % 2, n % 2
    O = ('v', O_SH + 8 * p + 4 * c)
    return mfma16(O, ('a', vf(i, p)), ('a', psh(i, c)), O)
def pv_mfma(i, par, c, p):
    O = ('v', O_OWN + 32 * c + 4 * p)
    return mfma16(O, ('a', vf(i, p)), ('v', Pb(par) + 4 * c), O)

def mfma_at(step, g):
    W, k = divmod(g, WL)
    if k < 16:
        u = W + 1; st = step
        if u == 5: u = 0; st = step + 1
        return qk_mfma(u, (st + u) % 2, k)
    idx = k - 16
    if W == 0:
        if idx == 8: return ones_mfma(L_SH, 0, PS[0])
        if idx == 17: return ones_mfma(L_SH, 1, PS[1])
        return pvsh_mfma(idx if idx < 8 else idx - 1)
    par = (step + W) % 2
    if idx == 8: return ones_mfma(L_OWN, 0, Pb(par))
    if idx == 17: return ones_mfma(L_OWN, 1, Pb(par) + 4)
    c, p = (0, idx) if idx < 8 else (1, idx - 9)
    return pv_mfma(W - 1, par, c, p)

def sm_ops(step, g):
    ops = []
    for st, i in [(step, j) for j in range(5)] + [(step + 1, 0), (step - 1, 4)]:
        rel = g + STEP * (step - st) - WL * (i - 1) - cfg.E0
        par = (st + i) % 2; S_ = Sb(par)
        if 0 <= rel <= 30 and rel % 2 == 0: ops.append(vexp(f"v{S_+rel//2}", f"v{S_+rel//2}"))
        if 3 <= rel <= 31 and rel % 4 == 3:
            m = (rel - 3) // 4
            dst = (PS[m // 4] + m % 4) if i == 0 else Pb(par) + m
            ops.append(cvtpk(f"v{dst}", f"v{S_+2*m}", f"v{S_+2*m+1}"))
    return ops

def sm_kind(g):
    o = sm_ops(2, g % STEP)
    return 'exp' if any(x.k == 'trans' for x in o) else 'cvt' if o else None

def build_mem_schedule():
    ops = []
    L = cfg.LEAD; B1, B2 = cfg.B1, cfg.B2
    def add(d, e, l):
        assert e <= l, (d, e, l)
        ops.append([d, e, l])
    for a in range(2):
        for j in range(4):
            o = 4 * a + j
            add(('K', 1, a, j), 0 + 8 + o, 34 + o - L)
            add(('K', 2, a, j), 34 + 8 + o, 68 + o - L)
            add(('K', 3, a, j), 68 + 8 + o, min(102 + o - L, B1 - L))
            add(('K', 0, a, j), max(102 + 8 + o, B1 + 1), 136 + o - L)
    def idx_of(n): return n if n < 8 else n + 1
    for i in range(4):
        for p in range(8):
            use = WL * (i + 1) + 16 + p
            late = use - L if i < 3 else min(use - L, B2 - L)
            if p < 2: early = 16 + idx_of(4 * i + 2 + p)
            elif i > 0: early = WL * i + 25 + p
            else: early = 136 + 25 + p - STEP
            for hh in range(2): add(('V', i, p, hh), early, late)
    late = cfg.wr_slots[0] > B1
    for i in range(4):
        for c in range(2): add(('PR', i, c), (B2 if late else B1) + 1, STEP + ENTRY - 1 if late else STEP - 1)
    sched = {s: [] for s in range(STEP)}
    for n, sl in enumerate(cfg.dk_slots): sched[sl % STEP].append(('DK', n))
    for n, sl in enumerate(cfg.dv_slots): sched[sl % STEP].append(('DV', n))
    for d, sl in zip([('PW', 0, 0), ('PW', 0, 1), ('PW', 1, 0), ('PW', 1, 1)], cfg.wr_slots): sched[sl % STEP].append(d)
    def cap(s):
        k = sm_kind(s)
        c = 0 if k == 'exp' else 1 if k == 'cvt' else 2
        if s in (B1, B2): c = 0 if cfg.barx else c - 1
        return c
    for s in sched: assert len(sched[s]) <= cap(s), (s, sched[s], cap(s))
    fixed0 = {g: list(v) for g, v in sched.items()}
    slots = []
    for g in range(STEP):
        for k in range(cap(g) - len(sched[g])): slots.append((g, k))
    by_gap = {}
    for sl in slots: by_gap.setdefault(sl[0], []).append(sl)
    def cands(e, l):
        ts = list(range(e, l + 1))
        if cfg.sched == "late": ts.reverse()
        elif cfg.sched == "mid":
            mid = (e + l) / 2; ts.sort(key=lambda t: abs(t - mid))
        busy = lambda g: cfg.excl and any(d[0] in ('DK', 'DV', 'PW') for d in fixed0[g])
        first = [sl for t in ts for sl in by_gap.get(t % STEP, []) if sl[1] == 0 and not busy(sl[0])]
        second = [sl for t in ts for sl in by_gap.get(t % STEP, []) if sl[1] > 0 and not busy(sl[0])]
        last = [sl for t in ts for sl in by_gap.get(t % STEP, []) if busy(sl[0])]
        return (first + second if cfg.spread else [sl for t in ts for sl in by_gap.get(t % STEP, []) if not busy(sl[0])]) + last
    order = sorted(range(len(ops)), key=lambda i: (ops[i][2] - ops[i][1], ops[i][2]))
    match = {}
    cand = {i: cands(ops[i][1], ops[i][2]) for i in order}
    def aug(i, seen):
        for sl in cand[i]:
            if sl not in match: match[sl] = i; return True
        for sl in cand[i]:
            if sl in seen: continue
            seen.add(sl)
            if aug(match[sl], seen): match[sl] = i; return True
        return False
    sys.setrecursionlimit(10000)
    if cfg.excl:
        full = cand
        cand = {i: [sl for sl in full[i] if not any(d[0] in ('DK', 'DV', 'PW') for d in fixed0[sl[0]])] for i in order}
        left = [i for i in order if not aug(i, set())]
        cand = full
        for i in left:
            if not aug(i, set()): raise Exception(f"cannot place {ops[i]}")
        print("ops sharing a gap with DMA/PW:", len(left))
    else:
        for i in order:
            if not aug(i, set()): raise Exception(f"cannot place {ops[i]}")
    for sl, i in match.items(): sched[sl[0]].append(ops[i][0])
    dl = {tuple(o[0]): o[2] for o in ops}
    for s in sched: sched[s].sort(key=lambda d: (1, 0) if d[0] in ('DK', 'DV', 'PW') else (0, (dl[d] - s) % STEP))
    return sched
Cfg.sched = "early"
Cfg.spread = True
Cfg.drop = ()
Cfg.barx = False
Cfg.epi_nv = 8; Cfg.epi_ng = 6; Cfg.epi_lw = 3
Cfg.novm = False
Cfg.v0pos = 3
Cfg.excl = False
Cfg.nobar = False

MEM = LGW = None

def mem_ins(step, g, d):
    if d[0] == 'K':
        _, tp, a, j = d
        cs = step + 1 if tp == 0 else step
        buf = cs % 2
        return dsr128(('a', KF + 16 * a + 4 * j), KADDR + 4 * tp + j, koff(buf) + 4096 * a, reg=(('K', buf), cs, tp == 0) if cs < 8 else None)
    if d[0] == 'V':
        _, i, p, hh = d
        cs = step + 1 if (i == 0 and g > cfg.B2) else step
        buf = cs % 2
        return dstr(('a', vf(i, p) + 2 * hh), VADDR + 8 * i + p, buf * 32768 + hh * 4096, reg=(('V', buf), cs, i == 0) if cs < 8 else None)
    if d[0] == 'PW':
        _, c, h = d
        return dsw64(PXW, ('v', PS[c] + 2 * h), (step % 2) * 8192 + c * 1024 + h * 512, reg=(('PX', step % 2), step, True))
    if d[0] == 'PR':
        _, i, c = d
        cs = step if g > cfg.B1 else step - 1
        o0 = 16 * (cs % 2) + 2 * c
        return dsr2st64_64(('a', psh(i, c)), PXR + i, o0, o0 + 1, reg=(('PX', cs % 2), cs, i == 0))
    if d[0] == 'DK':
        n = d[1]; cs = step + 2; buf = cs % 2
        return dma(KDMA + n % 4, SK, f"s{sOff0 if n < 4 else sOff1}", 1024 * (n % 4), reg=(('K', buf), cs, True) if cs < 8 else None, flags=cfg.ld)
    if d[0] == 'DV':
        n = d[1]; cs = step + 2 if g > cfg.B2 else step + 1; buf = cs % 2
        return dma(VDMA + n % 2, SV, f"s{sOff0 if n < 4 else sOff1}", 1024 * (n % 4), reg=(('V', buf), cs, True) if cs < 8 else None, flags=cfg.ld)

def m0_val_reg(kv, buf, grp): return sM0 + (0 if kv == 'K' else 4) + 2 * buf + grp

def scalar_ops(step, g):
    o = []
    def m0(kv, buf, grp): return S("s_max_u32", "m0", f"s{m0_val_reg(kv, buf, grp)}", f"s{sKill}")
    dk, dv = [x % STEP for x in cfg.dk_slots], [x % STEP for x in cfg.dv_slots]
    if g == dk[0] - 1: o.append(m0('K', step % 2, 0))
    if g == dk[4] - 1: o.append(m0('K', step % 2, 1))
    if g == dv[0] - 1: o.append(m0('V', (step if g > cfg.B2 else step + 1) % 2, 0))
    if g == dv[4] - 1: o.append(m0('V', (step if g > cfg.B2 else step + 1) % 2, 1))
    x = cfg.inc_slot + 4
    if g == x + 1: o.append(S("s_add_u32", f"s{sOff0}", f"s{sOff0}", "0x8000"))
    if g == x + 3: o.append(S("s_add_u32", f"s{sOff1}", f"s{sOff1}", "0x8000"))
    if g == x + 5: o.append(scmp("s_cmp_ge_u32", f"s{sOff0}", "0x40000"))
    if g == x + 7: o.append(S("s_cselect_b32", f"s{sKill}", hex(DROP), 0, w_scc=False, r_scc=True))
    return o

def gap_mem(step, g): return [mem_ins(step, g, d) for d in MEM[g] if d[0] not in cfg.drop]

def compute_lgkm_waits():
    seq = []; prod = {}; covered = -1; res = {}
    for t in range(0, 6 * STEP):
        st, sl = divmod(t, STEP)
        nst, nsl = divmod(t + 1, STEP)
        nm = mfma_at(nst, nsl)
        need = max([prod.get(r, -1) for r in nm.x['AB']] + [-1])
        if sl == cfg.B1: need = max([need] + [i for i, (tt, d) in enumerate(seq) if d in ('K', 'PW')])
        if sl == cfg.B2: need = max([need] + [i for i, (tt, d) in enumerate(seq) if d in ('V', 'PW')])
        n = None
        if need > covered:
            tgt = need
            for i in range(len(seq) - 1, -1, -1):
                if seq[i][0] <= t - cfg.LAG: tgt = max(tgt, i); break
            n = len(seq) - 1 - tgt
            if n > 15: tgt = len(seq) - 1 - 15; n = 15
            covered = tgt
        res[(st, sl)] = n
        for d in MEM[sl]:
            if d[0] in ('DK', 'DV') or d[0] in cfg.drop: continue
            ins = mem_ins(2 + st % 2, sl, d)
            seq.append((t, d[0]))
            for r in ins.w: prod[r] = len(seq) - 1
    out = {}
    for sl in range(STEP):
        assert len({res[(s, sl)] for s in range(2, 6)}) == 1
        out[sl] = res[(4, sl)]
    return out

def gap(step, g, part='all'):
    head = [mfma_at(step, g)]
    n = LGW[g]
    if g == cfg.B1 or g == cfg.B2:
        head.append(wait(vm=(8 if not cfg.novm else 40) if not cfg.drop.count('DK') else None, lg=n if n is not None else (None if not cfg.drop.count('DK') else 15)))
        if not cfg.nobar: head.append(barrier())
    elif n is not None: head.append(wait(lg=n))
    head += scalar_ops(step, g)
    rest = gap_mem(step, g) + sm_ops(step, g)
    return head if part == 'head' else rest if part == 'rest' else head + rest

ENTRY = 15
EXIT = 135

def body_iter(st0, last=False):
    o = []
    o += gap(st0, ENTRY, 'rest')
    for s in range(ENTRY + 1, STEP): o += gap(st0, s)
    for s in range(0, EXIT):
        g = gap(st0 + 1, s)
        if s == EXIT - 2:
            g = gap(st0 + 1, s, 'head') + [scmp("s_cmp_eq_u32", f"s{sOff0}", hex(9 * 32768))] + gap(st0 + 1, s, 'rest')
        o += g
    o += gap(st0 + 1, EXIT, 'head') + [branch("s_cbranch_scc1", "L_exit", ['scc'])]
    if last: return o
    o += gap(st0 + 1, EXIT, 'rest')
    for s in range(EXIT + 1, STEP): o += gap(st0 + 1, s)
    for s in range(0, ENTRY): o += gap(st0 + 2, s)
    o += gap(st0 + 2, ENTRY, 'head') + [branch("s_branch", "L_loop")]
    return o

def scale4(src, tmp, pk=False):
    o = []
    for i in range(4): o.append(V("v_lshlrev_b32", f"v{tmp+2*i}", 16, f"v{src+i}"))
    for i in range(4): o.append(V("v_and_b32", f"v{tmp+2*i+1}", f"s{sMask}", f"v{src+i}"))
    if pk:
        for i in range(4): o.append(V("v_pk_mul_f32", f"v[{tmp+2*i}:{tmp+2*i+1}]", f"v[{tmp+2*i}:{tmp+2*i+1}]", f"s[{sC2}:{sC2+1}]"))
    else:
        for i in range(4): o.append(vmul(f"v{tmp+2*i}", f"s{sC}", f"v{tmp+2*i}"))
        for i in range(4): o.append(vmul(f"v{tmp+2*i+1}", f"s{sC}", f"v{tmp+2*i+1}"))
    for i in range(4): o.append(cvtpk(f"v{src+i}", f"v{tmp+2*i}", f"v{tmp+2*i+1}"))
    return o

def rowmax16(Sbase, t):
    o = []
    for c in range(2):
        b = Sbase + 8 * c
        o.append(V("v_max3_f32", f"v{t+2*c}", f"v{b}", f"v{b+1}", f"v{b+2}"))
        o.append(V("v_max3_f32", f"v{t+2*c+1}", f"v{b+3}", f"v{b+4}", f"v{b+5}"))
    for c in range(2):
        b = Sbase + 8 * c
        o.append(V("v_max3_f32", f"v{t+2*c}", f"v{t+2*c}", f"v{b+6}", f"v{b+7}"))
    for c in range(2): o.append(V("v_max_f32", f"v{t+2*c}", f"v{t+2*c}", f"v{t+2*c+1}"))
    for sw in (swap16, swap32):
        for c in range(2): o.append(vmov(f"v{t+2*c+1}", f"v{t+2*c}"))
        o.append(nop(0))
        for c in range(2): o.append(sw(f"v{t+2*c}", f"v{t+2*c+1}"))
        dst = [f"v{t}", f"v{t+2}"] if sw is swap16 else [f"v{MM}", f"v{MM+1}"]
        for c in range(2): o.append(V("v_max_f32", dst[c], f"v{t+2*c}", f"v{t+2*c+1}"))
    return o

def shift_by_max(Sbase, CI):
    o = []
    for x in range(4): o.append(mfma16_f32(('v', Sbase + 4 * x), VQRT, MM + x // 2, ('v', Sbase + 4 * x)))
    for c in range(2): o.append(mfma16_f32(('v', CI + 4 * c), VQRT, MM + c, 0))
    return o

def dense(ops):
    out = list(ops)
    i = 0
    while i < len(out) - 1:
        if out[i].k == 'trans' and out[i + 1].k == 'valu' and set(out[i].w) & set(out[i + 1].r):
            if i + 2 < len(out) and out[i + 2].k == 'trans': out[i + 1], out[i + 2] = out[i + 2], out[i + 1]; i += 1
            else: out.insert(i + 1, nop(0))
        i += 1
    return out

def stamp(idx, fine=0):
    if not cfg.stamps: return []
    if cfg.fine == 9 and idx != 0: return []
    if cfg.fine != fine and idx not in (0, 8, 9): return []
    return [raw(f"s_memtime s[{60+2*idx}:{61+2*idx}]", 'stampi')]

def prologue():
    o = []
    vmlist = []
    def a(x, tag=None):
        o.append(x)
        if x.k in ('vload', 'dma', 'vstore'): vmlist.append(tag)
    def wait_for(tag):
        last = max(i for i, t in enumerate(vmlist) if t == tag)
        return wait(vm=len(vmlist) - 1 - last)
    a(scmp("s_cmp_ge_u32", "s2", 256)); a(branch("s_cbranch_scc1", "L_end", ['scc']))
    a(raw("s_load_dwordx4 s[36:39], s[0:1], 0", 'smem', [], R('s', 36, 4)))
    a(raw("s_load_dwordx4 s[40:43], s[0:1], 16", 'smem', [], R('s', 40, 4)))
    if cfg.stamps:
        a(raw("s_load_dwordx2 s[58:59], s[0:1], 32", 'smem', [], R('s', 58, 2)))
        o += stamp(0)
        a(raw("s_memrealtime s[82:83]", 'stampi'))
    a(V("v_lshrrev_b32", "v1", 6, "v0"))
    a(V("v_and_b32", "v2", 63, "v0"))
    a(readfirst(f"s{sW}", "v1"))
    a(V("v_lshrrev_b32", "v3", 4, "v2"))
    a(V("v_and_b32", "v4", 15, "v2"))
    a(V("v_lshlrev_b32", f"v{VLIN}", 4, "v2"))
    a(S("s_and_b32", f"s{sT}", "s2", 7))
    a(S("s_lshr_b32", f"s{sT+1}", "s2", 3))
    a(S("s_lshr_b32", f"s{sT+2}", "s2", 5))
    a(S("s_lshl_b32", f"s{sW8192}", f"s{sW}", 13))
    a(S("s_lshl_b32", f"s{sT+3}", f"s{sT}", 5)); a(S("s_add_u32", f"s{sT+3}", f"s{sT+3}", f"s{sT+1}"))
    a(S("s_mul_i32", f"s{sT+3}", f"s{sT+3}", 40960, w_scc=False))
    a(S("s_lshl_b32", f"s{sT+4}", f"s{sT}", 3)); a(S("s_add_u32", f"s{sT+4}", f"s{sT+4}", f"s{sT+2}"))
    a(S("s_lshl_b32", f"s{sT+4}", f"s{sT+4}", 18))
    a(V("v_xor_b32", "v5", "v3", "v4"))
    a(V("v_lshlrev_b32", "v5", 4, "v5"))
    a(V("v_lshl_add_u32", "v7", "v3", 8, "v5"))
    a(V("v_lshl_add_u32", "v6", "v4", 8, "v5"))
    a(V("v_add_u32", f"v{KDMA}", f"s{sW8192}", "v7"))
    for k in range(1, 4): a(V("v_xor_b32", f"v{KDMA+k}", 64 * k, f"v{KDMA}"))
    a(S("s_lshl_b32", f"s{sQS}", f"s{sW}", 11)); a(S("s_add_u32", f"s{sQS}", f"s{sQS}", 32768))
    a(S("s_add_u32", f"s{sQO1}", f"s{sW8192}", 4096))
    a(smov(f"s{sOff0}", 0)); a(smov(f"s{sOff1}", 4096))
    a(S("s_add_u32", "m0", f"s{sW8192}", LDS_K0))
    SA, SB = Sb(0), Sb(1)
    QW = CI_SH
    TS = CI_SH + 2
    MXV = CI_OWN
    TW = SB + 8
    TR = SB
    TMPS = P
    for e in range(2):
        a(S("s_lshl_b32", f"s{sT}", f"s{sW}", 1)); a(S("s_add_u32", f"s{sT}", f"s{sT}", e))
        a(S("s_and_b32", f"s{sT+1}", f"s{sT}", 3)); a(S("s_lshl_b32", f"s{sT+1}", f"s{sT+1}", 6))
        a(S("s_lshl_b32", f"s{sT}", f"s{sT}", 10)); a(S("s_add_u32", f"s{sT}", f"s{sT}", LDS_QS))
        a(V("v_xor_b32", f"v{QW+e}", f"s{sT+1}", "v7")); a(V("v_add_u32", f"v{QW+e}", f"s{sT}", f"v{QW+e}"))
    a(V("v_add_u32", f"v{TS}", LDS_QS, "v6"))
    for j in range(1, 4): a(V("v_xor_b32", f"v{TS+j}", 64 * j, f"v{TS}"))
    a(V("v_add_u32", f"v{KADDR}", f"s{sW8192}", "v6"))
    for j in range(1, 4): a(V("v_xor_b32", f"v{KADDR+j}", 64 * j, f"v{KADDR}"))
    a(smov(f"s{sC}", hex(SCALE_BITS))); a(smov(f"s{sMask}", "0xffff0000"))
    a(smov(f"s{sC2}", hex(SCALE_BITS))); a(smov(f"s{sC2+1}", hex(SCALE_BITS)))
    a(wait(lg=0))
    def srd(base, p, off, n):
        a(S("s_add_u32", f"s{base}", f"s{p}", f"s{off}")); a(S("s_addc_u32", f"s{base+1}", f"s{p+1}", 0, r_scc=True))
        a(S("s_and_b32", f"s{base+1}", f"s{base+1}", "0xffff"))
        a(smov(f"s{base+2}", n)); a(smov(f"s{base+3}", "0x20000"))
    o += stamp(1, 1)
    srd(SQ, 36, sT + 3, 40960)
    for e in range(2): a(vload(('v', SA + 4 * e), 4, VLIN, SQ, f"s{sQS}", 1024 * e, cfg.qld), "QS")
    srd(SK, 38, sT + 4, 262144)
    for n in range(4): a(dma(KDMA + n, SK, f"s{sOff0}", 1024 * n, reg=(('K', 0), 0, True), flags=cfg.ld), "K0")
    a(S("s_add_u32", "m0", f"s{sW8192}", LDS_K0 + 4096)); a(nop(0))
    for n in range(4): a(dma(KDMA + n, SK, f"s{sOff1}", 1024 * n, reg=(('K', 0), 0, True), flags=cfg.ld), "K0")
    o += stamp(2, 1)
    def qown(n0, n1):
        for n in range(n0, n1): a(vload(('v', Q_OWN + 4 * n), 4, VLIN, SQ, f"s{sW8192 if n < 4 else sQO1}", 1024 * (n % 4), cfg.qld), f"QO{n}")
    qown(0, cfg.qsplit)
    o += stamp(1); o += stamp(3, 1)
    srd(SV, 40, sT + 4, 262144)
    srd(SO, 42, sT + 3, 40960)
    a(V("v_lshlrev_b32", "v1", 1, "v3")); a(V("v_xor_b32", "v1", "v1", "v4"))
    a(V("v_lshlrev_b32", "v1", 4, "v1")); a(V("v_lshl_add_u32", "v1", "v3", 8, "v1"))
    a(V("v_add_u32", f"v{VDMA}", f"s{sW8192}", "v1")); a(V("v_xor_b32", f"v{VDMA+1}", 128, f"v{VDMA}"))
    for i in range(1, 4):
        a(S("s_add_u32", f"s{sT+i}", f"s{sW}", i)); a(S("s_and_b32", f"s{sT+i}", f"s{sT+i}", 3))
        a(S("s_lshl_b32", f"s{56+i}", f"s{sT+i}", 11))
        a(S("s_sub_u32", f"s{sT+i}", f"s{sT+i}", f"s{sW}")); a(S("s_lshl_b32", f"s{sT+i}", f"s{sT+i}", 13))
    for i in range(1, 4):
        for j in range(4): a(V("v_add_u32", f"v{KADDR+4*i+j}", f"s{sT+i}", f"v{KADDR+j}"))
    for k in range(4): a(V("v_add_u32", f"v{TW+k}", LDS_X, f"v{KDMA+k}"))
    for j in range(4): a(V("v_add_u32", f"v{TR+j}", LDS_X, f"v{KADDR+j}"))
    a(V("v_lshrrev_b32", "v1", 2, "v4")); a(V("v_lshl_add_u32", "v1", "v3", 2, "v1"))
    a(V("v_and_b32", "v5", 7, "v1"))
    a(S("s_lshl_b32", f"s{sT}", f"s{sW}", 1)); a(V("v_xor_b32", "v5", f"s{sT}", "v5"))
    a(V("v_lshlrev_b32", "v5", 5, "v5")); a(V("v_lshl_add_u32", "v5", "v1", 8, "v5"))
    a(V("v_and_b32", "v1", 3, "v4")); a(V("v_lshl_add_u32", "v5", "v1", 3, "v5"))
    a(S("s_add_u32", f"s{sT+4}", f"s{sW8192}", LDS_V0))
    a(V("v_add_u32", f"v{VADDR}", f"s{sT+4}", "v5"))
    for p in range(1, 8): a(V("v_xor_b32", f"v{VADDR+p}", 32 * p, f"v{VADDR}"))
    for i in range(1, 4):
        for p in range(8): a(V("v_add_u32", f"v{VADDR+8*i+p}", f"s{sT+i}", f"v{VADDR+p}"))
    a(S("s_lshl_b32", "s56", f"s{sW}", 11)); a(S("s_add_u32", f"s{sT}", "s56", LDS_PX))
    a(V("v_lshrrev_b32", "v1", 1, f"v{VLIN}")); a(V("v_add_u32", f"v{PXW}", f"s{sT}", "v1"))
    a(V("v_lshrrev_b32", "v5", 2, f"v{VLIN}"))
    a(S("s_lshl_b32", f"s{sT}", f"s{sW}", 9)); a(S("s_add_u32", f"s{sT}", f"s{sT}", LDS_ML))
    a(V("v_add_u32", f"v{MLW}", f"s{sT}", "v5"))
    a(S("s_lshl_b32", f"s{sT}", f"s{sW}", 9)); a(S("s_add_u32", f"s{sT}", f"s{sT}", LDS_MX))
    a(V("v_add_u32", f"v{MXW}", f"s{sT}", "v1")); a(V("v_add_u32", f"v{MXR}", LDS_MX, "v1"))
    a(V("v_add_u32", f"v{MLRD}", LDS_ML, "v5"))
    a(S("s_mul_i32", f"s{sT}", f"s{sW}", 8704, w_scc=False))
    a(V("v_lshlrev_b32", "v5", 3, "v3"))
    a(V("v_mul_u32_u24", "v6", 272, "v4")); a(V("v_add_u32", "v6", "v6", "v5")); a(V("v_add_u32", f"v{AW}", f"s{sT}", "v6"))
    a(S("s_lshl_b32", f"s{sT+4}", f"s{sW}", 2)); a(V("v_xor_b32", "v6", f"s{sT+4}", "v4")); a(V("v_lshlrev_b32", "v6", 4, "v6"))
    a(V("v_mul_u32_u24", "v7", 272, "v3")); a(V("v_add_u32", "v6", "v6", "v7")); a(V("v_add_u32", f"v{AR}", f"s{sT}", "v6"))
    a(S("s_add_u32", f"s{sT}", f"s{sW8192}", LDS_V0))
    a(V("v_mul_u32_u24", "v6", 80, "v4")); a(V("v_add_u32", "v6", "v6", "v5")); a(V("v_add_u32", f"v{SW}", f"s{sT}", "v6"))
    a(V("v_lshrrev_b32", "v5", 2, "v2")); a(V("v_and_b32", "v6", 3, "v2")); a(V("v_lshlrev_b32", "v6", 4, "v6"))
    a(V("v_mul_u32_u24", "v7", 80, "v5")); a(V("v_add_u32", "v7", "v7", "v6")); a(V("v_add_u32", f"v{SR}", f"s{sT}", "v7"))
    a(V("v_lshl_add_u32", f"v{SG}", "v5", 8, "v6"))
    a(vmov(f"v{VQRT}", "0xbe800000"))
    a(vmov("v2", "0x3f803f80"))
    for i in range(4): a(accw(f"a{ONES+i}", "v2"))
    for i in range(4): a(vmov(f"v{P+i}", 0))
    a(V("v_add_u32", "v1", LDS_PX, "v1"))
    for i in range(4): a(V("v_add_u32", f"v{PXR+i}", f"s{56+i}", "v1"))
    for kv, b0, b1 in (('K', LDS_K0, LDS_K1), ('V', LDS_V0, LDS_V1)):
        for buf, base in ((0, b0), (1, b1)):
            for grp in range(2):
                a(S("s_add_u32", f"s{m0_val_reg(kv, buf, grp)}", f"s{sW8192}", base + grp * 4096))
    a(smov(f"s{sKill}", 0))
    for db in range(5): a(mfma(('v', O_OWN + 16 * db), ('v', P), ('v', P), 0))
    for b in (VF0, VF0 + 16, PSH, PSH + 16, L_OWN): a(mfma(('a', b), ('v', P), ('v', P), 0))
    o += stamp(2); o += stamp(4, 1)
    qown(cfg.qsplit, 8)
    a(wait_for("QS"))
    o += stamp(5, 1)
    o += scale4(SA, TMPS, pk=True) + scale4(SA + 4, TMPS + 8, pk=True)
    for e in range(2): a(dsw128(QW + e, ('v', SA + 4 * e), 0, reg=(('QS', 0), 'qs', False)))
    a(wait_for("K0"))
    for aa in range(2):
        for j in range(4): a(dsr128(('a', KF + 16 * aa + 4 * j), KADDR + j, koff(0) + 4096 * aa, reg=(('K', 0), 0, True)))
    a(wait(lg=8)); a(barrier())
    for c in range(2):
        for j in range(4): a(dsr128(('a', Q_SH + 16 * c + 4 * j), TS + j, 4096 * c, reg=(('QS', 0), 'qs', False)))
    o += stamp(6, 1)
    for k in range(16):
        if k < 4: a(wait(lg=7 - k))
        if k == 8: a(wait(lg=0))
        a(qk_mfma(0, 0, k, first_c=False))
    o += stamp(3); o += stamp(7, 1)
    def piece(n, pk):
        a(wait_for(f"QO{n}"))
        o.extend(scale4(Q_OWN + 4 * n, TMPS + 8 * (n % 2), pk=pk))
        a(dsw128(TW + n % 4, ('v', Q_OWN + 4 * n), 1024 * n, reg=(('QO', 0), 'qo', True)))
    a(smov(f"s{sOff0}", 0)); a(smov(f"s{sOff1}", 4096))
    def vdma(buf, content, tag, only=None):
        for grp in range(2):
            a(S("s_mov_b32", "m0", f"s{m0_val_reg('V', buf, grp)}", w_scc=False)); a(nop(0))
            for n in range(4):
                if only is None or only(4 * grp + n):
                    a(dma(VDMA + n % 2, SV, f"s{sOff0 if grp == 0 else sOff1}", 1024 * n, reg=(('V', buf), content, True), flags=cfg.ld), tag)
    a(nop(4))
    o += rowmax16(SA, 4 + 0 if False else TMPS)
    a(dsw64(MXW, ('v', MM), 0, reg=(('MX', 0), 'mx', False)))
    a(wait(lg=0)); a(barrier())
    for x in range(4): a(dsr64(('v', MXV + 2 * x), MXR, 512 * x, reg=(('MX', 0), 'mx', False)))
    o += stamp(4)
    a(wait(lg=0))
    for c in range(2):
        a(V("v_max3_f32", f"v{MM+c}", f"v{MXV+c}", f"v{MXV+2+c}", f"v{MXV+4+c}"))
    for c in range(2): a(V("v_max_f32", f"v{MM+c}", f"v{MM+c}", f"v{MXV+6+c}"))
    a(nop(1))
    o += shift_by_max(SA, CI_SH)
    if cfg.v0pos < 0: vdma(0, 0, "V0")
    for n in range(4):
        piece(n, n >= 2)
        if n == cfg.v0pos: vdma(0, 0, "V0")
    def sm_range(s0, s1):
        q = []
        for s in range(s0, s1):
            st, sl = (0, s) if s >= 0 else (-1, s + STEP)
            q += [x for x in sm_ops(st, sl) if st == 0 or not (set(x.w) | set(x.r)) & set(R('v', SB, 16) + R('v', Pb(1), 8))]
        return q
    smq = dense(sm_range(cfg.E0 - WL, cfg.E0))
    for n in range(4, 8):
        piece(n, True)
        if n == cfg.v0pos: vdma(0, 0, "V0")
        o += smq[3 * (n - 4):3 * (n - 4) + 3]
    smq = smq[12:]
    o += stamp(5)
    a(smov(f"s{sOff0}", 32768)); a(smov(f"s{sOff1}", 32768 + 4096))
    a(wait(lg=0))
    for c in range(2):
        for j in range(4): a(dsr128(('v', Q_OWN + 16 * c + 4 * j), TR + j, 4096 * c, reg=(('QO', 0), 'qo', True)))
    for grp in range(2):
        a(S("s_mov_b32", "m0", f"s{m0_val_reg('K', 1, grp)}", w_scc=False)); a(nop(0))
        for k in range(4): a(dma(KDMA + k, SK, f"s{sOff0 if grp == 0 else sOff1}", 1024 * k, reg=(('K', 1), 1, True), flags=cfg.ld), "K1")
    for k in range(16):
        if k < 4: a(wait(lg=7 - k))
        if k == 8: a(wait(lg=0))
        a(qk_mfma(1, 1, k, first_c=False))
        o += smq[k:k + 1]
    assert len(smq) <= 16
    o += stamp(6)
    a(wait_for("V0"))
    a(barrier())
    def v1_in_prologue(n):
        gp = [sl for sl in range(STEP) if ('DV', n) in MEM[sl]][0]
        return gp > cfg.B2 or gp < ENTRY
    vdma(1, 1, "V1", v1_in_prologue)
    pre = []
    for st, rng in ((-1, range(cfg.B2 + 1, STEP)), (0, range(0, ENTRY))):
        for sl in rng:
            for d in MEM[sl]:
                if d[0] == 'V' and (st == 0 or d[1] == 0): pre.append(mem_ins(st, sl, d))
                elif d[0] == 'K' and st == 0: pre.append(mem_ins(st, sl, d))
    head = dense(sm_range(cfg.E0, ENTRY))
    o += rowmax16(SB, TMPS + 8)
    a(nop(1))
    o += shift_by_max(SB, CI_OWN)
    o += pre
    if len(pre) < 10: a(nop(10 - len(pre)))
    o += head
    a(wait(lg=0))
    o += stamp(7)
    if cfg.stamps: a(raw("s_memrealtime s[86:87]", 'stampi'))
    return o

SO2 = 4
class Seq:
    def __init__(self): self.o = []; self.ds = []; self.done = -1; self.prod = {}
    def wait_idx(self, idx):
        if idx > self.done:
            n = min(15, len(self.ds) - 1 - idx)
            self.o.append(wait(lg=n)); self.done = len(self.ds) - 1 - n
    def wait_op(self, x): self.wait_idx(max(i for i, y in enumerate(self.ds) if y is x))
    def __call__(self, x):
        need = max([self.prod.get(r, -1) for r in x.r] + [-1])
        if x.k not in ('dsr',): need = max([need] + [self.prod.get(r, -1) for r in x.w])
        self.wait_idx(need) if need >= 0 else None
        self.o.append(x)
        if x.k in ('dsr', 'dsw'):
            self.ds.append(x)
            for r in x.w: self.prod[r] = len(self.ds) - 1
        return x

def epilogue():
    q = Seq(); a = q
    st = 7
    SF = cfg.store_flags
    par = (st + 4) % 2
    late = cfg.wr_slots[0] > cfg.B1
    assert not late
    vr, prs = [], []
    for s in range(EXIT, STEP):
        for d in MEM[s]:
            if d[0] == 'V' and d[1] == 3: vr.append((d[2], mem_ins(st, s, d)))
            elif d[0] == 'PR': prs.append(((d[1], d[2]), mem_ins(st, s, d)))
    vr.sort(key=lambda x: x[0]); vr = [x for _, x in vr]
    prs.sort(key=lambda x: x[0]); prs = [x for _, x in prs]
    MLR = (('ML', 0), 'ml', False)
    lw = [I(f"ds_write_b32 v{MLW}, a{L_SH+4*c}" + (f" offset:{256*c}" if c else ""), 'dsw', [f"v{MLW}", f"a{L_SH+4*c}"], [], reg=MLR) for c in range(2)]
    tail = []
    for s in range(EXIT, STEP): tail += [x for x in sm_ops(st, s) if not (set(x.w) | set(x.r)) & set(R('v', Sb(1 - par), 16))]
    LR = CI_OWN
    LO, RI, RS = P, P + 2, P + 4
    OT, OT1, STG = (('OT', 0), 'ot', True), (('OT', 1), 'ot', True), (('ST', 0), 'st', True)
    lr = [I(f"ds_read2st64_b32 v[{LR+4*c+2*h}:{LR+4*c+2*h+1}], v{MLRD} offset0:{4*h+c} offset1:{4*h+2+c}", 'dsr', [f"v{MLRD}"], R('v', LR + 4 * c + 2 * h, 2), reg=MLR)
          for c in range(2) for h in range(2)]
    mm = [ones_mfma(L_OWN, 0, Pb(par))] + [pv_mfma(3, par, 0, p) for p in range(8)] + \
         [ones_mfma(L_OWN, 1, Pb(par) + 4)] + [pv_mfma(3, par, 1, p) for p in range(8)] + [pvsh_mfma(n) for n in range(16)]
    NM = len(mm)
    def fin(b, rinv_pair, sel, addr, off, reg, pk):
        if not pk: mul = [vmul(f"v{b+i}", f"v{rinv_pair+sel}", f"v{b+i}") for i in range(4)]
        else: mul = [V("v_pk_mul_f32", f"v[{b+i}:{b+i+1}]", f"v[{b+i}:{b+i+1}]", f"v[{rinv_pair}:{rinv_pair+1}]",
                       mods="op_sel:[0,1] op_sel_hi:[1,1]" if sel else "op_sel:[0,0] op_sel_hi:[1,0]") for i in (0, 2)]
        return mul + [cvtpk(f"v{b}", f"v{b}", f"v{b+1}"), cvtpk(f"v{b+1}", f"v{b+2}", f"v{b+3}"), dsw64(addr, ('v', b), off, reg=reg)]
    F = []
    def f(n, *xs):
        for x in xs: F.append((n, x))
    nv = cfg.epi_nv
    for x in vr[:nv]: a(x)
    t = list(tail)
    rest = vr[nv:]
    while rest or t:
        f(0, *rest[:2]); rest = rest[2:]
        if t: f(0, t.pop(0))
    f(0, *prs)
    f(4, accr(f"v{LO}", f"a{L_OWN}"))
    f(0, smov(f"s{sT+2}", hex(cfg.thresh)), vrcp(f"v{RI}", f"v{LO}"))
    f(17, accr(f"v{LO+1}", f"a{L_OWN+4}"))
    groups = [(O_OWN + 4 * p, RI, 0, AW, p * 32, OT) for p in range(8)]
    ng = cfg.epi_ng
    for gidx in range(ng):
        f(0, *fin(*groups[gidx], pk=False))
        if gidx == 0: f(0, vrcp(f"v{RI+1}", f"v{LO+1}"))
        if gidx == cfg.epi_lw: f(0, *lw)
    G = [('BAR',)]
    for c in range(2): G += [vadd(f"v{LR+4*c}", f"v{LR+4*c}", f"v{LR+4*c+1}"), vadd(f"v{LR+4*c+2}", f"v{LR+4*c+2}", f"v{LR+4*c+3}")]
    for c in range(2): G += [vadd(f"v{LR+4*c}", f"v{LR+4*c}", f"v{LR+4*c+2}")]
    G += [vcmp("v_cmp_nle_f32", "s[52:53]", f"v{LO}", f"s{sT+2}"), vcmp("v_cmp_nle_f32", "s[56:57]", f"v{LO+1}", f"s{sT+2}")]
    for c in range(2): G += [vrcp(f"v{RS+c}", f"v{LR+4*c}")]
    G += [raw("s_or_b64 s[52:53], s[52:53], s[56:57]", 'salu', ['s52', 's53', 's56', 's57'], ['s52', 's53', 'scc'])]
    G += [vcmp("v_cmp_nle_f32", "s[54:55]", f"v{LR}", f"s{sT+2}"), vcmp("v_cmp_nle_f32", "s[56:57]", f"v{LR+4}", f"s{sT+2}")]
    k = 0
    def put(x):
        if isinstance(x, tuple):
            q.wait_op(lw[-1]); a(barrier())
            for y in lr: a(y)
        else: a(x)
    sub = []
    gi = ng
    for x in stamp(1, 3): a(x)
    for n, m in enumerate(mm):
        if n == 18:
            for y in stamp(4, 3): a(y)
        a(m)
        c = 0
        while c < 2:
            if k < len(F) and F[k][0] <= n:
                x = F[k][1]; put(x); k += 1
                if isinstance(x, tuple): c += 1
                elif x.k == 'trans': c += 2
                elif x.k not in ('salu', 'wait'): c += 1
            else: break
    for x in stamp(6, 3): a(x)
    for _, x in F[k:]: put(x)
    todo = [fin(*g, pk=True) for g in groups[gi:]]
    for g in todo:
        for x in g: a(x)
    lastw = [y for y in q.ds if y.k == 'dsw' and y.x.get('reg') == OT][-1]
    for x in stamp(7, 3): a(x)
    R0 = S0
    c1 = [fin(O_OWN + 32 + 4 * p, RI, 1, AW, p * 32 + 4352, OT1, True) for p in range(8)]
    sh = [fin(O_SH + 8 * p + 4 * c, RS, c, SW, p * 32 + c * 1280, STG, True) for p in range(2) for c in range(2)]
    sc = [raw("s_or_b64 s[54:55], s[54:55], s[56:57]", 'salu', ['s54', 's55', 's56', 's57'], ['s54', 's55', 'scc'])]
    if cfg.force_slow:
        sc += [raw("s_mov_b64 s[54:55], -1", 'salu', [], ['s54', 's55']), raw("s_mov_b64 s[52:53], -1", 'salu', [], ['s52', 's53'])]
    sc += [smov(f"s{SO2}", f"s{SO}"), smov(f"s{SO2+1}", f"s{SO+1}"), smov(f"s{SO2+3}", "0x20000"),
           scmp("s_cmp_lg_u64", "s[54:55]", 0), S("s_cselect_b32", f"s{SO2+2}", 0, 40960, w_scc=False, r_scc=True),
           S("s_add_u32", f"s{sT+1}", f"s{sW8192}", 4096),
           S("s_lshl_b32", f"s{sT+3}", f"s{sW}", 6), S("s_add_u32", f"s{sT+3}", f"s{sT+3}", 32768), S("s_add_u32", f"s{sT+4}", f"s{sT+3}", 4096)]
    for x in c1[0]: a(x)
    q.wait_op(lastw)
    for n in range(4): a(dsr128(('v', R0 + 4 * n), AR, 1088 * n, reg=OT))
    st0 = [vstore(('v', R0 + 4 * n), 4, VLIN, SO, f"s{sW8192}", 1024 * n, SF) for n in range(4)]
    put(G.pop(0))
    for p in range(1, 8):
        for x in c1[p]: a(x)
        if st0: a(st0.pop(0))
        for _ in range(3):
            if G: a(G.pop(0))
    lastw = c1[7][-1]
    for x in G: a(x)
    for x in sc: a(x)
    for x in sh[0] + sh[1]: a(x)
    q.wait_op(lastw)
    for n in range(4, 8): a(dsr128(('v', R0 + 4 * n), AR, 1088 * n, reg=OT1))
    for x in sh[2] + sh[3]: a(x)
    for n in range(4, 8): a(vstore(('v', R0 + 4 * n), 4, VLIN, SO, f"s{sT+1}", 1024 * (n % 4), SF))
    q.wait_op(sh[3][-1])
    for n in range(2): a(dsr128(('v', O_SH + 4 * n), SR, 1280 * n, reg=STG))
    for n in range(2): a(vstore(('v', O_SH + 4 * n), 4, SG, SO2, f"s{sT+3+n}", 0, SF))
    for x in stamp(9): a(x)
    a(raw("s_or_b64 s[56:57], s[52:53], s[54:55]", 'salu', ['s52', 's53', 's54', 's55'], ['s56', 's57', 'scc']))
    a(branch("s_cbranch_scc1", "L_slow", ['scc']))
    return q.o

def store_tile_rows(Oreg, rinv, soff):
    o = []
    for db in range(4):
        b = Oreg + 16 * db
        for i in range(16): o.append(vmul(f"v{b+i}", f"v{rinv}", f"v{b+i}"))
        for m in range(8): o.append(cvtpk(f"v{b+m}", f"v{b+2*m}", f"v{b+2*m+1}"))
        for pr in range(2):
            r0 = b + 4 * pr
            o.append(swap32(f"v{r0}", f"v{r0+2}")); o.append(swap32(f"v{r0+1}", f"v{r0+3}"))
        for pr in range(2): o.append(vstore(('v', b + 4 * pr), 4, VQ, SO, soff, db * 64 + pr * 32))
    return o

def slow_path():
    o = []; a = o.append
    Kr, Sr, Vr, Or, Pr = 80, 112, 128, O_OWN, 72
    mreg, lreg = SLM, SLL
    a(label("L_slow"))
    a(wait(vm=0, lg=0))
    a(smov(f"s{SO+2}", 40960))
    a(V("v_bfe_u32", "v1", f"v{VLIN}", 4, 5)); a(V("v_lshrrev_b32", "v2", 9, f"v{VLIN}"))
    a(V("v_lshlrev_b32", f"v{VQ}", 4, "v2")); a(V("v_lshl_add_u32", f"v{VQ}", "v1", 8, f"v{VQ}"))
    a(scmp("s_cmp_lg_u64", "s[52:53]", 0)); a(branch("s_cbranch_scc0", "L_slow_sh", ['scc']))
    a(smov("s33", f"s{sW8192}"))
    a(raw("s_mov_b64 s[52:53], 0", 'salu', [], ['s52', 's53']))
    a(branch("s_branch", "L_slow_tile"))
    a(label("L_slow_sh"))
    a(scmp("s_cmp_lg_u64", "s[54:55]", 0)); a(branch("s_cbranch_scc0", "L_end", ['scc']))
    a(scmp("s_cmp_lg_u32", f"s{sW}", 0)); a(branch("s_cbranch_scc1", "L_end", ['scc']))
    a(smov("s33", 32768))
    a(raw("s_mov_b64 s[54:55], 0", 'salu', [], ['s54', 's55']))
    a(label("L_slow_tile"))
    for j in range(8): a(vload(('v', Q_OWN + 4 * j), 4, VQ, SQ, "s33", 32 * j))
    a(wait(vm=0))
    for g in range(8): o.extend(scale4(Q_OWN + 4 * g, 240, pk=False))
    a(vmov(f"v{mreg}", "0xff800000"))
    def qk():
        for j in range(8): a(vload(('v', Kr + 4 * j), 4, VQ, SK, "s34", 32 * j))
        a(wait(vm=0))
        for j in range(8): a(mfma(('v', Sr), ('v', Kr + 4 * j), ('v', Q_OWN + 4 * j), 0 if j == 0 else ('v', Sr)))
        a(nop(15))
    a(smov("s34", 0))
    a(label("L_slow_p1"))
    qk()
    for i in range(16): a(V("v_max_f32", f"v{mreg}", f"v{mreg}", f"v{Sr+i}"))
    a(S("s_add_u32", "s34", "s34", 8192)); a(scmp("s_cmp_lt_u32", "s34", 262144)); a(branch("s_cbranch_scc1", "L_slow_p1", ['scc']))
    a(vmov("v1", f"v{mreg}")); a(nop(1)); a(swap32(f"v{mreg}", "v1")); a(V("v_max_f32", f"v{mreg}", f"v{mreg}", "v1"))
    a(vmov(f"v{lreg}", 0))
    for i in range(64): a(vmov(f"v{Or+i}", 0))
    a(V("v_lshrrev_b32", "v2", 8, f"v{VQ}"))
    a(V("v_bfe_u32", "v3", f"v{VQ}", 4, 1))
    a(V("v_lshlrev_b32", "v2", 1, "v2")); a(V("v_lshl_add_u32", "v2", "v3", 10, "v2"))
    a(smov("s34", 0))
    a(label("L_slow_p2"))
    qk()
    for i in range(16): a(V("v_sub_f32", f"v{Sr+i}", f"v{Sr+i}", f"v{mreg}"))
    for i in range(16): a(vexp(f"v{Sr+i}", f"v{Sr+i}"))
    a(nop(0))
    for i in range(16): a(vadd(f"v{lreg}", f"v{lreg}", f"v{Sr+i}"))
    for m in range(8): a(cvtpk(f"v{Pr+m}", f"v{Sr+2*m}", f"v{Sr+2*m+1}"))
    for ks in range(2):
        a(S("s_add_u32", "s35", "s34", ks * 4096))
        for db in range(4):
            for r in range(4):
                for e in range(2):
                    j = 2 * r + e
                    off = (8 * (j // 4) + j % 4) * 256 + db * 64
                    a(vload(('v', Kr + 8 * db + 2 * r + e), 1, 2, SV, "s35", off, op="buffer_load_ushort"))
        a(wait(vm=0))
        for db in range(4):
            for r in range(4): a(V("v_lshl_or_b32", f"v{Vr+4*db+r}", f"v{Kr+8*db+2*r+1}", 16, f"v{Kr+8*db+2*r}"))
        a(nop(1))
        for db in range(4): a(mfma(('v', Or + 16 * db), ('v', Vr + 4 * db), ('v', Pr + 4 * ks), ('v', Or + 16 * db)))
        a(nop(7))
    a(S("s_add_u32", "s34", "s34", 8192)); a(scmp("s_cmp_lt_u32", "s34", 262144)); a(branch("s_cbranch_scc1", "L_slow_p2", ['scc']))
    a(nop(15))
    a(vmov("v1", f"v{lreg}")); a(nop(1)); a(swap32(f"v{lreg}", "v1")); a(vadd(f"v{lreg}", f"v{lreg}", "v1"))
    a(vrcp("v5", f"v{lreg}")); a(nop(0))
    o += store_tile_rows(Or, 5, "s33")
    a(wait(vm=0))
    a(branch("s_branch", "L_slow_sh"))
    return o

def stamp_out():
    o = []
    if not cfg.stamps: return o
    a = o.append
    a(raw("s_waitcnt vmcnt(0)", 'wait', vm=0)); o += [raw("s_memtime s[80:81]", 'stampi'), raw("s_memrealtime s[84:85]", 'stampi')]
    a(raw("s_waitcnt lgkmcnt(0)", 'wait', lg=0))
    if cfg.stamp_wg >= 0:
        a(scmp("s_cmp_lg_u32", "s2", cfg.stamp_wg)); a(branch("s_cbranch_scc1", "L_end", ['scc']))
        a(scmp("s_cmp_lg_u32", f"s{sW}", 0)); a(branch("s_cbranch_scc1", "L_end", ['scc']))
        a(vmov("v1", 0))
    else:
        a(raw("s_load_dwordx2 s[58:59], s[0:1], 40", 'smem', [], R('s', 58, 2))); a(wait(lg=0))
        a(S("s_lshl_b32", "s33", "s2", 2)); a(S("s_add_u32", "s33", "s33", f"s{sW}")); a(S("s_lshl_b32", "s33", "s33", 6))
        a(vmov("v1", "s33"))
    def put(off, x, y):
        if y is None: a(vmov("v2", x))
        else:
            a(S("s_sub_u32", "s33", x, y)); a(vmov("v2", "s33"))
        a(raw(f"global_store_dword v1, v2, s[58:59] offset:{off}", 'vstore', ['v1', 'v2', 's58', 's59'], [], data=['v2']))
        a(nop(1))
    if cfg.fine != 9:
        for i in range(11): put(4 * i, f"s{60+2*i}", "s60")
    else: put(40, "s80", "s60")
    put(44, "s84", "s82"); put(48, "s86", "s82"); put(52, "s88", "s82"); put(56, "s82", None)
    return o

def build():
    global MEM, LGW
    MEM = build_mem_schedule()
    LGW = compute_lgkm_waits()
    pro = prologue()
    body = body_iter(0)
    epi = epilogue()
    slow = slow_path()
    static = pro + [raw(".p2align 6", 'label'), label("L_loop")] + body + [label("L_exit")] + stamp(8) + \
             ([raw("s_memrealtime s[88:89]", 'stampi')] if cfg.stamps else []) + epi + stamp_out() + \
             [label("L_end"), raw("s_endpgm", 'branch')] + slow
    trace = list(pro)
    for it in range(4):
        b = body_iter(2 * it, last=(it == 3))
        assert [x.t for x in b] == [x.t for x in body[:len(b)]], "loop body is not periodic"
        trace += b
    trace += epi
    errs = verify(trace, "main")
    errs += verify(slow, "slow", check_lds=False)
    return static, errs, (pro, body, epi)

HEADER = """; Kernarg layout for this problem (48 bytes, ptrs only, base s[0:1]):
; One workgroup per (batch, q-head): 4 waves; wave w owns q rows 32w..32w+31 against all keys.  For the shared
; LDS and wave w accumulates output columns 32w..32w+31.
; @launch grid=(256,1,1) block=(256,1,1) lds=163840
.amdgcn_target "amdgcn-amd-amdhsa--gfx950"
.text
.globl {n}_kernel
.p2align 8
.type {n}_kernel,@function
{n}_kernel:
"""
FOOTER = """
.section .rodata,"a"
.p2align 6
.amdhsa_kernel {n}_kernel
  .amdhsa_next_free_vgpr 512
  .amdhsa_next_free_sgpr 96
  .amdhsa_accum_offset 256
  .amdhsa_group_segment_fixed_size 0
  .amdhsa_kernarg_size 48
  .amdhsa_user_sgpr_count 2
  .amdhsa_user_sgpr_kernarg_segment_ptr 1
  .amdhsa_system_sgpr_workgroup_id_x 1
.end_amdhsa_kernel
"""

def main(argv=None):
    ap = argparse.ArgumentParser()
    ap.add_argument("-o", default="cdna_kernels/%s.s" % NAME)
    ap.add_argument("--stamps", action="store_true")
    ap.add_argument("--stamp-wg", type=int, default=0)
    ap.add_argument("--force-slow", action="store_true")
    ap.add_argument("--thresh", default=None)
    ap.add_argument("--store-flags", default="nt")
    ap.add_argument("--ld", default="nt"); ap.add_argument("--qld", default="nt")
    ap.add_argument("--fine", type=int, default=0)
    ap.add_argument("--qsplit", type=int, default=2)
    ap.add_argument("--lead", type=int, default=8); ap.add_argument("--lag", type=int, default=6)
    ap.add_argument("--wr", default=None); ap.add_argument("--dv", default=None); ap.add_argument("--dk", default=None)
    ap.add_argument("--sched", default="early"); ap.add_argument("--nospread", action="store_true")
    ap.add_argument("--show", action="store_true")
    ap.add_argument("--epi", default="8,6,3")
    ap.add_argument("--novm", action="store_true"); ap.add_argument("--nobarx", action="store_true"); ap.add_argument("--v0pos", type=int, default=1)
    ap.add_argument("--b1", type=int, default=106); ap.add_argument("--b2", type=int, default=160); ap.add_argument("--inc", type=int, default=20)
    ap.add_argument("--noexcl", action="store_true")
    ap.add_argument("--drop", default=""); ap.add_argument("--nobar", action="store_true")
    args = ap.parse_args(argv)
    cfg.stamps = args.stamps; cfg.stamp_wg = args.stamp_wg; cfg.force_slow = args.force_slow; cfg.store_flags = args.store_flags
    cfg.ld = args.ld; cfg.qld = args.qld; cfg.fine = args.fine; cfg.qsplit = args.qsplit
    cfg.LEAD = args.lead; cfg.LAG = args.lag; cfg.sched = args.sched; cfg.spread = not args.nospread
    cfg.novm = args.novm; cfg.barx = not args.nobarx; cfg.v0pos = args.v0pos
    cfg.epi_nv, cfg.epi_ng, cfg.epi_lw = [int(x) for x in args.epi.split(",")]
    cfg.excl = not args.noexcl; cfg.B1 = args.b1; cfg.B2 = args.b2; cfg.inc_slot = args.inc
    cfg.drop = tuple(x for x in args.drop.split(",") if x); cfg.nobar = args.nobar
    if args.wr: cfg.wr_slots = tuple(int(x) for x in args.wr.split(","))
    if args.dv: cfg.dv_slots = tuple(int(x) for x in args.dv.split(","))
    if args.dk: cfg.dk_slots = tuple(int(x) for x in args.dk.split(","))
    if args.thresh: cfg.thresh = int(args.thresh, 0)
    static, errs, parts = build()
    if args.show:
        for s in range(STEP): print(s, sm_kind(s) or "", LGW[s], MEM[s])
    for e in errs[:40]: print("ERR", e)
    cnt = lambda L: sum(1 for x in L if x.k != 'label')
    print("errors:", len(errs), " instructions:", cnt(static), " pro/body/epi:", [cnt(p) for p in parts])
    open(args.o, "w").write(HEADER.format(n=NAME) + text_of(static) + FOOTER.format(n=NAME))

if __name__ == "__main__": main()
```

```python
import sys, argparse, re
from asmlib import *

NAME = "standalone__gqa_softmax__near_ridge"
WL, STEP = 34, 170

class Cfg:
    E0 = 7
    LEAD = 8
    LAG = 6
    thresh = 0x4b800000
    stamps = False; stamp_wg = 0; fine = 0
    force_slow = False
    store_flags = "nt"; ld = "nt"; qld = "nt"
    qsplit = 2
    dk_slots = (108, 114, 118, 122, 126, 130, 134, 138)
    dv_slots = (164, 168, 172, 176, 178, 182, 186, 190)
    wr_slots = (94, 96, 98, 100)
    inc_slot = 20
    B1 = 106; B2 = 160
cfg = Cfg()

PS = (0, 20)
PXR = 4
PXW, MLW = 8, 9
SLM, SLL = 6, 7
AW, AR, SW, SR, SG = 137, 142, 143, 10, 11
MLRD = 18
KDMA = 12
VDMA = 16
VQ, VLIN = 4, 19
KADDR = 24
VADDR = 40
P = 72
S0 = 88
CI_OWN, CI_SH = 120, 128
VQRT = 136
MM = 138
MXW, MXR = 140, 141
Q_OWN = 144
O_OWN = 176
O_SH = 240
Q_SH, KF, VF0, VFP, PSH, L_OWN, L_SH, ONES = 0, 32, 64, 96, 120, 152, 160, 168
def vf(i, p): return VF0 + 8 * i + 4 * p if p < 2 else VFP + 4 * (p - 2)
def psh(i, c): return PSH + 8 * i + 4 * c
def Sb(par): return S0 + 16 * par
def Pb(par): return P + 8 * par
sW, SQ, SK, SV, SO = 3, 8, 12, 16, 20
sW8192, sOff0, sOff1, sC, sMask = 24, 25, 26, 27, 28
sT = 29
sKill = 34
sM0 = 44
sC2 = 52
sQS, sQO1 = 54, 55
SCALE_BITS = 0x3e0293ee
LDS_K1, LDS_K0, LDS_X, LDS_V0, LDS_V1 = 0, 32768, 65536, 98304, 131072
LDS_PX = LDS_X
LDS_ML = LDS_X + 16384
LDS_QS = LDS_V1
LDS_MX = LDS_V1 + 8192
DROP = 0x30000
def koff(buf): return LDS_K0 if buf == 0 else LDS_K1

def qk_mfma(u, par, k, first_c=True):
    x, j = divmod(k, 4); a, c = x % 2, x // 2
    sh = (u == 0)
    D = ('v', Sb(par) + 4 * x)
    B = ('a', Q_SH + 16 * c + 4 * j) if sh else ('v', Q_OWN + 16 * c + 4 * j)
    C = (('v', (CI_SH if sh else CI_OWN) + 4 * c) if first_c else 0) if j == 0 else D
    return mfma16(D, ('a', KF + 16 * a + 4 * j), B, C)
def ones_mfma(Lreg, c, Breg): return mfma16(('a', Lreg + 4 * c), ('a', ONES), ('v', Breg), ('a', Lreg + 4 * c))
def pvsh_mfma(n):
    i, c, p = n // 4, (n // 2) % 2, n % 2
    O = ('v', O_SH + 8 * p + 4 * c)
    return mfma16(O, ('a', vf(i, p)), ('a', psh(i, c)), O)
def pv_mfma(i, par, c, p):
    O = ('v', O_OWN + 32 * c + 4 * p)
    return mfma16(O, ('a', vf(i, p)), ('v', Pb(par) + 4 * c), O)

def mfma_at(step, g):
    W, k = divmod(g, WL)
    if k < 16:
        u = W + 1; st = step
        if u == 5: u = 0; st = step + 1
        return qk_mfma(u, (st + u) % 2, k)
    idx = k - 16
    if W == 0:
        if idx == 8: return ones_mfma(L_SH, 0, PS[0])
        if idx == 17: return ones_mfma(L_SH, 1, PS[1])
        return pvsh_mfma(idx if idx < 8 else idx - 1)
    par = (step + W) % 2
    if idx == 8: return ones_mfma(L_OWN, 0, Pb(par))
    if idx == 17: return ones_mfma(L_OWN, 1, Pb(par) + 4)
    c, p = (0, idx) if idx < 8 else (1, idx - 9)
    return pv_mfma(W - 1, par, c, p)

def sm_ops(step, g):
    ops = []
    for st, i in [(step, j) for j in range(5)] + [(step + 1, 0), (step - 1, 4)]:
        rel = g + STEP * (step - st) - WL * (i - 1) - cfg.E0
        par = (st + i) % 2; S_ = Sb(par)
        if 0 <= rel <= 30 and rel % 2 == 0: ops.append(vexp(f"v{S_+rel//2}", f"v{S_+rel//2}"))
        if 3 <= rel <= 31 and rel % 4 == 3:
            m = (rel - 3) // 4
            dst = (PS[m // 4] + m % 4) if i == 0 else Pb(par) + m
            ops.append(cvtpk(f"v{dst}", f"v{S_+2*m}", f"v{S_+2*m+1}"))
    return ops

def sm_kind(g):
    o = sm_ops(2, g % STEP)
    return 'exp' if any(x.k == 'trans' for x in o) else 'cvt' if o else None

def build_mem_schedule():
    ops = []
    L = cfg.LEAD; B1, B2 = cfg.B1, cfg.B2
    def add(d, e, l):
        assert e <= l, (d, e, l)
        ops.append([d, e, l])
    for a in range(2):
        for j in range(4):
            o = 4 * a + j
            add(('K', 1, a, j), 0 + 8 + o, 34 + o - L)
            add(('K', 2, a, j), 34 + 8 + o, 68 + o - L)
            add(('K', 3, a, j), 68 + 8 + o, min(102 + o - L, B1 - L))
            add(('K', 0, a, j), max(102 + 8 + o, B1 + 1), 136 + o - L)
    def idx_of(n): return n if n < 8 else n + 1
    for i in range(4):
        for p in range(8):
            use = WL * (i + 1) + 16 + p
            late = use - L if i < 3 else min(use - L, B2 - L)
            if p < 2: early = 16 + idx_of(4 * i + 2 + p)
            elif i > 0: early = WL * i + 25 + p
            else: early = 136 + 25 + p - STEP
            for hh in range(2): add(('V', i, p, hh), early, late)
    late = cfg.wr_slots[0] > B1
    for i in range(4):
        for c in range(2): add(('PR', i, c), (B2 if late else B1) + 1, STEP + ENTRY - 1 if late else STEP - 1)
    sched = {s: [] for s in range(STEP)}
    for n, sl in enumerate(cfg.dk_slots): sched[sl % STEP].append(('DK', n))
    for n, sl in enumerate(cfg.dv_slots): sched[sl % STEP].append(('DV', n))
    for d, sl in zip([('PW', 0, 0), ('PW', 0, 1), ('PW', 1, 0), ('PW', 1, 1)], cfg.wr_slots): sched[sl % STEP].append(d)
    def cap(s):
        k = sm_kind(s)
        c = 0 if k == 'exp' else 1 if k == 'cvt' else 2
        if s in (B1, B2): c = 0 if cfg.barx else c - 1
        return c
    for s in sched: assert len(sched[s]) <= cap(s), (s, sched[s], cap(s))
    fixed0 = {g: list(v) for g, v in sched.items()}
    slots = []
    for g in range(STEP):
        for k in range(cap(g) - len(sched[g])): slots.append((g, k))
    by_gap = {}
    for sl in slots: by_gap.setdefault(sl[0], []).append(sl)
    def cands(e, l):
        ts = list(range(e, l + 1))
        if cfg.sched == "late": ts.reverse()
        elif cfg.sched == "mid":
            mid = (e + l) / 2; ts.sort(key=lambda t: abs(t - mid))
        busy = lambda g: cfg.excl and any(d[0] in ('DK', 'DV', 'PW') for d in fixed0[g])
        first = [sl for t in ts for sl in by_gap.get(t % STEP, []) if sl[1] == 0 and not busy(sl[0])]
        second = [sl for t in ts for sl in by_gap.get(t % STEP, []) if sl[1] > 0 and not busy(sl[0])]
        last = [sl for t in ts for sl in by_gap.get(t % STEP, []) if busy(sl[0])]
        return (first + second if cfg.spread else [sl for t in ts for sl in by_gap.get(t % STEP, []) if not busy(sl[0])]) + last
    order = sorted(range(len(ops)), key=lambda i: (ops[i][2] - ops[i][1], ops[i][2]))
    match = {}
    cand = {i: cands(ops[i][1], ops[i][2]) for i in order}
    def aug(i, seen):
        for sl in cand[i]:
            if sl not in match: match[sl] = i; return True
        for sl in cand[i]:
            if sl in seen: continue
            seen.add(sl)
            if aug(match[sl], seen): match[sl] = i; return True
        return False
    sys.setrecursionlimit(10000)
    if cfg.excl:
        full = cand
        cand = {i: [sl for sl in full[i] if not any(d[0] in ('DK', 'DV', 'PW') for d in fixed0[sl[0]])] for i in order}
        left = [i for i in order if not aug(i, set())]
        cand = full
        for i in left:
            if not aug(i, set()): raise Exception(f"cannot place {ops[i]}")
        print("ops sharing a gap with DMA/PW:", len(left))
    else:
        for i in order:
            if not aug(i, set()): raise Exception(f"cannot place {ops[i]}")
    for sl, i in match.items(): sched[sl[0]].append(ops[i][0])
    dl = {tuple(o[0]): o[2] for o in ops}
    for s in sched: sched[s].sort(key=lambda d: (1, 0) if d[0] in ('DK', 'DV', 'PW') else (0, (dl[d] - s) % STEP))
    return sched
Cfg.sched = "early"
Cfg.spread = True
Cfg.drop = ()
Cfg.barx = False
Cfg.codepf = 12
Cfg.cpos = 0
Cfg.k1pos = 0; Cfg.b0pos = 0; Cfg.v1pos = 0
Cfg.epi_nv = 8; Cfg.epi_ng = 6; Cfg.epi_lw = 3
Cfg.novm = False
Cfg.v0pos = 3
Cfg.excl = False
Cfg.nobar = False

MEM = LGW = None

def mem_ins(step, g, d):
    if d[0] == 'K':
        _, tp, a, j = d
        cs = step + 1 if tp == 0 else step
        buf = cs % 2
        return dsr128(('a', KF + 16 * a + 4 * j), KADDR + 4 * tp + j, koff(buf) + 4096 * a, reg=(('K', buf), cs, tp == 0) if cs < 8 else None)
    if d[0] == 'V':
        _, i, p, hh = d
        cs = step + 1 if (i == 0 and g > cfg.B2) else step
        buf = cs % 2
        return dstr(('a', vf(i, p) + 2 * hh), VADDR + 8 * i + p, buf * 32768 + hh * 4096, reg=(('V', buf), cs, i == 0) if cs < 8 else None)
    if d[0] == 'PW':
        _, c, h = d
        return dsw64(PXW, ('v', PS[c] + 2 * h), (step % 2) * 8192 + c * 1024 + h * 512, reg=(('PX', step % 2), step, True))
    if d[0] == 'PR':
        _, i, c = d
        cs = step if g > cfg.B1 else step - 1
        o0 = 16 * (cs % 2) + 2 * c
        return dsr2st64_64(('a', psh(i, c)), PXR + i, o0, o0 + 1, reg=(('PX', cs % 2), cs, i == 0))
    if d[0] == 'DK':
        n = d[1]; cs = step + 2; buf = cs % 2
        return dma(KDMA + n % 4, SK, f"s{sOff0 if n < 4 else sOff1}", 1024 * (n % 4), reg=(('K', buf), cs, True) if cs < 8 else None, flags=cfg.ld)
    if d[0] == 'DV':
        n = d[1]; cs = step + 2 if g > cfg.B2 else step + 1; buf = cs % 2
        return dma(VDMA + n % 2, SV, f"s{sOff0 if n < 4 else sOff1}", 1024 * (n % 4), reg=(('V', buf), cs, True) if cs < 8 else None, flags=cfg.ld)

def m0_val_reg(kv, buf, grp): return sM0 + (0 if kv == 'K' else 4) + 2 * buf + grp

def scalar_ops(step, g):
    o = []
    def m0(kv, buf, grp): return S("s_max_u32", "m0", f"s{m0_val_reg(kv, buf, grp)}", f"s{sKill}")
    dk, dv = [x % STEP for x in cfg.dk_slots], [x % STEP for x in cfg.dv_slots]
    if g == dk[0] - 1: o.append(m0('K', step % 2, 0))
    if g == dk[4] - 1: o.append(m0('K', step % 2, 1))
    if g == dv[0] - 1: o.append(m0('V', (step if g > cfg.B2 else step + 1) % 2, 0))
    if g == dv[4] - 1: o.append(m0('V', (step if g > cfg.B2 else step + 1) % 2, 1))
    x = cfg.inc_slot + 4
    if g == x + 1: o.append(S("s_add_u32", f"s{sOff0}", f"s{sOff0}", "0x8000"))
    if g == x + 3: o.append(S("s_add_u32", f"s{sOff1}", f"s{sOff1}", "0x8000"))
    if g == x + 5: o.append(scmp("s_cmp_ge_u32", f"s{sOff0}", "0x40000"))
    if g == x + 7: o.append(S("s_cselect_b32", f"s{sKill}", hex(DROP), 0, w_scc=False, r_scc=True))
    return o

def gap_mem(step, g): return [mem_ins(step, g, d) for d in MEM[g] if d[0] not in cfg.drop]

def compute_lgkm_waits():
    seq = []; prod = {}; covered = -1; res = {}
    for t in range(0, 6 * STEP):
        st, sl = divmod(t, STEP)
        nst, nsl = divmod(t + 1, STEP)
        nm = mfma_at(nst, nsl)
        need = max([prod.get(r, -1) for r in nm.x['AB']] + [-1])
        if sl == cfg.B1: need = max([need] + [i for i, (tt, d) in enumerate(seq) if d in ('K', 'PW')])
        if sl == cfg.B2: need = max([need] + [i for i, (tt, d) in enumerate(seq) if d in ('V', 'PW')])
        n = None
        if need > covered:
            tgt = need
            for i in range(len(seq) - 1, -1, -1):
                if seq[i][0] <= t - cfg.LAG: tgt = max(tgt, i); break
            n = len(seq) - 1 - tgt
            if n > 15: tgt = len(seq) - 1 - 15; n = 15
            covered = tgt
        res[(st, sl)] = n
        for d in MEM[sl]:
            if d[0] in ('DK', 'DV') or d[0] in cfg.drop: continue
            ins = mem_ins(2 + st % 2, sl, d)
            seq.append((t, d[0]))
            for r in ins.w: prod[r] = len(seq) - 1
    out = {}
    for sl in range(STEP):
        assert len({res[(s, sl)] for s in range(2, 6)}) == 1
        out[sl] = res[(4, sl)]
    return out

def gap(step, g, part='all'):
    head = [mfma_at(step, g)]
    n = LGW[g]
    if g == cfg.B1 or g == cfg.B2:
        head.append(wait(vm=(8 if not cfg.novm else 40) if not cfg.drop.count('DK') else None, lg=n if n is not None else (None if not cfg.drop.count('DK') else 15)))
        if not cfg.nobar: head.append(barrier())
    elif n is not None: head.append(wait(lg=n))
    head += scalar_ops(step, g)
    rest = gap_mem(step, g) + sm_ops(step, g)
    return head if part == 'head' else rest if part == 'rest' else head + rest

ENTRY = 15
EXIT = 135

def body_iter(st0, last=False):
    o = []
    o += gap(st0, ENTRY, 'rest')
    for s in range(ENTRY + 1, STEP): o += gap(st0, s)
    for s in range(0, EXIT):
        g = gap(st0 + 1, s)
        if s == EXIT - 2:
            g = gap(st0 + 1, s, 'head') + [scmp("s_cmp_eq_u32", f"s{sOff0}", hex(9 * 32768))] + gap(st0 + 1, s, 'rest')
        o += g
    o += gap(st0 + 1, EXIT, 'head') + [branch("s_cbranch_scc1", "L_exit", ['scc'])]
    if last: return o
    o += gap(st0 + 1, EXIT, 'rest')
    for s in range(EXIT + 1, STEP): o += gap(st0 + 1, s)
    for s in range(0, ENTRY): o += gap(st0 + 2, s)
    o += gap(st0 + 2, ENTRY, 'head') + [branch("s_branch", "L_loop")]
    return o

def scale4(src, tmp, pk=False):
    o = []
    for i in range(4): o.append(V("v_lshlrev_b32", f"v{tmp+2*i}", 16, f"v{src+i}"))
    for i in range(4): o.append(V("v_and_b32", f"v{tmp+2*i+1}", f"s{sMask}", f"v{src+i}"))
    if pk:
        for i in range(4): o.append(V("v_pk_mul_f32", f"v[{tmp+2*i}:{tmp+2*i+1}]", f"v[{tmp+2*i}:{tmp+2*i+1}]", f"s[{sC2}:{sC2+1}]"))
    else:
        for i in range(4): o.append(vmul(f"v{tmp+2*i}", f"s{sC}", f"v{tmp+2*i}"))
        for i in range(4): o.append(vmul(f"v{tmp+2*i+1}", f"s{sC}", f"v{tmp+2*i+1}"))
    for i in range(4): o.append(cvtpk(f"v{src+i}", f"v{tmp+2*i}", f"v{tmp+2*i+1}"))
    return o

def rowmax16(Sbase, t):
    o = []
    for c in range(2):
        b = Sbase + 8 * c
        o.append(V("v_max3_f32", f"v{t+2*c}", f"v{b}", f"v{b+1}", f"v{b+2}"))
        o.append(V("v_max3_f32", f"v{t+2*c+1}", f"v{b+3}", f"v{b+4}", f"v{b+5}"))
    for c in range(2):
        b = Sbase + 8 * c
        o.append(V("v_max3_f32", f"v{t+2*c}", f"v{t+2*c}", f"v{b+6}", f"v{b+7}"))
    for c in range(2): o.append(V("v_max_f32", f"v{t+2*c}", f"v{t+2*c}", f"v{t+2*c+1}"))
    for sw in (swap16, swap32):
        for c in range(2): o.append(vmov(f"v{t+2*c+1}", f"v{t+2*c}"))
        o.append(nop(0))
        for c in range(2): o.append(sw(f"v{t+2*c}", f"v{t+2*c+1}"))
        dst = [f"v{t}", f"v{t+2}"] if sw is swap16 else [f"v{MM}", f"v{MM+1}"]
        for c in range(2): o.append(V("v_max_f32", dst[c], f"v{t+2*c}", f"v{t+2*c+1}"))
    return o

def shift_by_max(Sbase, CI):
    o = []
    for x in range(4): o.append(mfma16_f32(('v', Sbase + 4 * x), VQRT, MM + x // 2, ('v', Sbase + 4 * x)))
    for c in range(2): o.append(mfma16_f32(('v', CI + 4 * c), VQRT, MM + c, 0))
    return o

def dense(ops):
    out = list(ops)
    i = 0
    while i < len(out) - 1:
        if out[i].k == 'trans' and out[i + 1].k == 'valu' and set(out[i].w) & set(out[i + 1].r):
            if i + 2 < len(out) and out[i + 2].k == 'trans': out[i + 1], out[i + 2] = out[i + 2], out[i + 1]; i += 1
            else: out.insert(i + 1, nop(0))
        i += 1
    return out

def stamp(idx, fine=0):
    if not cfg.stamps: return []
    if cfg.fine == 9 and idx != 0: return []
    if cfg.fine != fine and idx not in (0, 8, 9): return []
    return [raw(f"s_memtime s[{60+2*idx}:{61+2*idx}]", 'stampi')]

def prologue():
    o = []
    vmlist = []
    def a(x, tag=None):
        o.append(x)
        if x.k in ('vload', 'dma', 'vstore'): vmlist.append(tag)
    def wait_for(tag):
        last = max(i for i, t in enumerate(vmlist) if t == tag)
        return wait(vm=len(vmlist) - 1 - last)
    a(scmp("s_cmp_ge_u32", "s2", 256)); a(branch("s_cbranch_scc1", "L_end", ['scc']))
    a(raw("s_load_dwordx4 s[36:39], s[0:1], 0", 'smem', [], R('s', 36, 4)))
    a(raw("s_load_dwordx4 s[40:43], s[0:1], 16", 'smem', [], R('s', 40, 4)))
    if cfg.stamps:
        a(raw("s_load_dwordx2 s[58:59], s[0:1], 32", 'smem', [], R('s', 58, 2)))
        o += stamp(0)
        a(raw("s_memrealtime s[82:83]", 'stampi'))
    a(V("v_lshrrev_b32", "v1", 6, "v0"))
    a(V("v_and_b32", "v2", 63, "v0"))
    a(readfirst(f"s{sW}", "v1"))
    a(V("v_lshrrev_b32", "v3", 4, "v2"))
    a(V("v_and_b32", "v4", 15, "v2"))
    a(V("v_lshlrev_b32", f"v{VLIN}", 4, "v2"))
    if cfg.codepf:
        a(raw("s_getpc_b64 s[56:57]", 'salu', [], ['s56', 's57']))
        a(label("L_pc"))
        a(S("s_lshr_b32", f"s{sT}", "s2", 3)); a(S("s_and_b32", f"s{sT}", f"s{sT}", 3)); a(S("s_lshl_b32", f"s{sT}", f"s{sT}", 2))
        a(S("s_add_u32", f"s{sT}", f"s{sT}", f"s{sW}")); a(S("s_min_u32", f"s{sT}", f"s{sT}", cfg.codepf - 1)); a(S("s_lshl_b32", f"s{sT}", f"s{sT}", 10))
        a(raw(f"s_sub_u32 s{sT}, s{sT}, L_pc-{NAME}_kernel", 'salu', [f"s{sT}"], [f"s{sT}", 'scc']))
        a(S("s_ashr_i32", f"s{sT+1}", f"s{sT}", 31))
        a(S("s_add_u32", "s56", "s56", f"s{sT}")); a(S("s_addc_u32", "s57", "s57", f"s{sT+1}", r_scc=True))
        a(vmov("v7", "s57"))
        a(I(f"v_add_co_u32 v6, vcc, s56, v{VLIN}", 'valu', ['s56', f"v{VLIN}"], ['v6', 'vcc']))
        a(nop(1))
        a(I("v_addc_co_u32 v7, vcc, 0, v7, vcc", 'valu', ['v7', 'vcc'], ['v7', 'vcc']))
        a(I("global_load_dwordx4 a[0:3], v[6:7], off", 'vload', ['v6', 'v7'], R('a', 0, 4)), "PF")
    a(S("s_and_b32", f"s{sT}", "s2", 7))
    a(S("s_lshr_b32", f"s{sT+1}", "s2", 3))
    a(S("s_lshr_b32", f"s{sT+2}", "s2", 5))
    a(S("s_lshl_b32", f"s{sW8192}", f"s{sW}", 13))
    a(S("s_lshl_b32", f"s{sT+3}", f"s{sT}", 5)); a(S("s_add_u32", f"s{sT+3}", f"s{sT+3}", f"s{sT+1}"))
    a(S("s_mul_i32", f"s{sT+3}", f"s{sT+3}", 40960, w_scc=False))
    a(S("s_lshl_b32", f"s{sT+4}", f"s{sT}", 3)); a(S("s_add_u32", f"s{sT+4}", f"s{sT+4}", f"s{sT+2}"))
    a(S("s_lshl_b32", f"s{sT+4}", f"s{sT+4}", 18))
    a(V("v_xor_b32", "v5", "v3", "v4"))
    a(V("v_lshlrev_b32", "v5", 4, "v5"))
    a(V("v_lshl_add_u32", "v7", "v3", 8, "v5"))
    a(V("v_lshl_add_u32", "v6", "v4", 8, "v5"))
    a(V("v_add_u32", f"v{KDMA}", f"s{sW8192}", "v7"))
    for k in range(1, 4): a(V("v_xor_b32", f"v{KDMA+k}", 64 * k, f"v{KDMA}"))
    a(S("s_lshl_b32", f"s{sQS}", f"s{sW}", 11)); a(S("s_add_u32", f"s{sQS}", f"s{sQS}", 32768))
    a(S("s_add_u32", f"s{sQO1}", f"s{sW8192}", 4096))
    a(smov(f"s{sOff0}", 0)); a(smov(f"s{sOff1}", 4096))
    a(S("s_add_u32", "m0", f"s{sW8192}", LDS_K0))
    SA, SB = Sb(0), Sb(1)
    QW = CI_SH
    TS = CI_SH + 2
    MXV = CI_OWN
    TW = SB + 8
    TR = SB
    TMPS = P
    for e in range(2):
        a(S("s_lshl_b32", f"s{sT}", f"s{sW}", 1)); a(S("s_add_u32", f"s{sT}", f"s{sT}", e))
        a(S("s_and_b32", f"s{sT+1}", f"s{sT}", 3)); a(S("s_lshl_b32", f"s{sT+1}", f"s{sT+1}", 6))
        a(S("s_lshl_b32", f"s{sT}", f"s{sT}", 10)); a(S("s_add_u32", f"s{sT}", f"s{sT}", LDS_QS))
        a(V("v_xor_b32", f"v{QW+e}", f"s{sT+1}", "v7")); a(V("v_add_u32", f"v{QW+e}", f"s{sT}", f"v{QW+e}"))
    a(V("v_add_u32", f"v{TS}", LDS_QS, "v6"))
    for j in range(1, 4): a(V("v_xor_b32", f"v{TS+j}", 64 * j, f"v{TS}"))
    a(V("v_add_u32", f"v{KADDR}", f"s{sW8192}", "v6"))
    for j in range(1, 4): a(V("v_xor_b32", f"v{KADDR+j}", 64 * j, f"v{KADDR}"))
    a(smov(f"s{sC}", hex(SCALE_BITS))); a(smov(f"s{sMask}", "0xffff0000"))
    a(smov(f"s{sC2}", hex(SCALE_BITS))); a(smov(f"s{sC2+1}", hex(SCALE_BITS)))
    a(wait(lg=0))
    def srd(base, p, off, n):
        a(S("s_add_u32", f"s{base}", f"s{p}", f"s{off}")); a(S("s_addc_u32", f"s{base+1}", f"s{p+1}", 0, r_scc=True))
        a(S("s_and_b32", f"s{base+1}", f"s{base+1}", "0xffff"))
        a(smov(f"s{base+2}", n)); a(smov(f"s{base+3}", "0x20000"))
    o += stamp(1, 1)
    srd(SQ, 36, sT + 3, 40960)
    for e in range(2): a(vload(('v', SA + 4 * e), 4, VLIN, SQ, f"s{sQS}", 1024 * e, cfg.qld), "QS")
    srd(SK, 38, sT + 4, 262144)
    for n in range(4): a(dma(KDMA + n, SK, f"s{sOff0}", 1024 * n, reg=(('K', 0), 0, True), flags=cfg.ld), "K0")
    a(S("s_add_u32", "m0", f"s{sW8192}", LDS_K0 + 4096)); a(nop(0))
    for n in range(4): a(dma(KDMA + n, SK, f"s{sOff1}", 1024 * n, reg=(('K', 0), 0, True), flags=cfg.ld), "K0")
    o += stamp(2, 1)
    def qown(n0, n1):
        for n in range(n0, n1): a(vload(('v', Q_OWN + 4 * n), 4, VLIN, SQ, f"s{sW8192 if n < 4 else sQO1}", 1024 * (n % 4), cfg.qld), f"QO{n}")
    qown(0, cfg.qsplit)
    o += stamp(1); o += stamp(3, 1)
    def setupC():
        srd(SV, 40, sT + 4, 262144)
        srd(SO, 42, sT + 3, 40960)
        a(V("v_lshlrev_b32", "v1", 1, "v3")); a(V("v_xor_b32", "v1", "v1", "v4"))
        a(V("v_lshlrev_b32", "v1", 4, "v1")); a(V("v_lshl_add_u32", "v1", "v3", 8, "v1"))
        a(V("v_add_u32", f"v{VDMA}", f"s{sW8192}", "v1")); a(V("v_xor_b32", f"v{VDMA+1}", 128, f"v{VDMA}"))
        for i in range(1, 4):
            a(S("s_add_u32", f"s{sT+i}", f"s{sW}", i)); a(S("s_and_b32", f"s{sT+i}", f"s{sT+i}", 3))
            a(S("s_lshl_b32", f"s{56+i}", f"s{sT+i}", 11))
            a(S("s_sub_u32", f"s{sT+i}", f"s{sT+i}", f"s{sW}")); a(S("s_lshl_b32", f"s{sT+i}", f"s{sT+i}", 13))
        for i in range(1, 4):
            for j in range(4): a(V("v_add_u32", f"v{KADDR+4*i+j}", f"s{sT+i}", f"v{KADDR+j}"))
        for k in range(4): a(V("v_add_u32", f"v{TW+k}", LDS_X, f"v{KDMA+k}"))
        for j in range(4): a(V("v_add_u32", f"v{TR+j}", LDS_X, f"v{KADDR+j}"))
        a(V("v_lshrrev_b32", "v1", 2, "v4")); a(V("v_lshl_add_u32", "v1", "v3", 2, "v1"))
        a(V("v_and_b32", "v5", 7, "v1"))
        a(S("s_lshl_b32", f"s{sT}", f"s{sW}", 1)); a(V("v_xor_b32", "v5", f"s{sT}", "v5"))
        a(V("v_lshlrev_b32", "v5", 5, "v5")); a(V("v_lshl_add_u32", "v5", "v1", 8, "v5"))
        a(V("v_and_b32", "v1", 3, "v4")); a(V("v_lshl_add_u32", "v5", "v1", 3, "v5"))
        a(S("s_add_u32", f"s{sT+4}", f"s{sW8192}", LDS_V0))
        a(V("v_add_u32", f"v{VADDR}", f"s{sT+4}", "v5"))
        for p in range(1, 8): a(V("v_xor_b32", f"v{VADDR+p}", 32 * p, f"v{VADDR}"))
        for i in range(1, 4):
            for p in range(8): a(V("v_add_u32", f"v{VADDR+8*i+p}", f"s{sT+i}", f"v{VADDR+p}"))
        a(S("s_lshl_b32", "s56", f"s{sW}", 11)); a(S("s_add_u32", f"s{sT}", "s56", LDS_PX))
        a(V("v_lshrrev_b32", "v1", 1, f"v{VLIN}")); a(V("v_add_u32", f"v{PXW}", f"s{sT}", "v1"))
        a(V("v_lshrrev_b32", "v5", 2, f"v{VLIN}"))
        a(S("s_lshl_b32", f"s{sT}", f"s{sW}", 9)); a(S("s_add_u32", f"s{sT}", f"s{sT}", LDS_ML))
        a(V("v_add_u32", f"v{MLW}", f"s{sT}", "v5"))
        a(S("s_lshl_b32", f"s{sT}", f"s{sW}", 9)); a(S("s_add_u32", f"s{sT}", f"s{sT}", LDS_MX))
        a(V("v_add_u32", f"v{MXW}", f"s{sT}", "v1")); a(V("v_add_u32", f"v{MXR}", LDS_MX, "v1"))
        a(V("v_add_u32", f"v{MLRD}", LDS_ML, "v5"))
        a(S("s_mul_i32", f"s{sT}", f"s{sW}", 8704, w_scc=False))
        a(V("v_lshlrev_b32", "v5", 3, "v3"))
        a(V("v_mul_u32_u24", "v6", 272, "v4")); a(V("v_add_u32", "v6", "v6", "v5")); a(V("v_add_u32", f"v{AW}", f"s{sT}", "v6"))
        a(S("s_lshl_b32", f"s{sT+4}", f"s{sW}", 2)); a(V("v_xor_b32", "v6", f"s{sT+4}", "v4")); a(V("v_lshlrev_b32", "v6", 4, "v6"))
        a(V("v_mul_u32_u24", "v7", 272, "v3")); a(V("v_add_u32", "v6", "v6", "v7")); a(V("v_add_u32", f"v{AR}", f"s{sT}", "v6"))
        a(S("s_add_u32", f"s{sT}", f"s{sW8192}", LDS_V0))
        a(V("v_mul_u32_u24", "v6", 80, "v4")); a(V("v_add_u32", "v6", "v6", "v5")); a(V("v_add_u32", f"v{SW}", f"s{sT}", "v6"))
        a(V("v_lshrrev_b32", "v5", 2, "v2")); a(V("v_and_b32", "v6", 3, "v2")); a(V("v_lshlrev_b32", "v6", 4, "v6"))
        a(V("v_mul_u32_u24", "v7", 80, "v5")); a(V("v_add_u32", "v7", "v7", "v6")); a(V("v_add_u32", f"v{SR}", f"s{sT}", "v7"))
        a(V("v_lshl_add_u32", f"v{SG}", "v5", 8, "v6"))
        a(vmov(f"v{VQRT}", "0xbe800000"))
        a(vmov("v2", "0x3f803f80"))
        for i in range(4): a(accw(f"a{ONES+i}", "v2"))
        for i in range(4): a(vmov(f"v{P+i}", 0))
        a(V("v_add_u32", "v1", LDS_PX, "v1"))
        for i in range(4): a(V("v_add_u32", f"v{PXR+i}", f"s{56+i}", "v1"))
        for kv, b0, b1 in (('K', LDS_K0, LDS_K1), ('V', LDS_V0, LDS_V1)):
            for buf, base in ((0, b0), (1, b1)):
                for grp in range(2):
                    a(S("s_add_u32", f"s{m0_val_reg(kv, buf, grp)}", f"s{sW8192}", base + grp * 4096))
        a(smov(f"s{sKill}", 0))
        for db in range(5): a(mfma(('v', O_OWN + 16 * db), ('v', P), ('v', P), 0))
        for b in (VF0, VF0 + 16, PSH, PSH + 16, L_OWN): a(mfma(('a', b), ('v', P), ('v', P), 0))
    if cfg.cpos == 0: setupC()
    o += stamp(2); o += stamp(4, 1)
    qown(cfg.qsplit, 8)
    a(wait_for("QS"))
    o += stamp(5, 1)
    o += scale4(SA, TMPS, pk=True) + scale4(SA + 4, TMPS + 8, pk=True)
    for e in range(2): a(dsw128(QW + e, ('v', SA + 4 * e), 0, reg=(('QS', 0), 'qs', False)))
    a(wait_for("K0"))
    for aa in range(2):
        for j in range(4): a(dsr128(('a', KF + 16 * aa + 4 * j), KADDR + j, koff(0) + 4096 * aa, reg=(('K', 0), 0, True)))
    a(wait(lg=8)); a(barrier())
    for c in range(2):
        for j in range(4): a(dsr128(('a', Q_SH + 16 * c + 4 * j), TS + j, 4096 * c, reg=(('QS', 0), 'qs', False)))
    o += stamp(6, 1)
    for k in range(16):
        if k < 4: a(wait(lg=7 - k))
        if k == 8: a(wait(lg=0))
        a(qk_mfma(0, 0, k, first_c=False))
    o += stamp(3); o += stamp(7, 1)
    if cfg.cpos == 1: setupC()
    def piece(n, pk):
        a(wait_for(f"QO{n}"))
        o.extend(scale4(Q_OWN + 4 * n, TMPS + 8 * (n % 2), pk=pk))
        a(dsw128(TW + n % 4, ('v', Q_OWN + 4 * n), 1024 * n, reg=(('QO', 0), 'qo', True)))
    a(smov(f"s{sOff0}", 0)); a(smov(f"s{sOff1}", 4096))
    def vdma(buf, content, tag, only=None):
        for grp in range(2):
            a(S("s_mov_b32", "m0", f"s{m0_val_reg('V', buf, grp)}", w_scc=False)); a(nop(0))
            for n in range(4):
                if only is None or only(4 * grp + n):
                    a(dma(VDMA + n % 2, SV, f"s{sOff0 if grp == 0 else sOff1}", 1024 * n, reg=(('V', buf), content, True), flags=cfg.ld), tag)
    a(nop(4))
    o += rowmax16(SA, 4 + 0 if False else TMPS)
    a(dsw64(MXW, ('v', MM), 0, reg=(('MX', 0), 'mx', False)))
    a(wait(lg=0)); a(barrier())
    for x in range(4): a(dsr64(('v', MXV + 2 * x), MXR, 512 * x, reg=(('MX', 0), 'mx', False)))
    o += stamp(4)
    a(wait(lg=0))
    for c in range(2):
        a(V("v_max3_f32", f"v{MM+c}", f"v{MXV+c}", f"v{MXV+2+c}", f"v{MXV+4+c}"))
    for c in range(2): a(V("v_max_f32", f"v{MM+c}", f"v{MM+c}", f"v{MXV+6+c}"))
    a(nop(1))
    o += shift_by_max(SA, CI_SH)
    if cfg.v0pos < 0: vdma(0, 0, "V0")
    for n in range(4):
        piece(n, n >= 2)
        if n == cfg.v0pos: vdma(0, 0, "V0")
    def sm_range(s0, s1):
        q = []
        for s in range(s0, s1):
            st, sl = (0, s) if s >= 0 else (-1, s + STEP)
            q += [x for x in sm_ops(st, sl) if st == 0 or not (set(x.w) | set(x.r)) & set(R('v', SB, 16) + R('v', Pb(1), 8))]
        return q
    smq = dense(sm_range(cfg.E0 - WL, cfg.E0))
    for n in range(4, 8):
        piece(n, True)
        if n == cfg.v0pos: vdma(0, 0, "V0")
        o += smq[3 * (n - 4):3 * (n - 4) + 3]
    smq = smq[12:]
    o += stamp(5)
    a(smov(f"s{sOff0}", 32768)); a(smov(f"s{sOff1}", 32768 + 4096))
    a(wait(lg=0))
    for c in range(2):
        for j in range(4): a(dsr128(('v', Q_OWN + 16 * c + 4 * j), TR + j, 4096 * c, reg=(('QO', 0), 'qo', True)))
    def k1dma():
        for grp in range(2):
            a(S("s_mov_b32", "m0", f"s{m0_val_reg('K', 1, grp)}", w_scc=False)); a(nop(0))
            for k in range(4): a(dma(KDMA + k, SK, f"s{sOff0 if grp == 0 else sOff1}", 1024 * k, reg=(('K', 1), 1, True), flags=cfg.ld), "K1")
    if cfg.k1pos == 0: k1dma()
    for k in range(16):
        if k < 4: a(wait(lg=7 - k))
        if k == 8: a(wait(lg=0))
        a(qk_mfma(1, 1, k, first_c=False))
        o += smq[k:k + 1]
    assert len(smq) <= 16
    o += stamp(6)
    if cfg.k1pos == 1: k1dma()
    def v1_in_prologue(n):
        gp = [sl for sl in range(STEP) if ('DV', n) in MEM[sl]][0]
        return gp > cfg.B2 or gp < ENTRY
    def b0():
        a(wait_for("V0"))
        a(barrier())
    if cfg.b0pos == 0:
        b0()
        if cfg.k1pos == 2: k1dma()
        if cfg.v1pos == 0: vdma(1, 1, "V1", v1_in_prologue)
    pre = []
    for st, rng in ((-1, range(cfg.B2 + 1, STEP)), (0, range(0, ENTRY))):
        for sl in rng:
            for d in MEM[sl]:
                if d[0] == 'V' and (st == 0 or d[1] == 0): pre.append(mem_ins(st, sl, d))
                elif d[0] == 'K' and st == 0: pre.append(mem_ins(st, sl, d))
    head = dense(sm_range(cfg.E0, ENTRY))
    if cfg.b0pos == 1 and cfg.k1pos != 1: a(nop(5))
    o += rowmax16(SB, TMPS + 8)
    a(nop(1))
    o += shift_by_max(SB, CI_OWN)
    if cfg.b0pos == 1:
        b0()
        if cfg.k1pos == 2: k1dma()
        if cfg.v1pos == 0: vdma(1, 1, "V1", v1_in_prologue)
    o += pre
    if len(pre) < 10: a(nop(10 - len(pre)))
    o += head
    if cfg.v1pos == 1: vdma(1, 1, "V1", v1_in_prologue)
    a(wait(lg=0))
    o += stamp(7)
    if cfg.stamps: a(raw("s_memrealtime s[86:87]", 'stampi'))
    return o

SO2 = 4
class Seq:
    def __init__(self): self.o = []; self.ds = []; self.done = -1; self.prod = {}
    def wait_idx(self, idx):
        if idx > self.done:
            n = min(15, len(self.ds) - 1 - idx)
            self.o.append(wait(lg=n)); self.done = len(self.ds) - 1 - n
    def wait_op(self, x): self.wait_idx(max(i for i, y in enumerate(self.ds) if y is x))
    def __call__(self, x):
        need = max([self.prod.get(r, -1) for r in x.r] + [-1])
        if x.k not in ('dsr',): need = max([need] + [self.prod.get(r, -1) for r in x.w])
        self.wait_idx(need) if need >= 0 else None
        self.o.append(x)
        if x.k in ('dsr', 'dsw'):
            self.ds.append(x)
            for r in x.w: self.prod[r] = len(self.ds) - 1
        return x

def epilogue():
    q = Seq(); a = q
    st = 7
    SF = cfg.store_flags
    par = (st + 4) % 2
    late = cfg.wr_slots[0] > cfg.B1
    assert not late
    vr, prs = [], []
    for s in range(EXIT, STEP):
        for d in MEM[s]:
            if d[0] == 'V' and d[1] == 3: vr.append((d[2], mem_ins(st, s, d)))
            elif d[0] == 'PR': prs.append(((d[1], d[2]), mem_ins(st, s, d)))
    vr.sort(key=lambda x: x[0]); vr = [x for _, x in vr]
    prs.sort(key=lambda x: x[0]); prs = [x for _, x in prs]
    MLR = (('ML', 0), 'ml', False)
    lw = [I(f"ds_write_b32 v{MLW}, a{L_SH+4*c}" + (f" offset:{256*c}" if c else ""), 'dsw', [f"v{MLW}", f"a{L_SH+4*c}"], [], reg=MLR) for c in range(2)]
    tail = []
    for s in range(EXIT, STEP): tail += [x for x in sm_ops(st, s) if not (set(x.w) | set(x.r)) & set(R('v', Sb(1 - par), 16))]
    LR = CI_OWN
    LO, RI, RS = P, P + 2, P + 4
    OT, OT1, STG = (('OT', 0), 'ot', True), (('OT', 1), 'ot', True), (('ST', 0), 'st', True)
    lr = [I(f"ds_read2st64_b32 v[{LR+4*c+2*h}:{LR+4*c+2*h+1}], v{MLRD} offset0:{4*h+c} offset1:{4*h+2+c}", 'dsr', [f"v{MLRD}"], R('v', LR + 4 * c + 2 * h, 2), reg=MLR)
          for c in range(2) for h in range(2)]
    mm = [ones_mfma(L_OWN, 0, Pb(par))] + [pv_mfma(3, par, 0, p) for p in range(8)] + \
         [ones_mfma(L_OWN, 1, Pb(par) + 4)] + [pv_mfma(3, par, 1, p) for p in range(8)] + [pvsh_mfma(n) for n in range(16)]
    NM = len(mm)
    def fin(b, rinv_pair, sel, addr, off, reg, pk):
        if not pk: mul = [vmul(f"v{b+i}", f"v{rinv_pair+sel}", f"v{b+i}") for i in range(4)]
        else: mul = [V("v_pk_mul_f32", f"v[{b+i}:{b+i+1}]", f"v[{b+i}:{b+i+1}]", f"v[{rinv_pair}:{rinv_pair+1}]",
                       mods="op_sel:[0,1] op_sel_hi:[1,1]" if sel else "op_sel:[0,0] op_sel_hi:[1,0]") for i in (0, 2)]
        return mul + [cvtpk(f"v{b}", f"v{b}", f"v{b+1}"), cvtpk(f"v{b+1}", f"v{b+2}", f"v{b+3}"), dsw64(addr, ('v', b), off, reg=reg)]
    F = []
    def f(n, *xs):
        for x in xs: F.append((n, x))
    nv = cfg.epi_nv
    for x in vr[:nv]: a(x)
    t = list(tail)
    rest = vr[nv:]
    while rest or t:
        f(0, *rest[:2]); rest = rest[2:]
        if t: f(0, t.pop(0))
    f(0, *prs)
    f(4, accr(f"v{LO}", f"a{L_OWN}"))
    f(0, smov(f"s{sT+2}", hex(cfg.thresh)), vrcp(f"v{RI}", f"v{LO}"))
    f(17, accr(f"v{LO+1}", f"a{L_OWN+4}"))
    groups = [(O_OWN + 4 * p, RI, 0, AW, p * 32, OT) for p in range(8)]
    ng = cfg.epi_ng
    for gidx in range(ng):
        f(0, *fin(*groups[gidx], pk=False))
        if gidx == 0: f(0, vrcp(f"v{RI+1}", f"v{LO+1}"))
        if gidx == cfg.epi_lw: f(0, *lw)
    G = [('BAR',)]
    for c in range(2): G += [vadd(f"v{LR+4*c}", f"v{LR+4*c}", f"v{LR+4*c+1}"), vadd(f"v{LR+4*c+2}", f"v{LR+4*c+2}", f"v{LR+4*c+3}")]
    for c in range(2): G += [vadd(f"v{LR+4*c}", f"v{LR+4*c}", f"v{LR+4*c+2}")]
    G += [vcmp("v_cmp_nle_f32", "s[52:53]", f"v{LO}", f"s{sT+2}"), vcmp("v_cmp_nle_f32", "s[56:57]", f"v{LO+1}", f"s{sT+2}")]
    for c in range(2): G += [vrcp(f"v{RS+c}", f"v{LR+4*c}")]
    G += [raw("s_or_b64 s[52:53], s[52:53], s[56:57]", 'salu', ['s52', 's53', 's56', 's57'], ['s52', 's53', 'scc'])]
    G += [vcmp("v_cmp_nle_f32", "s[54:55]", f"v{LR}", f"s{sT+2}"), vcmp("v_cmp_nle_f32", "s[56:57]", f"v{LR+4}", f"s{sT+2}")]
    k = 0
    def put(x):
        if isinstance(x, tuple):
            q.wait_op(lw[-1]); a(barrier())
            for y in lr: a(y)
        else: a(x)
    sub = []
    gi = ng
    for x in stamp(1, 3): a(x)
    for n, m in enumerate(mm):
        if n == 18:
            for y in stamp(4, 3): a(y)
        a(m)
        c = 0
        while c < 2:
            if k < len(F) and F[k][0] <= n:
                x = F[k][1]; put(x); k += 1
                if isinstance(x, tuple): c += 1
                elif x.k == 'trans': c += 2
                elif x.k not in ('salu', 'wait'): c += 1
            else: break
    for x in stamp(6, 3): a(x)
    for _, x in F[k:]: put(x)
    todo = [fin(*g, pk=True) for g in groups[gi:]]
    for g in todo:
        for x in g: a(x)
    lastw = [y for y in q.ds if y.k == 'dsw' and y.x.get('reg') == OT][-1]
    for x in stamp(7, 3): a(x)
    R0 = S0
    c1 = [fin(O_OWN + 32 + 4 * p, RI, 1, AW, p * 32 + 4352, OT1, True) for p in range(8)]
    sh = [fin(O_SH + 8 * p + 4 * c, RS, c, SW, p * 32 + c * 1280, STG, True) for p in range(2) for c in range(2)]
    sc = [raw("s_or_b64 s[54:55], s[54:55], s[56:57]", 'salu', ['s54', 's55', 's56', 's57'], ['s54', 's55', 'scc'])]
    if cfg.force_slow:
        sc += [raw("s_mov_b64 s[54:55], -1", 'salu', [], ['s54', 's55']), raw("s_mov_b64 s[52:53], -1", 'salu', [], ['s52', 's53'])]
    sc += [smov(f"s{SO2}", f"s{SO}"), smov(f"s{SO2+1}", f"s{SO+1}"), smov(f"s{SO2+3}", "0x20000"),
           scmp("s_cmp_lg_u64", "s[54:55]", 0), S("s_cselect_b32", f"s{SO2+2}", 0, 40960, w_scc=False, r_scc=True),
           S("s_add_u32", f"s{sT+1}", f"s{sW8192}", 4096),
           S("s_lshl_b32", f"s{sT+3}", f"s{sW}", 6), S("s_add_u32", f"s{sT+3}", f"s{sT+3}", 32768), S("s_add_u32", f"s{sT+4}", f"s{sT+3}", 4096)]
    for x in c1[0]: a(x)
    q.wait_op(lastw)
    for n in range(4): a(dsr128(('v', R0 + 4 * n), AR, 1088 * n, reg=OT))
    st0 = [vstore(('v', R0 + 4 * n), 4, VLIN, SO, f"s{sW8192}", 1024 * n, SF) for n in range(4)]
    put(G.pop(0))
    for p in range(1, 8):
        for x in c1[p]: a(x)
        if st0: a(st0.pop(0))
        for _ in range(3):
            if G: a(G.pop(0))
    lastw = c1[7][-1]
    for x in G: a(x)
    for x in sc: a(x)
    for x in sh[0] + sh[1]: a(x)
    q.wait_op(lastw)
    for n in range(4, 8): a(dsr128(('v', R0 + 4 * n), AR, 1088 * n, reg=OT1))
    for x in sh[2] + sh[3]: a(x)
    for n in range(4, 8): a(vstore(('v', R0 + 4 * n), 4, VLIN, SO, f"s{sT+1}", 1024 * (n % 4), SF))
    q.wait_op(sh[3][-1])
    for n in range(2): a(dsr128(('v', O_SH + 4 * n), SR, 1280 * n, reg=STG))
    for n in range(2): a(vstore(('v', O_SH + 4 * n), 4, SG, SO2, f"s{sT+3+n}", 0, SF))
    for x in stamp(9): a(x)
    a(raw("s_or_b64 s[56:57], s[52:53], s[54:55]", 'salu', ['s52', 's53', 's54', 's55'], ['s56', 's57', 'scc']))
    a(branch("s_cbranch_scc1", "L_slow", ['scc']))
    return q.o

def store_tile_rows(Oreg, rinv, soff):
    o = []
    for db in range(4):
        b = Oreg + 16 * db
        for i in range(16): o.append(vmul(f"v{b+i}", f"v{rinv}", f"v{b+i}"))
        for m in range(8): o.append(cvtpk(f"v{b+m}", f"v{b+2*m}", f"v{b+2*m+1}"))
        for pr in range(2):
            r0 = b + 4 * pr
            o.append(swap32(f"v{r0}", f"v{r0+2}")); o.append(swap32(f"v{r0+1}", f"v{r0+3}"))
        for pr in range(2): o.append(vstore(('v', b + 4 * pr), 4, VQ, SO, soff, db * 64 + pr * 32))
    return o

def slow_path():
    o = []; a = o.append
    Kr, Sr, Vr, Or, Pr = 80, 112, 128, O_OWN, 72
    mreg, lreg = SLM, SLL
    a(label("L_slow"))
    a(wait(vm=0, lg=0))
    a(smov(f"s{SO+2}", 40960))
    a(V("v_bfe_u32", "v1", f"v{VLIN}", 4, 5)); a(V("v_lshrrev_b32", "v2", 9, f"v{VLIN}"))
    a(V("v_lshlrev_b32", f"v{VQ}", 4, "v2")); a(V("v_lshl_add_u32", f"v{VQ}", "v1", 8, f"v{VQ}"))
    a(scmp("s_cmp_lg_u64", "s[52:53]", 0)); a(branch("s_cbranch_scc0", "L_slow_sh", ['scc']))
    a(smov("s33", f"s{sW8192}"))
    a(raw("s_mov_b64 s[52:53], 0", 'salu', [], ['s52', 's53']))
    a(branch("s_branch", "L_slow_tile"))
    a(label("L_slow_sh"))
    a(scmp("s_cmp_lg_u64", "s[54:55]", 0)); a(branch("s_cbranch_scc0", "L_end", ['scc']))
    a(scmp("s_cmp_lg_u32", f"s{sW}", 0)); a(branch("s_cbranch_scc1", "L_end", ['scc']))
    a(smov("s33", 32768))
    a(raw("s_mov_b64 s[54:55], 0", 'salu', [], ['s54', 's55']))
    a(label("L_slow_tile"))
    for j in range(8): a(vload(('v', Q_OWN + 4 * j), 4, VQ, SQ, "s33", 32 * j))
    a(wait(vm=0))
    for g in range(8): o.extend(scale4(Q_OWN + 4 * g, 240, pk=False))
    a(vmov(f"v{mreg}", "0xff800000"))
    def qk():
        for j in range(8): a(vload(('v', Kr + 4 * j), 4, VQ, SK, "s34", 32 * j))
        a(wait(vm=0))
        for j in range(8): a(mfma(('v', Sr), ('v', Kr + 4 * j), ('v', Q_OWN + 4 * j), 0 if j == 0 else ('v', Sr)))
        a(nop(15))
    a(smov("s34", 0))
    a(label("L_slow_p1"))
    qk()
    for i in range(16): a(V("v_max_f32", f"v{mreg}", f"v{mreg}", f"v{Sr+i}"))
    a(S("s_add_u32", "s34", "s34", 8192)); a(scmp("s_cmp_lt_u32", "s34", 262144)); a(branch("s_cbranch_scc1", "L_slow_p1", ['scc']))
    a(vmov("v1", f"v{mreg}")); a(nop(1)); a(swap32(f"v{mreg}", "v1")); a(V("v_max_f32", f"v{mreg}", f"v{mreg}", "v1"))
    a(vmov(f"v{lreg}", 0))
    for i in range(64): a(vmov(f"v{Or+i}", 0))
    a(V("v_lshrrev_b32", "v2", 8, f"v{VQ}"))
    a(V("v_bfe_u32", "v3", f"v{VQ}", 4, 1))
    a(V("v_lshlrev_b32", "v2", 1, "v2")); a(V("v_lshl_add_u32", "v2", "v3", 10, "v2"))
    a(smov("s34", 0))
    a(label("L_slow_p2"))
    qk()
    for i in range(16): a(V("v_sub_f32", f"v{Sr+i}", f"v{Sr+i}", f"v{mreg}"))
    for i in range(16): a(vexp(f"v{Sr+i}", f"v{Sr+i}"))
    a(nop(0))
    for i in range(16): a(vadd(f"v{lreg}", f"v{lreg}", f"v{Sr+i}"))
    for m in range(8): a(cvtpk(f"v{Pr+m}", f"v{Sr+2*m}", f"v{Sr+2*m+1}"))
    for ks in range(2):
        a(S("s_add_u32", "s35", "s34", ks * 4096))
        for db in range(4):
            for r in range(4):
                for e in range(2):
                    j = 2 * r + e
                    off = (8 * (j // 4) + j % 4) * 256 + db * 64
                    a(vload(('v', Kr + 8 * db + 2 * r + e), 1, 2, SV, "s35", off, op="buffer_load_ushort"))
        a(wait(vm=0))
        for db in range(4):
            for r in range(4): a(V("v_lshl_or_b32", f"v{Vr+4*db+r}", f"v{Kr+8*db+2*r+1}", 16, f"v{Kr+8*db+2*r}"))
        a(nop(1))
        for db in range(4): a(mfma(('v', Or + 16 * db), ('v', Vr + 4 * db), ('v', Pr + 4 * ks), ('v', Or + 16 * db)))
        a(nop(7))
    a(S("s_add_u32", "s34", "s34", 8192)); a(scmp("s_cmp_lt_u32", "s34", 262144)); a(branch("s_cbranch_scc1", "L_slow_p2", ['scc']))
    a(nop(15))
    a(vmov("v1", f"v{lreg}")); a(nop(1)); a(swap32(f"v{lreg}", "v1")); a(vadd(f"v{lreg}", f"v{lreg}", "v1"))
    a(vrcp("v5", f"v{lreg}")); a(nop(0))
    o += store_tile_rows(Or, 5, "s33")
    a(wait(vm=0))
    a(branch("s_branch", "L_slow_sh"))
    return o

def stamp_out():
    o = []
    if not cfg.stamps: return o
    a = o.append
    a(raw("s_waitcnt vmcnt(0)", 'wait', vm=0)); o += [raw("s_memtime s[80:81]", 'stampi'), raw("s_memrealtime s[84:85]", 'stampi')]
    a(raw("s_waitcnt lgkmcnt(0)", 'wait', lg=0))
    if cfg.stamp_wg >= 0:
        a(scmp("s_cmp_lg_u32", "s2", cfg.stamp_wg)); a(branch("s_cbranch_scc1", "L_end", ['scc']))
        a(scmp("s_cmp_lg_u32", f"s{sW}", 0)); a(branch("s_cbranch_scc1", "L_end", ['scc']))
        a(vmov("v1", 0))
    else:
        a(raw("s_load_dwordx2 s[58:59], s[0:1], 40", 'smem', [], R('s', 58, 2))); a(wait(lg=0))
        a(S("s_lshl_b32", "s33", "s2", 2)); a(S("s_add_u32", "s33", "s33", f"s{sW}")); a(S("s_lshl_b32", "s33", "s33", 6))
        a(vmov("v1", "s33"))
    def put(off, x, y):
        if y is None: a(vmov("v2", x))
        else:
            a(S("s_sub_u32", "s33", x, y)); a(vmov("v2", "s33"))
        a(raw(f"global_store_dword v1, v2, s[58:59] offset:{off}", 'vstore', ['v1', 'v2', 's58', 's59'], [], data=['v2']))
        a(nop(1))
    if cfg.fine != 9:
        for i in range(11): put(4 * i, f"s{60+2*i}", "s60")
    else: put(40, "s80", "s60")
    put(44, "s84", "s82"); put(48, "s86", "s82"); put(52, "s88", "s82"); put(56, "s82", None)
    return o

def build():
    global MEM, LGW
    MEM = build_mem_schedule()
    LGW = compute_lgkm_waits()
    pro = prologue()
    body = body_iter(0)
    epi = epilogue()
    slow = slow_path()
    static = pro + [raw(".p2align 6", 'label'), label("L_loop")] + body + [label("L_exit")] + stamp(8) + \
             ([raw("s_memrealtime s[88:89]", 'stampi')] if cfg.stamps else []) + epi + stamp_out() + \
             [label("L_end"), raw("s_endpgm", 'branch')] + slow
    trace = list(pro)
    for it in range(4):
        b = body_iter(2 * it, last=(it == 3))
        assert [x.t for x in b] == [x.t for x in body[:len(b)]], "loop body is not periodic"
        trace += b
    trace += epi
    errs = verify(trace, "main")
    errs += verify(slow, "slow", check_lds=False)
    return static, errs, (pro, body, epi)

HEADER = """; Kernarg layout for this problem (48 bytes, ptrs only, base s[0:1]):
; One workgroup per (batch, q-head): 4 waves; wave w owns q rows 32w..32w+31 against all keys.  For the shared
; LDS and wave w accumulates output columns 32w..32w+31.
; @launch grid=(256,1,1) block=(256,1,1) lds=163840
.amdgcn_target "amdgcn-amd-amdhsa--gfx950"
.text
.globl {n}_kernel
.p2align 8
.type {n}_kernel,@function
{n}_kernel:
"""
FOOTER = """
.section .rodata,"a"
.p2align 6
.amdhsa_kernel {n}_kernel
  .amdhsa_next_free_vgpr 512
  .amdhsa_next_free_sgpr 96
  .amdhsa_accum_offset 256
  .amdhsa_group_segment_fixed_size 0
  .amdhsa_kernarg_size 48
  .amdhsa_user_sgpr_count 2
  .amdhsa_user_sgpr_kernarg_segment_ptr 1
  .amdhsa_system_sgpr_workgroup_id_x 1
.end_amdhsa_kernel
"""

def main(argv=None):
    ap = argparse.ArgumentParser()
    ap.add_argument("-o", default="cdna_kernels/%s.s" % NAME)
    ap.add_argument("--stamps", action="store_true")
    ap.add_argument("--stamp-wg", type=int, default=0)
    ap.add_argument("--force-slow", action="store_true")
    ap.add_argument("--thresh", default=None)
    ap.add_argument("--store-flags", default="nt")
    ap.add_argument("--ld", default="nt"); ap.add_argument("--qld", default="nt")
    ap.add_argument("--fine", type=int, default=0)
    ap.add_argument("--qsplit", type=int, default=2)
    ap.add_argument("--lead", type=int, default=8); ap.add_argument("--lag", type=int, default=6)
    ap.add_argument("--wr", default=None); ap.add_argument("--dv", default=None); ap.add_argument("--dk", default=None)
    ap.add_argument("--sched", default="early"); ap.add_argument("--nospread", action="store_true")
    ap.add_argument("--show", action="store_true")
    ap.add_argument("--codepf", type=int, default=12)
    ap.add_argument("--cpos", type=int, default=0)
    ap.add_argument("--pro", default="1,1,1")
    ap.add_argument("--epi", default="8,6,3")
    ap.add_argument("--novm", action="store_true"); ap.add_argument("--nobarx", action="store_true"); ap.add_argument("--v0pos", type=int, default=1)
    ap.add_argument("--b1", type=int, default=106); ap.add_argument("--b2", type=int, default=160); ap.add_argument("--inc", type=int, default=20)
    ap.add_argument("--noexcl", action="store_true")
    ap.add_argument("--drop", default=""); ap.add_argument("--nobar", action="store_true")
    args = ap.parse_args(argv)
    cfg.stamps = args.stamps; cfg.stamp_wg = args.stamp_wg; cfg.force_slow = args.force_slow; cfg.store_flags = args.store_flags
    cfg.ld = args.ld; cfg.qld = args.qld; cfg.fine = args.fine; cfg.qsplit = args.qsplit
    cfg.LEAD = args.lead; cfg.LAG = args.lag; cfg.sched = args.sched; cfg.spread = not args.nospread
    cfg.novm = args.novm; cfg.barx = not args.nobarx; cfg.v0pos = args.v0pos
    cfg.epi_nv, cfg.epi_ng, cfg.epi_lw = [int(x) for x in args.epi.split(",")]
    cfg.k1pos, cfg.b0pos, cfg.v1pos = [int(x) for x in args.pro.split(",")]
    cfg.cpos = args.cpos
    cfg.codepf = args.codepf
    cfg.excl = not args.noexcl; cfg.B1 = args.b1; cfg.B2 = args.b2; cfg.inc_slot = args.inc
    cfg.drop = tuple(x for x in args.drop.split(",") if x); cfg.nobar = args.nobar
    if args.wr: cfg.wr_slots = tuple(int(x) for x in args.wr.split(","))
    if args.dv: cfg.dv_slots = tuple(int(x) for x in args.dv.split(","))
    if args.dk: cfg.dk_slots = tuple(int(x) for x in args.dk.split(","))
    if args.thresh: cfg.thresh = int(args.thresh, 0)
    static, errs, parts = build()
    if args.show:
        for s in range(STEP): print(s, sm_kind(s) or "", LGW[s], MEM[s])
    for e in errs[:40]: print("ERR", e)
    cnt = lambda L: sum(1 for x in L if x.k != 'label')
    print("errors:", len(errs), " instructions:", cnt(static), " pro/body/epi:", [cnt(p) for p in parts])
    open(args.o, "w").write(HEADER.format(n=NAME) + text_of(static) + FOOTER.format(n=NAME))

if __name__ == "__main__": main()
```

```python
import sys, argparse, re
from asmlib import *

NAME = "standalone__gqa_softmax__near_ridge"
WL, STEP = 34, 170

class Cfg:
    E0 = 7
    LEAD = 8
    LAG = 6
    thresh = 0x4b800000
    stamps = False; stamp_wg = 0; fine = 0
    force_slow = False
    store_flags = "nt"; ld = "nt"; qld = "nt"
    qsplit = 2
    dk_slots = (107, 110, 114, 118, 122, 126, 130, 134)
    dv_slots = (164, 168, 172, 176, 178, 182, 186, 190)
    wr_slots = (92, 94, 96, 98)
    inc_slot = 20
    B1 = 104; B2 = 160
cfg = Cfg()

PS = (0, 20)
PXR = 4
PXW, MLW = 8, 9
SLM, SLL = 6, 7
AW, AR, SW, SR, SG = 137, 142, 143, 10, 11
MLRD = 18
KDMA = 12
VDMA = 16
VQ, VLIN = 4, 19
KADDR = 24
VADDR = 40
P = 72
S0 = 88
CI_OWN, CI_SH = 120, 128
VQRT = 136
MM = 138
MXW, MXR = 140, 141
Q_OWN = 144
O_OWN = 176
O_SH = 240
Q_SH, KF, VF0, VFP, PSH, L_OWN, L_SH, ONES = 0, 32, 64, 96, 120, 152, 160, 168
def vf(i, p): return VF0 + 8 * i + 4 * p if p < 2 else VFP + 4 * (p - 2)
def psh(i, c): return PSH + 8 * i + 4 * c
def Sb(par): return S0 + 16 * par
def Pb(par): return P + 8 * par
sW, SQ, SK, SV, SO = 3, 8, 12, 16, 20
sW8192, sOff0, sOff1, sC, sMask = 24, 25, 26, 27, 28
sT = 29
sKill = 34
sM0 = 44
sC2 = 52
sQS, sQO1 = 54, 55
SCALE_BITS = 0x3e0293ee
LDS_K1, LDS_K0, LDS_X, LDS_V0, LDS_V1 = 0, 32768, 65536, 98304, 131072
LDS_PX = LDS_X
LDS_ML = LDS_X + 16384
LDS_QS = LDS_V1
LDS_MX = LDS_V1 + 8192
DROP = 0x30000
def koff(buf): return LDS_K0 if buf == 0 else LDS_K1

def qk_mfma(u, par, k, first_c=True):
    x, j = divmod(k, 4); a, c = x % 2, x // 2
    sh = (u == 0)
    D = ('v', Sb(par) + 4 * x)
    B = ('a', Q_SH + 16 * c + 4 * j) if sh else ('v', Q_OWN + 16 * c + 4 * j)
    C = (('v', (CI_SH if sh else CI_OWN) + 4 * c) if first_c else 0) if j == 0 else D
    return mfma16(D, ('a', KF + 16 * a + 4 * j), B, C)
def ones_mfma(Lreg, c, Breg): return mfma16(('a', Lreg + 4 * c), ('a', ONES), ('v', Breg), ('a', Lreg + 4 * c))
def pvsh_mfma(n):
    i, c, p = n // 4, (n // 2) % 2, n % 2
    O = ('v', O_SH + 8 * p + 4 * c)
    return mfma16(O, ('a', vf(i, p)), ('a', psh(i, c)), O)
def pv_mfma(i, par, c, p):
    O = ('v', O_OWN + 32 * c + 4 * p)
    return mfma16(O, ('a', vf(i, p)), ('v', Pb(par) + 4 * c), O)

def mfma_at(step, g):
    W, k = divmod(g, WL)
    if k < 16:
        u = W + 1; st = step
        if u == 5: u = 0; st = step + 1
        return qk_mfma(u, (st + u) % 2, k)
    idx = k - 16
    if W == 0:
        if idx == 8: return ones_mfma(L_SH, 0, PS[0])
        if idx == 17: return ones_mfma(L_SH, 1, PS[1])
        return pvsh_mfma(idx if idx < 8 else idx - 1)
    par = (step + W) % 2
    if cfg.pmajor:
        if idx >= 16: return ones_mfma(L_OWN, idx - 16, Pb(par) + 4 * (idx - 16))
        return pv_mfma(W - 1, par, idx % 2, idx // 2)
    if idx == 8: return ones_mfma(L_OWN, 0, Pb(par))
    if idx == 17: return ones_mfma(L_OWN, 1, Pb(par) + 4)
    c, p = (0, idx) if idx < 8 else (1, idx - 9)
    return pv_mfma(W - 1, par, c, p)

def sm_ops(step, g):
    ops = []
    for st, i in [(step, j) for j in range(5)] + [(step + 1, 0), (step - 1, 4)]:
        rel = g + STEP * (step - st) - WL * (i - 1) - cfg.E0
        par = (st + i) % 2; S_ = Sb(par)
        if 0 <= rel <= 30 and rel % 2 == 0: ops.append(vexp(f"v{S_+rel//2}", f"v{S_+rel//2}"))
        if 3 <= rel <= 31 and rel % 4 == 3:
            m = (rel - 3) // 4
            dst = (PS[m // 4] + m % 4) if i == 0 else Pb(par) + m
            ops.append(cvtpk(f"v{dst}", f"v{S_+2*m}", f"v{S_+2*m+1}"))
    return ops

def sm_kind(g):
    o = sm_ops(2, g % STEP)
    return 'exp' if any(x.k == 'trans' for x in o) else 'cvt' if o else None

def build_mem_schedule():
    ops = []
    L = cfg.LEAD; B1, B2 = cfg.B1, cfg.B2
    def add(d, e, l):
        assert e <= l, (d, e, l)
        ops.append([d, e, l])
    for a in range(2):
        for j in range(4):
            o = 4 * a + j
            add(('K', 1, a, j), 0 + 8 + o, 34 + o - L)
            add(('K', 2, a, j), 34 + 8 + o, 68 + o - L)
            add(('K', 3, a, j), 68 + 8 + o, min(102 + o - L, B1 - L))
            add(('K', 0, a, j), max(102 + 8 + o, B1 + 1), 136 + o - L)
    def idx_of(n): return n if n < 8 else n + 1
    for i in range(4):
        for p in range(8):
            use = WL * (i + 1) + 16 + (2 * p if cfg.pmajor else p)
            last = (16 + 2 * p + 1) if cfg.pmajor else (25 + p)
            late = use - L if i < 3 else min(use - L, B2 - L)
            if p < 2: early = 16 + idx_of(4 * i + 2 + p)
            elif i > 0: early = WL * i + last
            else: early = 136 + last - STEP
            for hh in range(2): add(('V', i, p, hh), early, late)
    late = cfg.wr_slots[0] > B1
    for i in range(4):
        for c in range(2): add(('PR', i, c), (B2 if late else B1) + 1, STEP + ENTRY - 1 if late else STEP - 1)
    sched = {s: [] for s in range(STEP)}
    for n, sl in enumerate(cfg.dk_slots): sched[sl % STEP].append(('DK', n))
    for n, sl in enumerate(cfg.dv_slots): sched[sl % STEP].append(('DV', n))
    for d, sl in zip([('PW', 0, 0), ('PW', 0, 1), ('PW', 1, 0), ('PW', 1, 1)], cfg.wr_slots): sched[sl % STEP].append(d)
    def cap(s):
        k = sm_kind(s)
        c = 0 if k == 'exp' else 1 if k == 'cvt' else 2
        if s in (B1, B2): c = 0 if cfg.barx else c - 1
        return c
    for s in sched: assert len(sched[s]) <= cap(s), (s, sched[s], cap(s))
    fixed0 = {g: list(v) for g, v in sched.items()}
    slots = []
    for g in range(STEP):
        for k in range(cap(g) - len(sched[g])): slots.append((g, k))
    by_gap = {}
    for sl in slots: by_gap.setdefault(sl[0], []).append(sl)
    def cands(e, l):
        ts = list(range(e, l + 1))
        if cfg.sched == "late": ts.reverse()
        elif cfg.sched == "mid":
            mid = (e + l) / 2; ts.sort(key=lambda t: abs(t - mid))
        busy = lambda g: cfg.excl and any(d[0] in ('DK', 'DV', 'PW') for d in fixed0[g])
        first = [sl for t in ts for sl in by_gap.get(t % STEP, []) if sl[1] == 0 and not busy(sl[0])]
        second = [sl for t in ts for sl in by_gap.get(t % STEP, []) if sl[1] > 0 and not busy(sl[0])]
        last = [sl for t in ts for sl in by_gap.get(t % STEP, []) if busy(sl[0])]
        return (first + second if cfg.spread else [sl for t in ts for sl in by_gap.get(t % STEP, []) if not busy(sl[0])]) + last
    order = sorted(range(len(ops)), key=lambda i: (ops[i][2] - ops[i][1], ops[i][2]))
    match = {}
    cand = {i: cands(ops[i][1], ops[i][2]) for i in order}
    def aug(i, seen):
        for sl in cand[i]:
            if sl not in match: match[sl] = i; return True
        for sl in cand[i]:
            if sl in seen: continue
            seen.add(sl)
            if aug(match[sl], seen): match[sl] = i; return True
        return False
    sys.setrecursionlimit(10000)
    if cfg.excl:
        full = cand
        cand = {i: [sl for sl in full[i] if not any(d[0] in ('DK', 'DV', 'PW') for d in fixed0[sl[0]])] for i in order}
        left = [i for i in order if not aug(i, set())]
        cand = full
        for i in left:
            if not aug(i, set()): raise Exception(f"cannot place {ops[i]}")
        print("ops sharing a gap with DMA/PW:", len(left))
    else:
        for i in order:
            if not aug(i, set()): raise Exception(f"cannot place {ops[i]}")
    for sl, i in match.items(): sched[sl[0]].append(ops[i][0])
    dl = {tuple(o[0]): o[2] for o in ops}
    for s in sched: sched[s].sort(key=lambda d: (1, 0) if d[0] in ('DK', 'DV', 'PW') else (0, (dl[d] - s) % STEP))
    return sched
Cfg.sched = "early"
Cfg.spread = True
Cfg.drop = ()
Cfg.barx = False
Cfg.pmajor = True
Cfg.qdirect = False
Cfg.codepf = 12
Cfg.cpos = 0
Cfg.k1pos = 0; Cfg.b0pos = 0; Cfg.v1pos = 0
Cfg.epi_nv = 8; Cfg.epi_ng = 6; Cfg.epi_lw = 3
Cfg.novm = False
Cfg.v0pos = 3
Cfg.excl = False
Cfg.nobar = False

MEM = LGW = None

def mem_ins(step, g, d):
    if d[0] == 'K':
        _, tp, a, j = d
        cs = step + 1 if tp == 0 else step
        buf = cs % 2
        return dsr128(('a', KF + 16 * a + 4 * j), KADDR + 4 * tp + j, koff(buf) + 4096 * a, reg=(('K', buf), cs, tp == 0) if cs < 8 else None)
    if d[0] == 'V':
        _, i, p, hh = d
        cs = step + 1 if (i == 0 and g > cfg.B2) else step
        buf = cs % 2
        return dstr(('a', vf(i, p) + 2 * hh), VADDR + 8 * i + p, buf * 32768 + hh * 4096, reg=(('V', buf), cs, i == 0) if cs < 8 else None)
    if d[0] == 'PW':
        _, c, h = d
        return dsw64(PXW, ('v', PS[c] + 2 * h), (step % 2) * 8192 + c * 1024 + h * 512, reg=(('PX', step % 2), step, True))
    if d[0] == 'PR':
        _, i, c = d
        cs = step if g > cfg.B1 else step - 1
        o0 = 16 * (cs % 2) + 2 * c
        return dsr2st64_64(('a', psh(i, c)), PXR + i, o0, o0 + 1, reg=(('PX', cs % 2), cs, i == 0))
    if d[0] == 'DK':
        n = d[1]; cs = step + 2; buf = cs % 2
        return dma(KDMA + n % 4, SK, f"s{sOff0 if n < 4 else sOff1}", 1024 * (n % 4), reg=(('K', buf), cs, True) if cs < 8 else None, flags=cfg.ld)
    if d[0] == 'DV':
        n = d[1]; cs = step + 2 if g > cfg.B2 else step + 1; buf = cs % 2
        return dma(VDMA + n % 2, SV, f"s{sOff0 if n < 4 else sOff1}", 1024 * (n % 4), reg=(('V', buf), cs, True) if cs < 8 else None, flags=cfg.ld)

def m0_val_reg(kv, buf, grp): return sM0 + (0 if kv == 'K' else 4) + 2 * buf + grp

def scalar_ops(step, g):
    o = []
    def m0(kv, buf, grp): return S("s_max_u32", "m0", f"s{m0_val_reg(kv, buf, grp)}", f"s{sKill}")
    dk, dv = [x % STEP for x in cfg.dk_slots], [x % STEP for x in cfg.dv_slots]
    if g == dk[0] - 1: o.append(m0('K', step % 2, 0))
    if g == dk[4] - 1: o.append(m0('K', step % 2, 1))
    if g == dv[0] - 1: o.append(m0('V', (step if g > cfg.B2 else step + 1) % 2, 0))
    if g == dv[4] - 1: o.append(m0('V', (step if g > cfg.B2 else step + 1) % 2, 1))
    x = cfg.inc_slot + 4
    if g == x + 1: o.append(S("s_add_u32", f"s{sOff0}", f"s{sOff0}", "0x8000"))
    if g == x + 3: o.append(S("s_add_u32", f"s{sOff1}", f"s{sOff1}", "0x8000"))
    if g == x + 5: o.append(scmp("s_cmp_ge_u32", f"s{sOff0}", "0x40000"))
    if g == x + 7: o.append(S("s_cselect_b32", f"s{sKill}", hex(DROP), 0, w_scc=False, r_scc=True))
    return o

def gap_mem(step, g): return [mem_ins(step, g, d) for d in MEM[g] if d[0] not in cfg.drop]

def compute_lgkm_waits():
    seq = []; prod = {}; covered = -1; res = {}
    for t in range(0, 6 * STEP):
        st, sl = divmod(t, STEP)
        nst, nsl = divmod(t + 1, STEP)
        nm = mfma_at(nst, nsl)
        need = max([prod.get(r, -1) for r in nm.x['AB']] + [-1])
        if sl == cfg.B1: need = max([need] + [i for i, (tt, d) in enumerate(seq) if d in ('K', 'PW')])
        if sl == cfg.B2: need = max([need] + [i for i, (tt, d) in enumerate(seq) if d in ('V', 'PW')])
        n = None
        if need > covered:
            tgt = need
            for i in range(len(seq) - 1, -1, -1):
                if seq[i][0] <= t - cfg.LAG: tgt = max(tgt, i); break
            n = len(seq) - 1 - tgt
            if n > 15: tgt = len(seq) - 1 - 15; n = 15
            covered = tgt
        res[(st, sl)] = n
        for d in MEM[sl]:
            if d[0] in ('DK', 'DV') or d[0] in cfg.drop: continue
            ins = mem_ins(2 + st % 2, sl, d)
            seq.append((t, d[0]))
            for r in ins.w: prod[r] = len(seq) - 1
    out = {}
    for sl in range(STEP):
        assert len({res[(s, sl)] for s in range(2, 6)}) == 1
        out[sl] = res[(4, sl)]
    return out

def gap(step, g, part='all'):
    head = [mfma_at(step, g)]
    n = LGW[g]
    if g == cfg.B1 or g == cfg.B2:
        head.append(wait(vm=(8 if not cfg.novm else 40) if not cfg.drop.count('DK') else None, lg=n if n is not None else (None if not cfg.drop.count('DK') else 15)))
        if not cfg.nobar: head.append(barrier())
    elif n is not None: head.append(wait(lg=n))
    head += scalar_ops(step, g)
    rest = gap_mem(step, g) + sm_ops(step, g)
    return head if part == 'head' else rest if part == 'rest' else head + rest

ENTRY = 15
EXIT = 135

def body_iter(st0, last=False):
    o = []
    o += gap(st0, ENTRY, 'rest')
    for s in range(ENTRY + 1, STEP): o += gap(st0, s)
    for s in range(0, EXIT):
        g = gap(st0 + 1, s)
        if s == EXIT - 2:
            g = gap(st0 + 1, s, 'head') + [scmp("s_cmp_eq_u32", f"s{sOff0}", hex(9 * 32768))] + gap(st0 + 1, s, 'rest')
        o += g
    o += gap(st0 + 1, EXIT, 'head') + [branch("s_cbranch_scc1", "L_exit", ['scc'])]
    if last: return o
    o += gap(st0 + 1, EXIT, 'rest')
    for s in range(EXIT + 1, STEP): o += gap(st0 + 1, s)
    for s in range(0, ENTRY): o += gap(st0 + 2, s)
    o += gap(st0 + 2, ENTRY, 'head') + [branch("s_branch", "L_loop")]
    return o

def scale4(src, tmp, pk=False):
    o = []
    for i in range(4): o.append(V("v_lshlrev_b32", f"v{tmp+2*i}", 16, f"v{src+i}"))
    for i in range(4): o.append(V("v_and_b32", f"v{tmp+2*i+1}", f"s{sMask}", f"v{src+i}"))
    if pk:
        for i in range(4): o.append(V("v_pk_mul_f32", f"v[{tmp+2*i}:{tmp+2*i+1}]", f"v[{tmp+2*i}:{tmp+2*i+1}]", f"s[{sC2}:{sC2+1}]"))
    else:
        for i in range(4): o.append(vmul(f"v{tmp+2*i}", f"s{sC}", f"v{tmp+2*i}"))
        for i in range(4): o.append(vmul(f"v{tmp+2*i+1}", f"s{sC}", f"v{tmp+2*i+1}"))
    for i in range(4): o.append(cvtpk(f"v{src+i}", f"v{tmp+2*i}", f"v{tmp+2*i+1}"))
    return o

def rowmax16(Sbase, t):
    o = []
    for c in range(2):
        b = Sbase + 8 * c
        o.append(V("v_max3_f32", f"v{t+2*c}", f"v{b}", f"v{b+1}", f"v{b+2}"))
        o.append(V("v_max3_f32", f"v{t+2*c+1}", f"v{b+3}", f"v{b+4}", f"v{b+5}"))
    for c in range(2):
        b = Sbase + 8 * c
        o.append(V("v_max3_f32", f"v{t+2*c}", f"v{t+2*c}", f"v{b+6}", f"v{b+7}"))
    for c in range(2): o.append(V("v_max_f32", f"v{t+2*c}", f"v{t+2*c}", f"v{t+2*c+1}"))
    for sw in (swap16, swap32):
        for c in range(2): o.append(vmov(f"v{t+2*c+1}", f"v{t+2*c}"))
        o.append(nop(0))
        for c in range(2): o.append(sw(f"v{t+2*c}", f"v{t+2*c+1}"))
        dst = [f"v{t}", f"v{t+2}"] if sw is swap16 else [f"v{MM}", f"v{MM+1}"]
        for c in range(2): o.append(V("v_max_f32", dst[c], f"v{t+2*c}", f"v{t+2*c+1}"))
    return o

def shift_by_max(Sbase, CI):
    o = []
    for x in range(4): o.append(mfma16_f32(('v', Sbase + 4 * x), VQRT, MM + x // 2, ('v', Sbase + 4 * x)))
    for c in range(2): o.append(mfma16_f32(('v', CI + 4 * c), VQRT, MM + c, 0))
    return o

def dense(ops):
    out = list(ops)
    i = 0
    while i < len(out) - 1:
        if out[i].k == 'trans' and out[i + 1].k == 'valu' and set(out[i].w) & set(out[i + 1].r):
            if i + 2 < len(out) and out[i + 2].k == 'trans': out[i + 1], out[i + 2] = out[i + 2], out[i + 1]; i += 1
            else: out.insert(i + 1, nop(0))
        i += 1
    return out

def stamp(idx, fine=0):
    if not cfg.stamps: return []
    if cfg.fine == 9 and idx != 0: return []
    if cfg.fine != fine and idx not in (0, 8, 9): return []
    return [raw(f"s_memtime s[{60+2*idx}:{61+2*idx}]", 'stampi')]

def prologue():
    o = []
    vmlist = []
    def a(x, tag=None):
        o.append(x)
        if x.k in ('vload', 'dma', 'vstore'): vmlist.append(tag)
    def wait_for(tag):
        last = max(i for i, t in enumerate(vmlist) if t == tag)
        return wait(vm=len(vmlist) - 1 - last)
    a(scmp("s_cmp_ge_u32", "s2", 256)); a(branch("s_cbranch_scc1", "L_end", ['scc']))
    a(raw("s_load_dwordx4 s[36:39], s[0:1], 0", 'smem', [], R('s', 36, 4)))
    a(raw("s_load_dwordx4 s[40:43], s[0:1], 16", 'smem', [], R('s', 40, 4)))
    if cfg.stamps:
        a(raw("s_load_dwordx2 s[58:59], s[0:1], 32", 'smem', [], R('s', 58, 2)))
        o += stamp(0)
        a(raw("s_memrealtime s[82:83]", 'stampi'))
    a(V("v_lshrrev_b32", "v1", 6, "v0"))
    a(V("v_and_b32", "v2", 63, "v0"))
    a(readfirst(f"s{sW}", "v1"))
    a(V("v_lshrrev_b32", "v3", 4, "v2"))
    a(V("v_and_b32", "v4", 15, "v2"))
    a(V("v_lshlrev_b32", f"v{VLIN}", 4, "v2"))
    if cfg.codepf:
        a(raw("s_getpc_b64 s[56:57]", 'salu', [], ['s56', 's57']))
        a(label("L_pc"))
        a(S("s_lshr_b32", f"s{sT}", "s2", 3)); a(S("s_and_b32", f"s{sT}", f"s{sT}", 3)); a(S("s_lshl_b32", f"s{sT}", f"s{sT}", 2))
        a(S("s_add_u32", f"s{sT}", f"s{sT}", f"s{sW}")); a(S("s_min_u32", f"s{sT}", f"s{sT}", cfg.codepf - 1)); a(S("s_lshl_b32", f"s{sT}", f"s{sT}", 10))
        a(raw(f"s_sub_u32 s{sT}, s{sT}, L_pc-{NAME}_kernel", 'salu', [f"s{sT}"], [f"s{sT}", 'scc']))
        a(S("s_ashr_i32", f"s{sT+1}", f"s{sT}", 31))
        a(S("s_add_u32", "s56", "s56", f"s{sT}")); a(S("s_addc_u32", "s57", "s57", f"s{sT+1}", r_scc=True))
        a(vmov("v7", "s57"))
        a(I(f"v_add_co_u32 v6, vcc, s56, v{VLIN}", 'valu', ['s56', f"v{VLIN}"], ['v6', 'vcc']))
        a(nop(1))
        a(I("v_addc_co_u32 v7, vcc, 0, v7, vcc", 'valu', ['v7', 'vcc'], ['v7', 'vcc']))
        a(I("global_load_dwordx4 a[0:3], v[6:7], off", 'vload', ['v6', 'v7'], R('a', 0, 4)), "PF")
    a(S("s_and_b32", f"s{sT}", "s2", 7))
    a(S("s_lshr_b32", f"s{sT+1}", "s2", 3))
    a(S("s_lshr_b32", f"s{sT+2}", "s2", 5))
    a(S("s_lshl_b32", f"s{sW8192}", f"s{sW}", 13))
    a(S("s_lshl_b32", f"s{sT+3}", f"s{sT}", 5)); a(S("s_add_u32", f"s{sT+3}", f"s{sT+3}", f"s{sT+1}"))
    a(S("s_mul_i32", f"s{sT+3}", f"s{sT+3}", 40960, w_scc=False))
    a(S("s_lshl_b32", f"s{sT+4}", f"s{sT}", 3)); a(S("s_add_u32", f"s{sT+4}", f"s{sT+4}", f"s{sT+2}"))
    a(S("s_lshl_b32", f"s{sT+4}", f"s{sT+4}", 18))
    a(V("v_xor_b32", "v5", "v3", "v4"))
    a(V("v_lshlrev_b32", "v5", 4, "v5"))
    a(V("v_lshl_add_u32", "v7", "v3", 8, "v5"))
    a(V("v_lshl_add_u32", "v6", "v4", 8, "v5"))
    a(V("v_add_u32", f"v{KDMA}", f"s{sW8192}", "v7"))
    for k in range(1, 4): a(V("v_xor_b32", f"v{KDMA+k}", 64 * k, f"v{KDMA}"))
    a(S("s_lshl_b32", f"s{sQS}", f"s{sW}", 11)); a(S("s_add_u32", f"s{sQS}", f"s{sQS}", 32768))
    a(S("s_add_u32", f"s{sQO1}", f"s{sW8192}", 4096))
    a(smov(f"s{sOff0}", 0)); a(smov(f"s{sOff1}", 4096))
    a(S("s_add_u32", "m0", f"s{sW8192}", LDS_K0))
    SA, SB = Sb(0), Sb(1)
    QW = CI_SH
    TS = CI_SH + 2
    MXV = CI_OWN
    TW = SB + 8
    TR = SB
    TMPS = P
    for e in range(2):
        a(S("s_lshl_b32", f"s{sT}", f"s{sW}", 1)); a(S("s_add_u32", f"s{sT}", f"s{sT}", e))
        a(S("s_and_b32", f"s{sT+1}", f"s{sT}", 3)); a(S("s_lshl_b32", f"s{sT+1}", f"s{sT+1}", 6))
        a(S("s_lshl_b32", f"s{sT}", f"s{sT}", 10)); a(S("s_add_u32", f"s{sT}", f"s{sT}", LDS_QS))
        a(V("v_xor_b32", f"v{QW+e}", f"s{sT+1}", "v7")); a(V("v_add_u32", f"v{QW+e}", f"s{sT}", f"v{QW+e}"))
    a(V("v_add_u32", f"v{TS}", LDS_QS, "v6"))
    for j in range(1, 4): a(V("v_xor_b32", f"v{TS+j}", 64 * j, f"v{TS}"))
    a(V("v_add_u32", f"v{KADDR}", f"s{sW8192}", "v6"))
    for j in range(1, 4): a(V("v_xor_b32", f"v{KADDR+j}", 64 * j, f"v{KADDR}"))
    a(smov(f"s{sC}", hex(SCALE_BITS))); a(smov(f"s{sMask}", "0xffff0000"))
    a(smov(f"s{sC2}", hex(SCALE_BITS))); a(smov(f"s{sC2+1}", hex(SCALE_BITS)))
    a(wait(lg=0))
    def srd(base, p, off, n):
        a(S("s_add_u32", f"s{base}", f"s{p}", f"s{off}")); a(S("s_addc_u32", f"s{base+1}", f"s{p+1}", 0, r_scc=True))
        a(S("s_and_b32", f"s{base+1}", f"s{base+1}", "0xffff"))
        a(smov(f"s{base+2}", n)); a(smov(f"s{base+3}", "0x20000"))
    o += stamp(1, 1)
    srd(SQ, 36, sT + 3, 40960)
    for e in range(2): a(vload(('v', SA + 4 * e), 4, VLIN, SQ, f"s{sQS}", 1024 * e, cfg.qld), "QS")
    srd(SK, 38, sT + 4, 262144)
    for n in range(4): a(dma(KDMA + n, SK, f"s{sOff0}", 1024 * n, reg=(('K', 0), 0, True), flags=cfg.ld), "K0")
    a(S("s_add_u32", "m0", f"s{sW8192}", LDS_K0 + 4096)); a(nop(0))
    for n in range(4): a(dma(KDMA + n, SK, f"s{sOff1}", 1024 * n, reg=(('K', 0), 0, True), flags=cfg.ld), "K0")
    o += stamp(2, 1)
    QF = MM
    if cfg.qdirect:
        a(V("v_lshlrev_b32", f"v{QF}", 4, "v3")); a(V("v_lshl_add_u32", f"v{QF}", "v4", 8, f"v{QF}"))
    def qown(n0, n1):
        for n in range(n0, n1):
            if cfg.qdirect: a(vload(('v', Q_OWN + 4 * n), 4, QF, SQ, f"s{sW8192 if n < 4 else sQO1}", 64 * (n % 4), cfg.qld), f"QO{n}")
            else: a(vload(('v', Q_OWN + 4 * n), 4, VLIN, SQ, f"s{sW8192 if n < 4 else sQO1}", 1024 * (n % 4), cfg.qld), f"QO{n}")
    qown(0, cfg.qsplit)
    o += stamp(1); o += stamp(3, 1)
    def setupC():
        srd(SV, 40, sT + 4, 262144)
        srd(SO, 42, sT + 3, 40960)
        a(V("v_lshlrev_b32", "v1", 1, "v3")); a(V("v_xor_b32", "v1", "v1", "v4"))
        a(V("v_lshlrev_b32", "v1", 4, "v1")); a(V("v_lshl_add_u32", "v1", "v3", 8, "v1"))
        a(V("v_add_u32", f"v{VDMA}", f"s{sW8192}", "v1")); a(V("v_xor_b32", f"v{VDMA+1}", 128, f"v{VDMA}"))
        for i in range(1, 4):
            a(S("s_add_u32", f"s{sT+i}", f"s{sW}", i)); a(S("s_and_b32", f"s{sT+i}", f"s{sT+i}", 3))
            a(S("s_lshl_b32", f"s{56+i}", f"s{sT+i}", 11))
            a(S("s_sub_u32", f"s{sT+i}", f"s{sT+i}", f"s{sW}")); a(S("s_lshl_b32", f"s{sT+i}", f"s{sT+i}", 13))
        for i in range(1, 4):
            for j in range(4): a(V("v_add_u32", f"v{KADDR+4*i+j}", f"s{sT+i}", f"v{KADDR+j}"))
        for k in range(4): a(V("v_add_u32", f"v{TW+k}", LDS_X, f"v{KDMA+k}"))
        for j in range(4): a(V("v_add_u32", f"v{TR+j}", LDS_X, f"v{KADDR+j}"))
        a(V("v_lshrrev_b32", "v1", 2, "v4")); a(V("v_lshl_add_u32", "v1", "v3", 2, "v1"))
        a(V("v_and_b32", "v5", 7, "v1"))
        a(S("s_lshl_b32", f"s{sT}", f"s{sW}", 1)); a(V("v_xor_b32", "v5", f"s{sT}", "v5"))
        a(V("v_lshlrev_b32", "v5", 5, "v5")); a(V("v_lshl_add_u32", "v5", "v1", 8, "v5"))
        a(V("v_and_b32", "v1", 3, "v4")); a(V("v_lshl_add_u32", "v5", "v1", 3, "v5"))
        a(S("s_add_u32", f"s{sT+4}", f"s{sW8192}", LDS_V0))
        a(V("v_add_u32", f"v{VADDR}", f"s{sT+4}", "v5"))
        for p in range(1, 8): a(V("v_xor_b32", f"v{VADDR+p}", 32 * p, f"v{VADDR}"))
        for i in range(1, 4):
            for p in range(8): a(V("v_add_u32", f"v{VADDR+8*i+p}", f"s{sT+i}", f"v{VADDR+p}"))
        a(S("s_lshl_b32", "s56", f"s{sW}", 11)); a(S("s_add_u32", f"s{sT}", "s56", LDS_PX))
        a(V("v_lshrrev_b32", "v1", 1, f"v{VLIN}")); a(V("v_add_u32", f"v{PXW}", f"s{sT}", "v1"))
        a(V("v_lshrrev_b32", "v5", 2, f"v{VLIN}"))
        a(S("s_lshl_b32", f"s{sT}", f"s{sW}", 9)); a(S("s_add_u32", f"s{sT}", f"s{sT}", LDS_ML))
        a(V("v_add_u32", f"v{MLW}", f"s{sT}", "v5"))
        a(S("s_lshl_b32", f"s{sT}", f"s{sW}", 9)); a(S("s_add_u32", f"s{sT}", f"s{sT}", LDS_MX))
        a(V("v_add_u32", f"v{MXW}", f"s{sT}", "v1")); a(V("v_add_u32", f"v{MXR}", LDS_MX, "v1"))
        a(V("v_add_u32", f"v{MLRD}", LDS_ML, "v5"))
        a(S("s_mul_i32", f"s{sT}", f"s{sW}", 8704, w_scc=False))
        a(V("v_lshlrev_b32", "v5", 3, "v3"))
        a(V("v_mul_u32_u24", "v6", 272, "v4")); a(V("v_add_u32", "v6", "v6", "v5")); a(V("v_add_u32", f"v{AW}", f"s{sT}", "v6"))
        a(S("s_lshl_b32", f"s{sT+4}", f"s{sW}", 2)); a(V("v_xor_b32", "v6", f"s{sT+4}", "v4")); a(V("v_lshlrev_b32", "v6", 4, "v6"))
        a(V("v_mul_u32_u24", "v7", 272, "v3")); a(V("v_add_u32", "v6", "v6", "v7")); a(V("v_add_u32", f"v{AR}", f"s{sT}", "v6"))
        a(S("s_add_u32", f"s{sT}", f"s{sW8192}", LDS_V0))
        a(V("v_mul_u32_u24", "v6", 80, "v4")); a(V("v_add_u32", "v6", "v6", "v5")); a(V("v_add_u32", f"v{SW}", f"s{sT}", "v6"))
        a(V("v_lshrrev_b32", "v5", 2, "v2")); a(V("v_and_b32", "v6", 3, "v2")); a(V("v_lshlrev_b32", "v6", 4, "v6"))
        a(V("v_mul_u32_u24", "v7", 80, "v5")); a(V("v_add_u32", "v7", "v7", "v6")); a(V("v_add_u32", f"v{SR}", f"s{sT}", "v7"))
        a(V("v_lshl_add_u32", f"v{SG}", "v5", 8, "v6"))
        a(vmov(f"v{VQRT}", "0xbe800000"))
        a(vmov("v2", "0x3f803f80"))
        for i in range(4): a(accw(f"a{ONES+i}", "v2"))
        for i in range(4): a(vmov(f"v{P+i}", 0))
        a(V("v_add_u32", "v1", LDS_PX, "v1"))
        for i in range(4): a(V("v_add_u32", f"v{PXR+i}", f"s{56+i}", "v1"))
        for kv, b0, b1 in (('K', LDS_K0, LDS_K1), ('V', LDS_V0, LDS_V1)):
            for buf, base in ((0, b0), (1, b1)):
                for grp in range(2):
                    a(S("s_add_u32", f"s{m0_val_reg(kv, buf, grp)}", f"s{sW8192}", base + grp * 4096))
        a(smov(f"s{sKill}", 0))
        for db in range(5): a(mfma(('v', O_OWN + 16 * db), ('v', P), ('v', P), 0))
        for b in (VF0, VF0 + 16, PSH, PSH + 16, L_OWN): a(mfma(('a', b), ('v', P), ('v', P), 0))
    if cfg.cpos == 0: setupC()
    o += stamp(2); o += stamp(4, 1)
    qown(cfg.qsplit, 8)
    a(smov(f"s{sOff0}", 0)); a(smov(f"s{sOff1}", 4096))
    def vdma(buf, content, tag, only=None):
        for grp in range(2):
            a(S("s_mov_b32", "m0", f"s{m0_val_reg('V', buf, grp)}", w_scc=False)); a(nop(0))
            for n in range(4):
                if only is None or only(4 * grp + n):
                    a(dma(VDMA + n % 2, SV, f"s{sOff0 if grp == 0 else sOff1}", 1024 * n, reg=(('V', buf), content, True), flags=cfg.ld), tag)
    a(wait_for("QS"))
    o += stamp(5, 1)
    o += scale4(SA, TMPS, pk=True) + scale4(SA + 4, TMPS + 8, pk=True)
    for e in range(2): a(dsw128(QW + e, ('v', SA + 4 * e), 0, reg=(('QS', 0), 'qs', False)))
    a(wait_for("K0"))
    for aa in range(2):
        for j in range(4): a(dsr128(('a', KF + 16 * aa + 4 * j), KADDR + j, koff(0) + 4096 * aa, reg=(('K', 0), 0, True)))
    a(wait(lg=8)); a(barrier())
    for c in range(2):
        for j in range(4): a(dsr128(('a', Q_SH + 16 * c + 4 * j), TS + j, 4096 * c, reg=(('QS', 0), 'qs', False)))
    if cfg.v0pos == -2: vdma(0, 0, "V0")
    o += stamp(6, 1)
    for k in range(16):
        if k < 4: a(wait(lg=7 - k))
        if k == 8: a(wait(lg=0))
        a(qk_mfma(0, 0, k, first_c=False))
    o += stamp(3); o += stamp(7, 1)
    if cfg.cpos == 1: setupC()
    def piece(n, pk):
        a(wait_for(f"QO{n}"))
        o.extend(scale4(Q_OWN + 4 * n, TMPS + 8 * (n % 2), pk=pk))
        if not cfg.qdirect: a(dsw128(TW + n % 4, ('v', Q_OWN + 4 * n), 1024 * n, reg=(('QO', 0), 'qo', True)))
    a(nop(4))
    o += rowmax16(SA, 4 + 0 if False else TMPS)
    a(dsw64(MXW, ('v', MM), 0, reg=(('MX', 0), 'mx', False)))
    a(wait(lg=0)); a(barrier())
    for x in range(4): a(dsr64(('v', MXV + 2 * x), MXR, 512 * x, reg=(('MX', 0), 'mx', False)))
    o += stamp(4)
    a(wait(lg=0))
    for c in range(2):
        a(V("v_max3_f32", f"v{MM+c}", f"v{MXV+c}", f"v{MXV+2+c}", f"v{MXV+4+c}"))
    for c in range(2): a(V("v_max_f32", f"v{MM+c}", f"v{MM+c}", f"v{MXV+6+c}"))
    a(nop(1))
    o += shift_by_max(SA, CI_SH)
    if cfg.v0pos == -1: vdma(0, 0, "V0")
    for n in range(4):
        piece(n, n >= 2)
        if n == cfg.v0pos: vdma(0, 0, "V0")
    def sm_range(s0, s1):
        q = []
        for s in range(s0, s1):
            st, sl = (0, s) if s >= 0 else (-1, s + STEP)
            q += [x for x in sm_ops(st, sl) if st == 0 or not (set(x.w) | set(x.r)) & set(R('v', SB, 16) + R('v', Pb(1), 8))]
        return q
    smq = dense(sm_range(cfg.E0 - WL, cfg.E0))
    for n in range(4, 8):
        piece(n, True)
        if n == cfg.v0pos: vdma(0, 0, "V0")
        o += smq[3 * (n - 4):3 * (n - 4) + 3]
    smq = smq[12:]
    o += stamp(5)
    a(smov(f"s{sOff0}", 32768)); a(smov(f"s{sOff1}", 32768 + 4096))
    if not cfg.qdirect:
        a(wait(lg=0))
        for c in range(2):
            for j in range(4): a(dsr128(('v', Q_OWN + 16 * c + 4 * j), TR + j, 4096 * c, reg=(('QO', 0), 'qo', True)))
    def k1dma():
        for grp in range(2):
            a(S("s_mov_b32", "m0", f"s{m0_val_reg('K', 1, grp)}", w_scc=False)); a(nop(0))
            for k in range(4): a(dma(KDMA + k, SK, f"s{sOff0 if grp == 0 else sOff1}", 1024 * k, reg=(('K', 1), 1, True), flags=cfg.ld), "K1")
    if cfg.k1pos == 0: k1dma()
    if cfg.qdirect: a(nop(1))
    for k in range(16):
        if k < 4 and not cfg.qdirect: a(wait(lg=7 - k))
        if k == 8 and not cfg.qdirect: a(wait(lg=0))
        a(qk_mfma(1, 1, k, first_c=False))
        o += smq[k:k + 1]
    assert len(smq) <= 16
    o += stamp(6)
    if cfg.k1pos == 1: k1dma()
    def v1_in_prologue(n):
        gp = [sl for sl in range(STEP) if ('DV', n) in MEM[sl]][0]
        return gp > cfg.B2 or gp < ENTRY
    def b0():
        a(wait_for("V0"))
        a(barrier())
    if cfg.b0pos == 0:
        b0()
        if cfg.k1pos == 2: k1dma()
        if cfg.v1pos == 0: vdma(1, 1, "V1", v1_in_prologue)
    pre = []
    for st, rng in ((-1, range(cfg.B2 + 1, STEP)), (0, range(0, ENTRY))):
        for sl in rng:
            for d in MEM[sl]:
                if d[0] == 'V' and (st == 0 or d[1] == 0): pre.append(mem_ins(st, sl, d))
                elif d[0] == 'K' and st == 0: pre.append(mem_ins(st, sl, d))
    head = dense(sm_range(cfg.E0, ENTRY))
    if cfg.b0pos == 1 and cfg.k1pos != 1: a(nop(5))
    o += rowmax16(SB, TMPS + 8)
    a(nop(1))
    o += shift_by_max(SB, CI_OWN)
    if cfg.b0pos == 1:
        b0()
        if cfg.k1pos == 2: k1dma()
        if cfg.v1pos == 0: vdma(1, 1, "V1", v1_in_prologue)
    o += pre
    if len(pre) < 10: a(nop(10 - len(pre)))
    o += head
    if cfg.v1pos == 1: vdma(1, 1, "V1", v1_in_prologue)
    a(wait(lg=0))
    o += stamp(7)
    if cfg.stamps: a(raw("s_memrealtime s[86:87]", 'stampi'))
    return o

SO2 = 4
class Seq:
    def __init__(self): self.o = []; self.ds = []; self.done = -1; self.prod = {}
    def wait_idx(self, idx):
        if idx > self.done:
            n = min(15, len(self.ds) - 1 - idx)
            self.o.append(wait(lg=n)); self.done = len(self.ds) - 1 - n
    def wait_op(self, x): self.wait_idx(max(i for i, y in enumerate(self.ds) if y is x))
    def __call__(self, x):
        need = max([self.prod.get(r, -1) for r in x.r] + [-1])
        if x.k not in ('dsr',): need = max([need] + [self.prod.get(r, -1) for r in x.w])
        self.wait_idx(need) if need >= 0 else None
        self.o.append(x)
        if x.k in ('dsr', 'dsw'):
            self.ds.append(x)
            for r in x.w: self.prod[r] = len(self.ds) - 1
        return x

def epilogue():
    q = Seq(); a = q
    st = 7
    SF = cfg.store_flags
    par = (st + 4) % 2
    late = cfg.wr_slots[0] > cfg.B1
    assert not late
    vr, prs = [], []
    for s in range(EXIT, STEP):
        for d in MEM[s]:
            if d[0] == 'V' and d[1] == 3: vr.append((d[2], mem_ins(st, s, d)))
            elif d[0] == 'PR': prs.append(((d[1], d[2]), mem_ins(st, s, d)))
    vr.sort(key=lambda x: x[0]); vr = [x for _, x in vr]
    prs.sort(key=lambda x: x[0]); prs = [x for _, x in prs]
    MLR = (('ML', 0), 'ml', False)
    lw = [I(f"ds_write_b32 v{MLW}, a{L_SH+4*c}" + (f" offset:{256*c}" if c else ""), 'dsw', [f"v{MLW}", f"a{L_SH+4*c}"], [], reg=MLR) for c in range(2)]
    tail = []
    for s in range(EXIT, STEP): tail += [x for x in sm_ops(st, s) if not (set(x.w) | set(x.r)) & set(R('v', Sb(1 - par), 16))]
    LR = CI_OWN
    LO, RI, RS = P, P + 2, P + 4
    OT, OT1, STG = (('OT', 0), 'ot', True), (('OT', 1), 'ot', True), (('ST', 0), 'st', True)
    lr = [I(f"ds_read2st64_b32 v[{LR+4*c+2*h}:{LR+4*c+2*h+1}], v{MLRD} offset0:{4*h+c} offset1:{4*h+2+c}", 'dsr', [f"v{MLRD}"], R('v', LR + 4 * c + 2 * h, 2), reg=MLR)
          for c in range(2) for h in range(2)]
    mm = [ones_mfma(L_OWN, 0, Pb(par))] + [pv_mfma(3, par, 0, p) for p in range(8)] + \
         [ones_mfma(L_OWN, 1, Pb(par) + 4)] + [pv_mfma(3, par, 1, p) for p in range(8)] + [pvsh_mfma(n) for n in range(16)]
    NM = len(mm)
    def fin(b, rinv_pair, sel, addr, off, reg, pk):
        if not pk: mul = [vmul(f"v{b+i}", f"v{rinv_pair+sel}", f"v{b+i}") for i in range(4)]
        else: mul = [V("v_pk_mul_f32", f"v[{b+i}:{b+i+1}]", f"v[{b+i}:{b+i+1}]", f"v[{rinv_pair}:{rinv_pair+1}]",
                       mods="op_sel:[0,1] op_sel_hi:[1,1]" if sel else "op_sel:[0,0] op_sel_hi:[1,0]") for i in (0, 2)]
        return mul + [cvtpk(f"v{b}", f"v{b}", f"v{b+1}"), cvtpk(f"v{b+1}", f"v{b+2}", f"v{b+3}"), dsw64(addr, ('v', b), off, reg=reg)]
    F = []
    def f(n, *xs):
        for x in xs: F.append((n, x))
    nv = cfg.epi_nv
    for x in vr[:nv]: a(x)
    t = list(tail)
    rest = vr[nv:]
    while rest or t:
        f(0, *rest[:2]); rest = rest[2:]
        if t: f(0, t.pop(0))
    f(0, *prs)
    f(4, accr(f"v{LO}", f"a{L_OWN}"))
    f(0, smov(f"s{sT+2}", hex(cfg.thresh)), vrcp(f"v{RI}", f"v{LO}"))
    f(17, accr(f"v{LO+1}", f"a{L_OWN+4}"))
    groups = [(O_OWN + 4 * p, RI, 0, AW, p * 32, OT) for p in range(8)]
    ng = cfg.epi_ng
    for gidx in range(ng):
        f(0, *fin(*groups[gidx], pk=False))
        if gidx == 0: f(0, vrcp(f"v{RI+1}", f"v{LO+1}"))
        if gidx == cfg.epi_lw: f(0, *lw)
    G = [('BAR',)]
    for c in range(2): G += [vadd(f"v{LR+4*c}", f"v{LR+4*c}", f"v{LR+4*c+1}"), vadd(f"v{LR+4*c+2}", f"v{LR+4*c+2}", f"v{LR+4*c+3}")]
    for c in range(2): G += [vadd(f"v{LR+4*c}", f"v{LR+4*c}", f"v{LR+4*c+2}")]
    G += [vcmp("v_cmp_nle_f32", "s[52:53]", f"v{LO}", f"s{sT+2}"), vcmp("v_cmp_nle_f32", "s[56:57]", f"v{LO+1}", f"s{sT+2}")]
    for c in range(2): G += [vrcp(f"v{RS+c}", f"v{LR+4*c}")]
    G += [raw("s_or_b64 s[52:53], s[52:53], s[56:57]", 'salu', ['s52', 's53', 's56', 's57'], ['s52', 's53', 'scc'])]
    G += [vcmp("v_cmp_nle_f32", "s[54:55]", f"v{LR}", f"s{sT+2}"), vcmp("v_cmp_nle_f32", "s[56:57]", f"v{LR+4}", f"s{sT+2}")]
    k = 0
    def put(x):
        if isinstance(x, tuple):
            q.wait_op(lw[-1]); a(barrier())
            for y in lr: a(y)
        else: a(x)
    sub = []
    gi = ng
    for x in stamp(1, 3): a(x)
    for n, m in enumerate(mm):
        if n == 18:
            for y in stamp(4, 3): a(y)
        if n == 1 and q.done < 0: q.o.append(wait(lg=min(15, len(q.ds))))
        a(m)
        c = 0
        while c < 2:
            if k < len(F) and F[k][0] <= n:
                x = F[k][1]; put(x); k += 1
                if isinstance(x, tuple): c += 1
                elif x.k == 'trans': c += 2
                elif x.k not in ('salu', 'wait'): c += 1
            else: break
    for x in stamp(6, 3): a(x)
    for _, x in F[k:]: put(x)
    todo = [fin(*g, pk=True) for g in groups[gi:]]
    for g in todo:
        for x in g: a(x)
    lastw = [y for y in q.ds if y.k == 'dsw' and y.x.get('reg') == OT][-1]
    for x in stamp(7, 3): a(x)
    R0 = S0
    c1 = [fin(O_OWN + 32 + 4 * p, RI, 1, AW, p * 32 + 4352, OT1, True) for p in range(8)]
    sh = [fin(O_SH + 8 * p + 4 * c, RS, c, SW, p * 32 + c * 1280, STG, True) for p in range(2) for c in range(2)]
    sc = [raw("s_or_b64 s[54:55], s[54:55], s[56:57]", 'salu', ['s54', 's55', 's56', 's57'], ['s54', 's55', 'scc'])]
    if cfg.force_slow:
        sc += [raw("s_mov_b64 s[54:55], -1", 'salu', [], ['s54', 's55']), raw("s_mov_b64 s[52:53], -1", 'salu', [], ['s52', 's53'])]
    sc += [smov(f"s{SO2}", f"s{SO}"), smov(f"s{SO2+1}", f"s{SO+1}"), smov(f"s{SO2+3}", "0x20000"),
           scmp("s_cmp_lg_u64", "s[54:55]", 0), S("s_cselect_b32", f"s{SO2+2}", 0, 40960, w_scc=False, r_scc=True),
           S("s_add_u32", f"s{sT+1}", f"s{sW8192}", 4096),
           S("s_lshl_b32", f"s{sT+3}", f"s{sW}", 6), S("s_add_u32", f"s{sT+3}", f"s{sT+3}", 32768), S("s_add_u32", f"s{sT+4}", f"s{sT+3}", 4096)]
    for x in c1[0]: a(x)
    q.wait_op(lastw)
    for n in range(4): a(dsr128(('v', R0 + 4 * n), AR, 1088 * n, reg=OT))
    st0 = [vstore(('v', R0 + 4 * n), 4, VLIN, SO, f"s{sW8192}", 1024 * n, SF) for n in range(4)]
    put(G.pop(0))
    for p in range(1, 8):
        for x in c1[p]: a(x)
        if st0: a(st0.pop(0))
        for _ in range(3):
            if G: a(G.pop(0))
    lastw = c1[7][-1]
    for x in G: a(x)
    for x in sc: a(x)
    for x in sh[0] + sh[1]: a(x)
    q.wait_op(lastw)
    for n in range(4, 8): a(dsr128(('v', R0 + 4 * n), AR, 1088 * n, reg=OT1))
    for x in sh[2] + sh[3]: a(x)
    for n in range(4, 8): a(vstore(('v', R0 + 4 * n), 4, VLIN, SO, f"s{sT+1}", 1024 * (n % 4), SF))
    q.wait_op(sh[3][-1])
    for n in range(2): a(dsr128(('v', O_SH + 4 * n), SR, 1280 * n, reg=STG))
    for n in range(2): a(vstore(('v', O_SH + 4 * n), 4, SG, SO2, f"s{sT+3+n}", 0, SF))
    for x in stamp(9): a(x)
    a(raw("s_or_b64 s[56:57], s[52:53], s[54:55]", 'salu', ['s52', 's53', 's54', 's55'], ['s56', 's57', 'scc']))
    a(branch("s_cbranch_scc1", "L_slow", ['scc']))
    return q.o

def store_tile_rows(Oreg, rinv, soff):
    o = []
    for db in range(4):
        b = Oreg + 16 * db
        for i in range(16): o.append(vmul(f"v{b+i}", f"v{rinv}", f"v{b+i}"))
        for m in range(8): o.append(cvtpk(f"v{b+m}", f"v{b+2*m}", f"v{b+2*m+1}"))
        for pr in range(2):
            r0 = b + 4 * pr
            o.append(swap32(f"v{r0}", f"v{r0+2}")); o.append(swap32(f"v{r0+1}", f"v{r0+3}"))
        for pr in range(2): o.append(vstore(('v', b + 4 * pr), 4, VQ, SO, soff, db * 64 + pr * 32))
    return o

def slow_path():
    o = []; a = o.append
    Kr, Sr, Vr, Or, Pr = 80, 112, 128, O_OWN, 72
    mreg, lreg = SLM, SLL
    a(label("L_slow"))
    a(wait(vm=0, lg=0))
    a(smov(f"s{SO+2}", 40960))
    a(V("v_bfe_u32", "v1", f"v{VLIN}", 4, 5)); a(V("v_lshrrev_b32", "v2", 9, f"v{VLIN}"))
    a(V("v_lshlrev_b32", f"v{VQ}", 4, "v2")); a(V("v_lshl_add_u32", f"v{VQ}", "v1", 8, f"v{VQ}"))
    a(scmp("s_cmp_lg_u64", "s[52:53]", 0)); a(branch("s_cbranch_scc0", "L_slow_sh", ['scc']))
    a(smov("s33", f"s{sW8192}"))
    a(raw("s_mov_b64 s[52:53], 0", 'salu', [], ['s52', 's53']))
    a(branch("s_branch", "L_slow_tile"))
    a(label("L_slow_sh"))
    a(scmp("s_cmp_lg_u64", "s[54:55]", 0)); a(branch("s_cbranch_scc0", "L_end", ['scc']))
    a(scmp("s_cmp_lg_u32", f"s{sW}", 0)); a(branch("s_cbranch_scc1", "L_end", ['scc']))
    a(smov("s33", 32768))
    a(raw("s_mov_b64 s[54:55], 0", 'salu', [], ['s54', 's55']))
    a(label("L_slow_tile"))
    for j in range(8): a(vload(('v', Q_OWN + 4 * j), 4, VQ, SQ, "s33", 32 * j))
    a(wait(vm=0))
    for g in range(8): o.extend(scale4(Q_OWN + 4 * g, 240, pk=False))
    a(vmov(f"v{mreg}", "0xff800000"))
    def qk():
        for j in range(8): a(vload(('v', Kr + 4 * j), 4, VQ, SK, "s34", 32 * j))
        a(wait(vm=0))
        for j in range(8): a(mfma(('v', Sr), ('v', Kr + 4 * j), ('v', Q_OWN + 4 * j), 0 if j == 0 else ('v', Sr)))
        a(nop(15))
    a(smov("s34", 0))
    a(label("L_slow_p1"))
    qk()
    for i in range(16): a(V("v_max_f32", f"v{mreg}", f"v{mreg}", f"v{Sr+i}"))
    a(S("s_add_u32", "s34", "s34", 8192)); a(scmp("s_cmp_lt_u32", "s34", 262144)); a(branch("s_cbranch_scc1", "L_slow_p1", ['scc']))
    a(vmov("v1", f"v{mreg}")); a(nop(1)); a(swap32(f"v{mreg}", "v1")); a(V("v_max_f32", f"v{mreg}", f"v{mreg}", "v1"))
    a(vmov(f"v{lreg}", 0))
    for i in range(64): a(vmov(f"v{Or+i}", 0))
    a(V("v_lshrrev_b32", "v2", 8, f"v{VQ}"))
    a(V("v_bfe_u32", "v3", f"v{VQ}", 4, 1))
    a(V("v_lshlrev_b32", "v2", 1, "v2")); a(V("v_lshl_add_u32", "v2", "v3", 10, "v2"))
    a(smov("s34", 0))
    a(label("L_slow_p2"))
    qk()
    for i in range(16): a(V("v_sub_f32", f"v{Sr+i}", f"v{Sr+i}", f"v{mreg}"))
    for i in range(16): a(vexp(f"v{Sr+i}", f"v{Sr+i}"))
    a(nop(0))
    for i in range(16): a(vadd(f"v{lreg}", f"v{lreg}", f"v{Sr+i}"))
    for m in range(8): a(cvtpk(f"v{Pr+m}", f"v{Sr+2*m}", f"v{Sr+2*m+1}"))
    for ks in range(2):
        a(S("s_add_u32", "s35", "s34", ks * 4096))
        for db in range(4):
            for r in range(4):
                for e in range(2):
                    j = 2 * r + e
                    off = (8 * (j // 4) + j % 4) * 256 + db * 64
                    a(vload(('v', Kr + 8 * db + 2 * r + e), 1, 2, SV, "s35", off, op="buffer_load_ushort"))
        a(wait(vm=0))
        for db in range(4):
            for r in range(4): a(V("v_lshl_or_b32", f"v{Vr+4*db+r}", f"v{Kr+8*db+2*r+1}", 16, f"v{Kr+8*db+2*r}"))
        a(nop(1))
        for db in range(4): a(mfma(('v', Or + 16 * db), ('v', Vr + 4 * db), ('v', Pr + 4 * ks), ('v', Or + 16 * db)))
        a(nop(7))
    a(S("s_add_u32", "s34", "s34", 8192)); a(scmp("s_cmp_lt_u32", "s34", 262144)); a(branch("s_cbranch_scc1", "L_slow_p2", ['scc']))
    a(nop(15))
    a(vmov("v1", f"v{lreg}")); a(nop(1)); a(swap32(f"v{lreg}", "v1")); a(vadd(f"v{lreg}", f"v{lreg}", "v1"))
    a(vrcp("v5", f"v{lreg}")); a(nop(0))
    o += store_tile_rows(Or, 5, "s33")
    a(wait(vm=0))
    a(branch("s_branch", "L_slow_sh"))
    return o

def stamp_out():
    o = []
    if not cfg.stamps: return o
    a = o.append
    a(raw("s_waitcnt vmcnt(0)", 'wait', vm=0)); o += [raw("s_memtime s[80:81]", 'stampi'), raw("s_memrealtime s[84:85]", 'stampi')]
    a(raw("s_waitcnt lgkmcnt(0)", 'wait', lg=0))
    if cfg.stamp_wg >= 0:
        a(scmp("s_cmp_lg_u32", "s2", cfg.stamp_wg)); a(branch("s_cbranch_scc1", "L_end", ['scc']))
        a(scmp("s_cmp_lg_u32", f"s{sW}", 0)); a(branch("s_cbranch_scc1", "L_end", ['scc']))
        a(vmov("v1", 0))
    else:
        a(raw("s_load_dwordx2 s[58:59], s[0:1], 40", 'smem', [], R('s', 58, 2))); a(wait(lg=0))
        a(S("s_lshl_b32", "s33", "s2", 2)); a(S("s_add_u32", "s33", "s33", f"s{sW}")); a(S("s_lshl_b32", "s33", "s33", 6))
        a(vmov("v1", "s33"))
    def put(off, x, y):
        if y is None: a(vmov("v2", x))
        else:
            a(S("s_sub_u32", "s33", x, y)); a(vmov("v2", "s33"))
        a(raw(f"global_store_dword v1, v2, s[58:59] offset:{off}", 'vstore', ['v1', 'v2', 's58', 's59'], [], data=['v2']))
        a(nop(1))
    if cfg.fine != 9:
        for i in range(11): put(4 * i, f"s{60+2*i}", "s60")
    else: put(40, "s80", "s60")
    put(44, "s84", "s82"); put(48, "s86", "s82"); put(52, "s88", "s82"); put(56, "s82", None)
    return o

def build():
    global MEM, LGW
    MEM = build_mem_schedule()
    LGW = compute_lgkm_waits()
    pro = prologue()
    body = body_iter(0)
    epi = epilogue()
    slow = slow_path()
    static = pro + [raw(".p2align 6", 'label'), label("L_loop")] + body + [label("L_exit")] + stamp(8) + \
             ([raw("s_memrealtime s[88:89]", 'stampi')] if cfg.stamps else []) + epi + stamp_out() + \
             [label("L_end"), raw("s_endpgm", 'branch')] + slow
    trace = list(pro)
    for it in range(4):
        b = body_iter(2 * it, last=(it == 3))
        assert [x.t for x in b] == [x.t for x in body[:len(b)]], "loop body is not periodic"
        trace += b
    trace += epi
    errs = verify(trace, "main")
    errs += verify(slow, "slow", check_lds=False)
    return static, errs, (pro, body, epi)

HEADER = """; Kernarg layout for this problem (48 bytes, ptrs only, base s[0:1]):
; One workgroup per (batch, q-head): 4 waves; wave w owns q rows 32w..32w+31 against all keys.  For the shared
; LDS and wave w accumulates output columns 32w..32w+31.
; @launch grid=(256,1,1) block=(256,1,1) lds=163840
.amdgcn_target "amdgcn-amd-amdhsa--gfx950"
.text
.globl {n}_kernel
.p2align 8
.type {n}_kernel,@function
{n}_kernel:
"""
FOOTER = """
.section .rodata,"a"
.p2align 6
.amdhsa_kernel {n}_kernel
  .amdhsa_next_free_vgpr 512
  .amdhsa_next_free_sgpr 96
  .amdhsa_accum_offset 256
  .amdhsa_group_segment_fixed_size 0
  .amdhsa_kernarg_size 48
  .amdhsa_user_sgpr_count 2
  .amdhsa_user_sgpr_kernarg_segment_ptr 1
  .amdhsa_system_sgpr_workgroup_id_x 1
.end_amdhsa_kernel
"""

def main(argv=None):
    ap = argparse.ArgumentParser()
    ap.add_argument("-o", default="cdna_kernels/%s.s" % NAME)
    ap.add_argument("--stamps", action="store_true")
    ap.add_argument("--stamp-wg", type=int, default=0)
    ap.add_argument("--force-slow", action="store_true")
    ap.add_argument("--thresh", default=None)
    ap.add_argument("--store-flags", default="nt")
    ap.add_argument("--ld", default="nt"); ap.add_argument("--qld", default="nt")
    ap.add_argument("--fine", type=int, default=0)
    ap.add_argument("--qsplit", type=int, default=2)
    ap.add_argument("--lead", type=int, default=8); ap.add_argument("--lag", type=int, default=6)
    ap.add_argument("--wr", default=None); ap.add_argument("--dv", default=None); ap.add_argument("--dk", default=None)
    ap.add_argument("--sched", default="early"); ap.add_argument("--nospread", action="store_true")
    ap.add_argument("--show", action="store_true")
    ap.add_argument("--cmajor", action="store_true")
    ap.add_argument("--qdirect", action="store_true")
    ap.add_argument("--codepf", type=int, default=12)
    ap.add_argument("--cpos", type=int, default=0)
    ap.add_argument("--pro", default="1,1,1")
    ap.add_argument("--epi", default="8,6,3")
    ap.add_argument("--novm", action="store_true"); ap.add_argument("--nobarx", action="store_true"); ap.add_argument("--v0pos", type=int, default=1)
    ap.add_argument("--b1", type=int, default=104); ap.add_argument("--b2", type=int, default=160); ap.add_argument("--inc", type=int, default=20)
    ap.add_argument("--noexcl", action="store_true")
    ap.add_argument("--drop", default=""); ap.add_argument("--nobar", action="store_true")
    args = ap.parse_args(argv)
    cfg.stamps = args.stamps; cfg.stamp_wg = args.stamp_wg; cfg.force_slow = args.force_slow; cfg.store_flags = args.store_flags
    cfg.ld = args.ld; cfg.qld = args.qld; cfg.fine = args.fine; cfg.qsplit = args.qsplit
    cfg.LEAD = args.lead; cfg.LAG = args.lag; cfg.sched = args.sched; cfg.spread = not args.nospread
    cfg.novm = args.novm; cfg.barx = not args.nobarx; cfg.v0pos = args.v0pos
    cfg.epi_nv, cfg.epi_ng, cfg.epi_lw = [int(x) for x in args.epi.split(",")]
    cfg.k1pos, cfg.b0pos, cfg.v1pos = [int(x) for x in args.pro.split(",")]
    cfg.cpos = args.cpos
    cfg.codepf = args.codepf
    cfg.qdirect = args.qdirect
    cfg.pmajor = not args.cmajor
    cfg.excl = not args.noexcl; cfg.B1 = args.b1; cfg.B2 = args.b2; cfg.inc_slot = args.inc
    cfg.drop = tuple(x for x in args.drop.split(",") if x); cfg.nobar = args.nobar
    if args.wr: cfg.wr_slots = tuple(int(x) for x in args.wr.split(","))
    if args.dv: cfg.dv_slots = tuple(int(x) for x in args.dv.split(","))
    if args.dk: cfg.dk_slots = tuple(int(x) for x in args.dk.split(","))
    if args.thresh: cfg.thresh = int(args.thresh, 0)
    static, errs, parts = build()
    if args.show:
        for s in range(STEP): print(s, sm_kind(s) or "", LGW[s], MEM[s])
    for e in errs[:40]: print("ERR", e)
    cnt = lambda L: sum(1 for x in L if x.k != 'label')
    print("errors:", len(errs), " instructions:", cnt(static), " pro/body/epi:", [cnt(p) for p in parts])
    open(args.o, "w").write(HEADER.format(n=NAME) + text_of(static) + FOOTER.format(n=NAME))

if __name__ == "__main__": main()
```

```python
import sys, argparse, re
from asmlib import *

NAME = "standalone__gqa_softmax__near_ridge"
STEP = 170

class Cfg:
    LEAD = 8; LAG = 6
    thresh = 0x53800000
    stamps = False; stamp_wg = 0; fine = 0
    force_slow = False
    store_flags = "nt"; ld = "nt"; qld = "nt"
    qsplit = 2; v0pos = 1; codepf = 12
    B1 = 140; B2 = 34
    dk_slots = None; dv_slots = None
    inc_slot = 80
    sched = "early"; spread = True; drop = (); nobar = False
    epi_nv = 8; epi_ng = 6
cfg = Cfg()

MGW, MGR, MLW, MLR = 8, 9, 10, 11
KDMA = 12
VDMA = 16
AW, VLIN, AR, SW, SR, SG = 18, 19, 20, 21, 22, 23
KADDR = 24
VADDR = 32
P = 48
S0 = 72
CI_OWN, CI_SH = 120, 128
VQRT = 132
MM = 133
TMPS = 136
Q_OWN = 144
O_OWN = 176
O_SHL = 240
VQ, SLM, SLL = 4, 6, 7
Q_SH, KF, VF, O_SHH, L_OWN, L_SH, ONES = 0, 16, 48, 80, 96, 104, 108
def Sb(b): return S0 + 24 * b
def Pb(b): return P + 12 * b
def osh(p): return ('v', O_SHL + 4 * p) if p < 4 else ('a', O_SHH + 4 * (p - 4))
sW, SQ, SK, SV, SO = 3, 8, 12, 16, 20
SO2 = 4
sW8192, sOff0, sOff1, sC, sMask = 24, 25, 26, 27, 28
sT = 29
sKill = 34
sH = 35
sM0 = 44
sC2 = 52
sQS, sQO1 = 90, 91
SCALE_BITS = 0x3e0293ee
LDS_K1, LDS_K0, LDS_X, LDS_V0, LDS_V1 = 0, 32768, 65536, 98304, 131072
LDS_MG = LDS_X
LDS_ML = LDS_X + 16384
DROP = 0x30000
def koff(buf): return LDS_K0 if buf == 0 else LDS_K1

NCOL = [3, 3, 2, 2]
QK0 = [0, 42, 93, 136]
PV0 = [66, 109, 152, 194]
EX0 = [7, 55, 103, 143]
def qk_mfma(pos, k, first_c=True):
    x, j = divmod(k, 4); a, col = x % 2, x // 2
    D = ('v', Sb(pos % 2) + 4 * x)
    B = ('a', Q_SH + 4 * j) if col == 2 else ('v', Q_OWN + 16 * col + 4 * j)
    C = (('v', CI_SH if col == 2 else CI_OWN + 4 * col) if first_c else 0) if j == 0 else D
    return mfma16(D, ('a', KF + 16 * a + 4 * j), B, C)
def ones_mfma(pos, col):
    Lr = L_SH if col == 2 else L_OWN + 4 * col
    return mfma16(('a', Lr), ('a', ONES), ('v', Pb(pos % 2) + 4 * col), ('a', Lr))
def pv_mfma(pos, p, col):
    O = osh(p) if col == 2 else ('v', O_OWN + 32 * col + 4 * p)
    return mfma16(O, ('a', VF + 4 * p), ('v', Pb(pos % 2) + 4 * col), O)
def pv_block(pos):
    n = NCOL[pos]
    return [pv_mfma(pos, p, col) for p in range(8) for col in range(n)] + [ones_mfma(pos, col) for col in range(n)]

def mfma_at(step, g):
    for pos in range(4):
        if QK0[pos] <= g < QK0[pos] + 8 * NCOL[pos]: return qk_mfma(pos, g - QK0[pos])
        for base in (PV0[pos], PV0[pos] - STEP):
            if base <= g < base + 9 * NCOL[pos]: return pv_block(pos)[g - base]
    raise Exception(g)

def sm_ops(step, g):
    ops = []
    for pos in range(4):
        for gg in (g, g + STEP):
            rel = gg - EX0[pos]; n = 8 * NCOL[pos]; S_ = Sb(pos % 2)
            if 0 <= rel <= 2 * (n - 1) and rel % 2 == 0: ops.append(vexp(f"v{S_+rel//2}", f"v{S_+rel//2}"))
            if 3 <= rel <= 2 * (n - 1) + 1 and rel % 4 == 3:
                m = (rel - 3) // 4
                ops.append(cvtpk(f"v{Pb(pos % 2)+m}", f"v{S_+2*m}", f"v{S_+2*m+1}"))
    return ops
def sm_pos(x):
    return None
def sm_kind(g):
    o = sm_ops(2, g % STEP)
    return 'exp' if any(x.k == 'trans' for x in o) else 'cvt' if o else None

def free_gaps(lo, hi): return [g for g in range(lo, hi) if sm_kind(g) is None]

def build_mem_schedule():
    ops = []
    L = cfg.LEAD; B1, B2 = cfg.B1, cfg.B2
    def add(d, e, l):
        assert e <= l, (d, e, l)
        ops.append([d, e, l])
    for a in range(2):
        for j in range(4):
            o = 4 * a + j
            for pos in range(4):
                prev = (pos - 1) % 4
                pst = QK0[prev] - (STEP if pos == 0 else 0)
                last = pst + (16 if NCOL[prev] == 3 else 8) + o
                use = QK0[pos] + o
                if pos == 0: add(('K', 0, a, j), max(last + STEP, B1 + 1), STEP + use - L)
                elif pos == 3: add(('K', 3, a, j), last, min(use - L, B1 - L))
                else: add(('K', pos, a, j), last, use - L)
    for pos in range(4):
        prev = (pos - 1) % 4
        pst = PV0[prev] - (STEP if pos == 0 else 0)
        for p in range(8):
            last = pst + NCOL[prev] * p + NCOL[prev] - 1
            use = PV0[pos] + NCOL[pos] * p
            e, l = last, use - L
            if pos == 0: e = max(e, B2 + 1)
            if pos == 3: l = min(l, STEP + B2 - L)
            for hh in range(2): add(('V', pos, p, hh), e, l)
    sched = {s: [] for s in range(STEP)}
    for n, sl in enumerate(cfg.dk_slots): sched[sl % STEP].append(('DK', n))
    for n, sl in enumerate(cfg.dv_slots): sched[sl % STEP].append(('DV', n))
    def cap(s):
        k = sm_kind(s)
        c = 0 if k == 'exp' else 1 if k == 'cvt' else 2
        if s in (B1, B2): c = 0
        return c
    for s in sched: assert len(sched[s]) <= cap(s), (s, sched[s], cap(s))
    fixed0 = {g: list(v) for g, v in sched.items()}
    busy = lambda g: any(d[0] in ('DK', 'DV') for d in fixed0[g])
    by_gap = {}
    for g in range(STEP):
        for k in range(cap(g) - len(sched[g])): by_gap.setdefault(g, []).append((g, k))
    def cands(e, l):
        ts = list(range(e, l + 1))
        if cfg.sched == "late": ts.reverse()
        elif cfg.sched == "mid":
            mid = (e + l) / 2; ts.sort(key=lambda t: abs(t - mid))
        first = [sl for t in ts for sl in by_gap.get(t % STEP, []) if sl[1] == 0 and not busy(sl[0])]
        second = [sl for t in ts for sl in by_gap.get(t % STEP, []) if sl[1] > 0 and not busy(sl[0])]
        last = [sl for t in ts for sl in by_gap.get(t % STEP, []) if busy(sl[0])]
        return first + second, last
    order = sorted(range(len(ops)), key=lambda i: (ops[i][2] - ops[i][1], ops[i][2]))
    match = {}
    full = {i: cands(ops[i][1], ops[i][2]) for i in order}
    cand = {i: full[i][0] for i in order}
    def aug(i, seen):
        for sl in cand[i]:
            if sl not in match: match[sl] = i; return True
        for sl in cand[i]:
            if sl in seen: continue
            seen.add(sl)
            if aug(match[sl], seen): match[sl] = i; return True
        return False
    sys.setrecursionlimit(10000)
    left = [i for i in order if not aug(i, set())]
    cand = {i: full[i][0] + full[i][1] for i in order}
    for i in left:
        if not aug(i, set()): raise Exception(f"cannot place {ops[i]}")
    cfg.nshare = len(left)
    for sl, i in match.items(): sched[sl[0]].append(ops[i][0])
    dl = {tuple(o[0]): o[2] for o in ops}
    for s in sched: sched[s].sort(key=lambda d: (1, 0) if d[0] in ('DK', 'DV') else (0, (dl[d] - s) % STEP))
    return sched

MEM = LGW = None

def mem_ins(step, g, d):
    if d[0] == 'K':
        _, pos, a, j = d
        cs = step + 1 if pos == 0 else step
        buf = cs % 2
        return dsr128(('a', KF + 16 * a + 4 * j), KADDR + 4 * (pos // 2) + j, koff(buf) + 8192 * (pos % 2) + 4096 * a,
                      reg=(('K', buf), cs, False) if cs < 8 else None)
    if d[0] == 'V':
        _, pos, p, hh = d
        cs = step - 1 if (pos == 3 and g <= cfg.B2) else step
        buf = cs % 2
        return dstr(('a', VF + 4 * p + 2 * hh), VADDR + 8 * (pos // 2) + p, buf * 32768 + 8192 * (pos % 2) + hh * 4096,
                    reg=(('V', buf), cs, False) if 0 <= cs < 8 else None)
    if d[0] == 'DK':
        n = d[1]; cs = step + 2 if g > cfg.B1 else step + 1; buf = cs % 2
        return dma(KDMA + n % 4, SK, f"s{sOff0 if n < 4 else sOff1}", 1024 * (n % 4), reg=(('K', buf), cs, True) if cs < 8 else None, flags=cfg.ld)
    if d[0] == 'DV':
        n = d[1]; cs = step + 1; buf = cs % 2
        return dma(VDMA + n % 2, SV, f"s{sOff0 if n < 4 else sOff1}", 1024 * (n % 4), reg=(('V', buf), cs, True) if cs < 8 else None, flags=cfg.ld)

def m0_val_reg(kv, buf, grp): return sM0 + (0 if kv == 'K' else 4) + 2 * buf + grp

def scalar_ops(step, g):
    o = []
    def m0(kv, buf, grp): return S("s_max_u32", "m0", f"s{m0_val_reg(kv, buf, grp)}", f"s{sKill}")
    dk, dv = cfg.dk_slots, cfg.dv_slots
    assert max(dk) < STEP + cfg.B2 and min(dk) > cfg.B1 + 1 and max(dv) < cfg.inc_slot and min(dv) > cfg.B2 + 1
    kbuf = lambda gg: (step if gg > cfg.B1 else step + 1) % 2
    if g == (dk[0] - 1) % STEP: o.append(m0('K', kbuf(g), 0))
    if g == (dk[4] - 1) % STEP: o.append(m0('K', kbuf(g), 1))
    if g == dv[0] - 1: o.append(m0('V', (step + 1) % 2, 0))
    if g == dv[4] - 1: o.append(m0('V', (step + 1) % 2, 1))
    x = cfg.inc_slot
    if g == x + 1: o.append(S("s_add_u32", f"s{sOff0}", f"s{sOff0}", "0x8000"))
    if g == x + 3: o.append(S("s_add_u32", f"s{sOff1}", f"s{sOff1}", "0x8000"))
    if g == x + 5: o.append(scmp("s_cmp_ge_u32", f"s{sOff0}", "0x40000"))
    if g == x + 7: o.append(S("s_cselect_b32", f"s{sKill}", hex(DROP), 0, w_scc=False, r_scc=True))
    return o

def gap_mem(step, g): return [mem_ins(step, g, d) for d in MEM[g] if d[0] not in cfg.drop]

def compute_lgkm_waits():
    seq = []; prod = {}; covered = -1; res = {}
    for t in range(0, 6 * STEP):
        st, sl = divmod(t, STEP)
        nst, nsl = divmod(t + 1, STEP)
        nm = mfma_at(nst, nsl)
        need = max([prod.get(r, -1) for r in nm.x['AB']] + [-1])
        if sl == cfg.B1: need = max([need] + [i for i, (tt, d) in enumerate(seq) if d == 'K'])
        if sl == cfg.B2: need = max([need] + [i for i, (tt, d) in enumerate(seq) if d == 'V'])
        n = None
        if need > covered:
            tgt = need
            for i in range(len(seq) - 1, -1, -1):
                if seq[i][0] <= t - cfg.LAG: tgt = max(tgt, i); break
            n = len(seq) - 1 - tgt
            if n > 15: tgt = len(seq) - 1 - 15; n = 15
            covered = tgt
        res[(st, sl)] = n
        for d in MEM[sl]:
            if d[0] in ('DK', 'DV') or d[0] in cfg.drop: continue
            ins = mem_ins(2 + st % 2, sl, d)
            seq.append((t, d[0]))
            for r in ins.w: prod[r] = len(seq) - 1
    out = {}
    for sl in range(STEP):
        assert len({res[(s, sl)] for s in range(2, 6)}) == 1
        out[sl] = res[(4, sl)]
    return out

def gap(step, g, part='all'):
    head = [mfma_at(step, g)]
    n = LGW[g]
    if g == cfg.B1 or g == cfg.B2:
        head.append(wait(vm=8, lg=n))
        if not cfg.nobar: head.append(barrier())
    elif n is not None: head.append(wait(lg=n))
    head += scalar_ops(step, g)
    rest = gap_mem(step, g) + sm_ops(step, g)
    return head if part == 'head' else rest if part == 'rest' else head + rest

ENTRY = 41
EXIT = 169

def body_iter(st0, last=False):
    o = []
    o += gap(st0, ENTRY, 'rest')
    for s in range(ENTRY + 1, STEP): o += gap(st0, s)
    for s in range(0, EXIT):
        g = gap(st0 + 1, s)
        if s == EXIT - 2:
            g = gap(st0 + 1, s, 'head') + [scmp("s_cmp_eq_u32", f"s{sOff0}", hex(9 * 32768))] + gap(st0 + 1, s, 'rest')
        o += g
    o += gap(st0 + 1, EXIT, 'head') + [branch("s_cbranch_scc1", "L_exit", ['scc'])]
    if last: return o
    o += gap(st0 + 1, EXIT, 'rest')
    for s in range(EXIT + 1, STEP): o += gap(st0 + 1, s)
    for s in range(0, ENTRY): o += gap(st0 + 2, s)
    o += gap(st0 + 2, ENTRY, 'head') + [branch("s_branch", "L_loop")]
    return o

def scale4(src, tmp, pk=False):
    o = []
    for i in range(4): o.append(V("v_lshlrev_b32", f"v{tmp+2*i}", 16, f"v{src+i}"))
    for i in range(4): o.append(V("v_and_b32", f"v{tmp+2*i+1}", f"s{sMask}", f"v{src+i}"))
    if pk:
        for i in range(4): o.append(V("v_pk_mul_f32", f"v[{tmp+2*i}:{tmp+2*i+1}]", f"v[{tmp+2*i}:{tmp+2*i+1}]", f"s[{sC2}:{sC2+1}]"))
    else:
        for i in range(4): o.append(vmul(f"v{tmp+2*i}", f"s{sC}", f"v{tmp+2*i}"))
        for i in range(4): o.append(vmul(f"v{tmp+2*i+1}", f"s{sC}", f"v{tmp+2*i+1}"))
    for i in range(4): o.append(cvtpk(f"v{src+i}", f"v{tmp+2*i}", f"v{tmp+2*i+1}"))
    return o

def rowmax(Sbase, cols, t):
    o = []
    for n, c in enumerate(cols):
        b = Sbase + 8 * c
        o.append(V("v_max3_f32", f"v{t+2*n}", f"v{b}", f"v{b+1}", f"v{b+2}"))
        o.append(V("v_max3_f32", f"v{t+2*n+1}", f"v{b+3}", f"v{b+4}", f"v{b+5}"))
    for n, c in enumerate(cols):
        b = Sbase + 8 * c
        o.append(V("v_max3_f32", f"v{t+2*n}", f"v{t+2*n}", f"v{b+6}", f"v{b+7}"))
    if len(cols) == 1: o.append(nop(0))
    for n, c in enumerate(cols): o.append(V("v_max_f32", f"v{t+2*n}", f"v{t+2*n}", f"v{t+2*n+1}"))
    for sw in (swap16, swap32):
        for n, c in enumerate(cols): o.append(vmov(f"v{t+2*n+1}", f"v{t+2*n}"))
        o.append(nop(0 if len(cols) > 1 else 1))
        for n, c in enumerate(cols): o.append(sw(f"v{t+2*n}", f"v{t+2*n+1}"))
        for n, c in enumerate(cols): o.append(V("v_max_f32", f"v{t+2*n}" if sw is swap16 else f"v{MM+c}", f"v{t+2*n}", f"v{t+2*n+1}"))
    return o

def shift_by_max(Sbase, cols):
    o = []
    for c in cols:
        for a_ in range(2): o.append(mfma16_f32(('v', Sbase + 8 * c + 4 * a_), VQRT, MM + c, ('v', Sbase + 8 * c + 4 * a_)))
    for c in cols: o.append(mfma16_f32(('v', CI_SH if c == 2 else CI_OWN + 4 * c), VQRT, MM + c, 0))
    return o

def dense(ops):
    out = list(ops)
    i = 0
    while i < len(out) - 1:
        if out[i].k == 'trans' and out[i + 1].k == 'valu' and set(out[i].w) & set(out[i + 1].r):
            if i + 2 < len(out) and out[i + 2].k == 'trans': out[i + 1], out[i + 2] = out[i + 2], out[i + 1]; i += 1
            else: out.insert(i + 1, nop(0))
        i += 1
    return out

def stamp(idx, fine=0):
    if not cfg.stamps: return []
    if cfg.fine == 9 and idx != 0: return []
    if cfg.fine != fine and idx not in (0, 8, 9): return []
    return [raw(f"s_memtime s[{60+2*idx}:{61+2*idx}]", 'stampi')]

def prologue():
    o = []
    vmlist = []
    def a(x, tag=None):
        o.append(x)
        if x.k in ('vload', 'dma', 'vstore'): vmlist.append(tag)
    def wait_for(tag):
        last = max(i for i, t in enumerate(vmlist) if t == tag)
        return wait(vm=len(vmlist) - 1 - last)
    a(scmp("s_cmp_ge_u32", "s2", 256)); a(branch("s_cbranch_scc1", "L_end", ['scc']))
    a(raw("s_load_dwordx4 s[36:39], s[0:1], 0", 'smem', [], R('s', 36, 4)))
    a(raw("s_load_dwordx4 s[40:43], s[0:1], 16", 'smem', [], R('s', 40, 4)))
    if cfg.stamps:
        a(raw("s_load_dwordx2 s[58:59], s[0:1], 32", 'smem', [], R('s', 58, 2)))
        o += stamp(0)
        a(raw("s_memrealtime s[82:83]", 'stampi'))
    a(V("v_lshrrev_b32", "v1", 6, "v0"))
    a(V("v_and_b32", "v2", 63, "v0"))
    a(readfirst(f"s{sW}", "v1"))
    a(V("v_lshrrev_b32", "v3", 4, "v2"))
    a(V("v_and_b32", "v4", 15, "v2"))
    a(V("v_lshlrev_b32", f"v{VLIN}", 4, "v2"))
    if cfg.codepf:
        a(raw("s_getpc_b64 s[56:57]", 'salu', [], ['s56', 's57']))
        a(label("L_pc"))
        a(S("s_lshr_b32", f"s{sT}", "s2", 3)); a(S("s_and_b32", f"s{sT}", f"s{sT}", 3)); a(S("s_lshl_b32", f"s{sT}", f"s{sT}", 2))
        a(S("s_add_u32", f"s{sT}", f"s{sT}", f"s{sW}")); a(S("s_min_u32", f"s{sT}", f"s{sT}", cfg.codepf - 1)); a(S("s_lshl_b32", f"s{sT}", f"s{sT}", 10))
        a(raw(f"s_sub_u32 s{sT}, s{sT}, L_pc-{NAME}_kernel", 'salu', [f"s{sT}"], [f"s{sT}", 'scc']))
        a(S("s_ashr_i32", f"s{sT+1}", f"s{sT}", 31))
        a(S("s_add_u32", "s56", "s56", f"s{sT}")); a(S("s_addc_u32", "s57", "s57", f"s{sT+1}", r_scc=True))
        a(vmov("v7", "s57"))
        a(I(f"v_add_co_u32 v6, vcc, s56, v{VLIN}", 'valu', ['s56', f"v{VLIN}"], ['v6', 'vcc']))
        a(nop(1))
        a(I("v_addc_co_u32 v7, vcc, 0, v7, vcc", 'valu', ['v7', 'vcc'], ['v7', 'vcc']))
        a(I("global_load_dwordx4 a[0:3], v[6:7], off", 'vload', ['v6', 'v7'], R('a', 0, 4)), "PF")
    a(S("s_and_b32", f"s{sT}", "s2", 7))
    a(S("s_lshr_b32", f"s{sT+1}", "s2", 3))
    a(S("s_lshr_b32", f"s{sT+2}", "s2", 5))
    a(S("s_lshl_b32", f"s{sW8192}", f"s{sW}", 13))
    a(S("s_lshr_b32", f"s{sH}", f"s{sW}", 1))
    a(S("s_lshl_b32", f"s{sT+3}", f"s{sT}", 5)); a(S("s_add_u32", f"s{sT+3}", f"s{sT+3}", f"s{sT+1}"))
    a(S("s_mul_i32", f"s{sT+3}", f"s{sT+3}", 40960, w_scc=False))
    a(S("s_lshl_b32", f"s{sT+4}", f"s{sT}", 3)); a(S("s_add_u32", f"s{sT+4}", f"s{sT+4}", f"s{sT+2}"))
    a(S("s_lshl_b32", f"s{sT+4}", f"s{sT+4}", 18))
    a(V("v_xor_b32", "v5", "v3", "v4"))
    a(V("v_lshlrev_b32", "v5", 4, "v5"))
    a(V("v_lshl_add_u32", "v7", "v3", 8, "v5"))
    a(V("v_lshl_add_u32", "v6", "v4", 8, "v5"))
    a(V("v_add_u32", f"v{KDMA}", f"s{sW8192}", "v7"))
    for k in range(1, 4): a(V("v_xor_b32", f"v{KDMA+k}", 64 * k, f"v{KDMA}"))
    a(S("s_and_b32", f"s{sQS}", f"s{sW}", 1)); a(S("s_lshl_b32", f"s{sQS}", f"s{sQS}", 12)); a(S("s_add_u32", f"s{sQS}", f"s{sQS}", 32768))
    a(S("s_add_u32", f"s{sQO1}", f"s{sW8192}", 4096))
    a(smov(f"s{sOff0}", 0)); a(smov(f"s{sOff1}", 4096))
    a(S("s_add_u32", "m0", f"s{sW8192}", LDS_K0))
    SA, SB = Sb(0), Sb(1)
    RAWS = SB
    TWS = CI_OWN
    TRS = CI_OWN + 4
    TW = O_SHL
    TR = O_SHL + 4
    TM = P
    for k in range(4): a(V("v_add_u32", f"v{TWS+k}", LDS_V1, f"v{KDMA+k}"))
    a(S("s_add_u32", f"s{sT}", f"s{sW8192}", LDS_V1)); a(V("v_add_u32", f"v{TRS}", f"s{sT}", "v6"))
    for j in range(1, 4): a(V("v_xor_b32", f"v{TRS+j}", 64 * j, f"v{TRS}"))
    a(S("s_lshl_b32", f"s{sT}", f"s{sH}", 14)); a(V("v_add_u32", f"v{KADDR}", f"s{sT}", "v6"))
    for j in range(1, 4): a(V("v_xor_b32", f"v{KADDR+j}", 64 * j, f"v{KADDR}"))
    a(smov(f"s{sC}", hex(SCALE_BITS))); a(smov(f"s{sMask}", "0xffff0000"))
    a(smov(f"s{sC2}", hex(SCALE_BITS))); a(smov(f"s{sC2+1}", hex(SCALE_BITS)))
    for base, n in ((SQ, 40960), (SK, 262144)): a(smov(f"s{base+2}", n)); a(smov(f"s{base+3}", "0x20000"))
    a(wait(lg=0))
    def srd(base, p, off, n):
        a(S("s_add_u32", f"s{base}", f"s{p}", f"s{off}")); a(S("s_addc_u32", f"s{base+1}", f"s{p+1}", 0, r_scc=True))
        a(S("s_and_b32", f"s{base+1}", f"s{base+1}", "0xffff"))
        if base not in (SQ, SK): a(smov(f"s{base+2}", n)); a(smov(f"s{base+3}", "0x20000"))
    o += stamp(1, 1)
    srd(SQ, 36, sT + 3, 40960)
    def qsh(n0, n1):
        for n in range(n0, n1): a(vload(('v', RAWS + 4 * n), 4, VLIN, SQ, f"s{sQS}", 1024 * n, cfg.qld), f"QS{n}")
    qsh(0, cfg.qsfirst)
    srd(SK, 38, sT + 4, 262144)
    for n in range(4): a(dma(KDMA + n, SK, f"s{sOff0}", 1024 * n, reg=(('K', 0), 0, True), flags=cfg.ld), "K0")
    a(S("s_add_u32", "m0", f"s{sW8192}", LDS_K0 + 4096)); a(nop(0))
    for n in range(4): a(dma(KDMA + n, SK, f"s{sOff1}", 1024 * n, reg=(('K', 0), 0, True), flags=cfg.ld), "K0")
    qsh(cfg.qsfirst, 4)
    o += stamp(2, 1)
    def qown(n0, n1):
        for n in range(n0, n1): a(vload(('v', Q_OWN + 4 * n), 4, VLIN, SQ, f"s{sW8192 if n < 4 else sQO1}", 1024 * (n % 4), cfg.qld), f"QO{n}")
    qown(0, cfg.qsplit)
    o += stamp(1); o += stamp(3, 1)
    srd(SV, 40, sT + 4, 262144)
    srd(SO, 42, sT + 3, 40960)
    a(V("v_lshlrev_b32", "v1", 1, "v3")); a(V("v_xor_b32", "v1", "v1", "v4"))
    a(V("v_lshlrev_b32", "v1", 4, "v1")); a(V("v_lshl_add_u32", "v1", "v3", 8, "v1"))
    a(V("v_add_u32", f"v{VDMA}", f"s{sW8192}", "v1")); a(V("v_xor_b32", f"v{VDMA+1}", 128, f"v{VDMA}"))
    for j in range(4): a(V("v_xor_b32", f"v{KADDR+4+j}", 16384, f"v{KADDR+j}"))
    for k in range(4): a(V("v_add_u32", f"v{TW+k}", LDS_X, f"v{KDMA+k}"))
    a(S("s_add_u32", f"s{sT}", f"s{sW8192}", LDS_X)); a(V("v_add_u32", f"v{TR}", f"s{sT}", "v6"))
    for j in range(1, 4): a(V("v_xor_b32", f"v{TR+j}", 64 * j, f"v{TR}"))
    a(V("v_lshrrev_b32", "v1", 2, "v4")); a(V("v_lshl_add_u32", "v1", "v3", 2, "v1"))
    a(V("v_and_b32", "v5", 7, "v1"))
    a(S("s_lshl_b32", f"s{sT}", f"s{sH}", 2)); a(V("v_xor_b32", "v5", f"s{sT}", "v5"))
    a(V("v_lshlrev_b32", "v5", 5, "v5")); a(V("v_lshl_add_u32", "v5", "v1", 8, "v5"))
    a(V("v_and_b32", "v1", 3, "v4")); a(V("v_lshl_add_u32", "v5", "v1", 3, "v5"))
    a(S("s_lshl_b32", f"s{sT}", f"s{sH}", 14)); a(V("v_add_u32", "v5", f"s{sT}", "v5"))
    a(V("v_add_u32", f"v{VADDR}", LDS_V0, "v5"))
    a(V("v_xor_b32", "v5", 16384, "v5")); a(V("v_add_u32", f"v{VADDR+8}", LDS_V0, "v5"))
    for hf in range(2):
        for p in range(1, 8): a(V("v_xor_b32", f"v{VADDR+8*hf+p}", 32 * p, f"v{VADDR+8*hf}"))
    a(S("s_xor_b32", f"s{sT}", f"s{sW}", 2)); a(S("s_lshl_b32", f"s{sT+1}", f"s{sT}", 12)); a(S("s_add_u32", f"s{sT+1}", f"s{sT+1}", LDS_MG))
    a(V("v_add_u32", f"v{MGW}", f"s{sT+1}", f"v{VLIN}"))
    a(S("s_lshl_b32", f"s{sT+1}", f"s{sW}", 12)); a(S("s_add_u32", f"s{sT+1}", f"s{sT+1}", LDS_MG))
    a(V("v_add_u32", f"v{MGR}", f"s{sT+1}", f"v{VLIN}"))
    a(V("v_lshrrev_b32", "v1", 1, f"v{VLIN}"))
    a(S("s_lshl_b32", f"s{sT+1}", f"s{sT}", 9)); a(S("s_add_u32", f"s{sT+1}", f"s{sT+1}", LDS_ML)); a(V("v_add_u32", f"v{MLW}", f"s{sT+1}", "v1"))
    a(S("s_lshl_b32", f"s{sT+1}", f"s{sW}", 9)); a(S("s_add_u32", f"s{sT+1}", f"s{sT+1}", LDS_ML)); a(V("v_add_u32", f"v{MLR}", f"s{sT+1}", "v1"))
    a(S("s_mul_i32", f"s{sT}", f"s{sW}", 8704, w_scc=False))
    a(V("v_lshlrev_b32", "v5", 3, "v3"))
    a(V("v_mul_u32_u24", "v6", 272, "v4")); a(V("v_add_u32", "v6", "v6", "v5")); a(V("v_add_u32", f"v{AW}", f"s{sT}", "v6"))
    a(S("s_lshl_b32", f"s{sT+4}", f"s{sH}", 3)); a(V("v_xor_b32", "v6", f"s{sT+4}", "v4")); a(V("v_lshlrev_b32", "v6", 4, "v6"))
    a(V("v_mul_u32_u24", "v7", 272, "v3")); a(V("v_add_u32", "v6", "v6", "v7")); a(V("v_add_u32", f"v{AR}", f"s{sT}", "v6"))
    a(S("s_add_u32", f"s{sT}", f"s{sW8192}", LDS_V0))
    a(V("v_mul_u32_u24", "v6", 144, "v4")); a(V("v_add_u32", "v6", "v6", "v5")); a(V("v_add_u32", f"v{SW}", f"s{sT}", "v6"))
    a(V("v_lshrrev_b32", "v5", 3, "v2")); a(V("v_and_b32", "v6", 7, "v2")); a(V("v_lshlrev_b32", "v6", 4, "v6"))
    a(V("v_mul_u32_u24", "v7", 144, "v5")); a(V("v_add_u32", "v7", "v7", "v6")); a(V("v_add_u32", f"v{SR}", f"s{sT}", "v7"))
    a(V("v_lshl_add_u32", f"v{SG}", "v5", 8, "v6"))
    a(vmov(f"v{VQRT}", "0xbe800000"))
    a(vmov("v2", "0x3f803f80"))
    Z = TMPS
    for i in range(4): a(vmov(f"v{Z+i}", 0))
    for kv, b0, b1 in (('K', LDS_K0, LDS_K1), ('V', LDS_V0, LDS_V1)):
        for buf, base in ((0, b0), (1, b1)):
            for grp in range(2):
                a(S("s_add_u32", f"s{m0_val_reg(kv, buf, grp)}", f"s{sW8192}", base + grp * 4096))
    a(smov(f"s{sKill}", 0))
    for db in range(4): a(mfma(('v', O_OWN + 16 * db), ('v', Z), ('v', Z), 0))
    for b in (O_SHH, L_OWN): a(mfma(('a', b), ('v', Z), ('v', Z), 0))
    a(nop(7)); a(nop(3))
    for i in range(4): a(accw(f"a{ONES+i}", "v2"))
    o += stamp(2); o += stamp(4, 1)
    qown(cfg.qsplit, 8)
    def vdma(buf, content, tag, only=None):
        for grp in range(2):
            a(S("s_mov_b32", "m0", f"s{m0_val_reg('V', buf, grp)}", w_scc=False)); a(nop(0))
            for n in range(4):
                if only is None or only(4 * grp + n):
                    a(dma(VDMA + n % 2, SV, f"s{sOff0 if grp == 0 else sOff1}", 1024 * n, reg=(('V', buf), content, True), flags=cfg.ld), tag)
    for n in range(4):
        a(wait_for(f"QS{n}"))
        o.extend(scale4(RAWS + 4 * n, TM + 8 * (n % 2), pk=True))
        a(dsw128(TWS + n, ('v', RAWS + 4 * n), 1024 * n, reg=(('QS', 0), 'qs', True)))
    o += stamp(5, 1)
    a(wait_for("K0")); a(wait(lg=0))
    for j in range(4): a(dsr128(('a', Q_SH + 4 * j), TRS + j, 0, reg=(('QS', 0), 'qs', True)))
    a(barrier())
    for aa in range(2):
        for j in range(4): a(dsr128(('a', KF + 16 * aa + 4 * j), KADDR + j, koff(0) + 4096 * aa, reg=(('K', 0), 0, False)))
    o += stamp(6, 1)
    for k in range(16, 24):
        if k < 20: a(wait(lg=7 - (k - 16)))
        if k == 20: a(wait(lg=0))
        a(qk_mfma(0, k, first_c=False))
    o += stamp(3); o += stamp(7, 1)
    def piece(n, pk):
        a(wait_for(f"QO{n}"))
        o.extend(scale4(Q_OWN + 4 * n, TM + 8 * (n % 2), pk=pk))
        a(dsw128(TW + n % 4, ('v', Q_OWN + 4 * n), 1024 * n, reg=(('QO', 0), 'qo', True)))
    piece(0, False)
    o += rowmax(SA, [2], TM)
    a(nop(1))
    o += shift_by_max(SA, [2])
    o += stamp(4)
    if cfg.v0pos == 0: vdma(0, 0, "V0")
    for n in range(1, 8):
        piece(n, n >= 2)
        if n == cfg.v0pos: vdma(0, 0, "V0")
    o += stamp(5)
    a(smov(f"s{sOff0}", 32768)); a(smov(f"s{sOff1}", 32768 + 4096))
    a(wait(lg=0))
    for c in range(2):
        for j in range(4): a(dsr128(('v', Q_OWN + 16 * c + 4 * j), TR + j, 4096 * c, reg=(('QO', 0), 'qo', True)))
    for k in range(16):
        if k < 4: a(wait(lg=7 - k))
        if k == 8: a(wait(lg=0))
        a(qk_mfma(0, k, first_c=False))
    a(mfma(('v', O_SHL), ('v', Z), ('v', Z), 0))
    for grp in range(2):
        a(S("s_mov_b32", "m0", f"s{m0_val_reg('K', 1, grp)}", w_scc=False)); a(nop(0))
        for k in range(4): a(dma(KDMA + k, SK, f"s{sOff0 if grp == 0 else sOff1}", 1024 * k, reg=(('K', 1), 1, True), flags=cfg.ld), "K1")
    o += stamp(6)
    o += rowmax(SA, [0, 1], TMPS + 4)
    a(nop(1))
    o += shift_by_max(SA, [0, 1])
    a(wait_for("V0")); a(barrier())
    def v1_in_prologue(n): return cfg.dv_slots[n] < ENTRY
    pre = []
    for sl in range(0, ENTRY):
        for d in MEM[sl]:
            if d[0] == 'K' or (d[0] == 'V' and d[1] == 0): pre.append(mem_ins(0, sl, d))
    o += pre
    head = []
    for s in range(EX0[0], ENTRY): head += sm_ops(0, s)
    o += dense(head)
    vdma(1, 1, "V1", v1_in_prologue)
    nxt = [n for n in range(8) if not v1_in_prologue(n)]
    if nxt and cfg.dv_slots[0 if nxt[0] < 4 else 4] - 1 < ENTRY:
        a(S("s_mov_b32", "m0", f"s{m0_val_reg('V', 1, 0 if nxt[0] < 4 else 1)}", w_scc=False))
    a(wait(lg=0))
    o += stamp(7)
    if cfg.stamps: a(raw("s_memrealtime s[86:87]", 'stampi'))
    return o

class Seq:
    def __init__(self): self.o = []; self.ds = []; self.done = -1; self.prod = {}
    def wait_idx(self, idx):
        if idx > self.done:
            n = min(15, len(self.ds) - 1 - idx)
            self.o.append(wait(lg=n)); self.done = len(self.ds) - 1 - n
    def wait_op(self, x): self.wait_idx(max(i for i, y in enumerate(self.ds) if y is x))
    def __call__(self, x):
        need = max([self.prod.get(r, -1) for r in x.r] + [-1])
        if x.k not in ('dsr',): need = max([need] + [self.prod.get(r, -1) for r in x.w])
        self.wait_idx(need) if need >= 0 else None
        self.o.append(x)
        if x.k in ('dsr', 'dsw'):
            self.ds.append(x)
            for r in x.w: self.prod[r] = len(self.ds) - 1
        return x

def epilogue():
    q = Seq(); a = q
    st = 7
    SF = cfg.store_flags
    vr = []
    for s, stp in [(s, st) for s in range(EXIT, STEP)] + [(s, st + 1) for s in range(0, cfg.B2 + 1)]:
        for d in MEM[s]:
            if d[0] == 'V' and d[1] == 3: vr.append((d[2], mem_ins(stp, s, d)))
    vr.sort(key=lambda x: x[0]); vr = [x for _, x in vr]
    tail = []
    for s in list(range(EXIT, STEP)) + list(range(0, EX0[0])):
        tail += [x for x in sm_ops(st, s) if (set(x.w) | set(x.r)) & set(R('v', Sb(1), 16))]
    LO, RI = Pb(0), Pb(0) + 2
    ML_, MB = Pb(0) + 4, Pb(0) + 6
    GA = Pb(0) + 8
    RB = Sb(0)
    OT, OT1, STG = (('OT', 0), 'ot', True), (('OT', 1), 'ot', True), (('ST', 0), 'st', True)
    MGR_, MLR_ = (('MG', 0), 'mg', False), (('MG', 0), 'mg', False)
    mm = [ones_mfma(3, 0)] + [pv_mfma(3, p, 0) for p in range(8)] + [ones_mfma(3, 1)] + [pv_mfma(3, p, 1) for p in range(8)]
    def fin(b, rinv_pair, sel, addr, off, reg, pk):
        if not pk: mul = [vmul(f"v{b+i}", f"v{rinv_pair+sel}", f"v{b+i}") for i in range(4)]
        else: mul = [V("v_pk_mul_f32", f"v[{b+i}:{b+i+1}]", f"v[{b+i}:{b+i+1}]", f"v[{rinv_pair}:{rinv_pair+1}]",
                       mods="op_sel:[0,1] op_sel_hi:[1,1]" if sel else "op_sel:[0,0] op_sel_hi:[1,0]") for i in (0, 2)]
        return mul + [cvtpk(f"v{b}", f"v{b}", f"v{b+1}"), cvtpk(f"v{b+1}", f"v{b+2}", f"v{b+3}"), dsw64(addr, ('v', b), off, reg=reg)]
    F = []
    def f(n, *xs):
        for x in xs: F.append((n, x))
    nv = cfg.epi_nv
    for x in vr[:nv]: a(x)
    t = dense(tail); rest = vr[nv:]
    while rest or t:
        f(0, *rest[:2]); rest = rest[2:]
        if t: f(0, t.pop(0))
    mgw = [dsw128(MGW, ('a', O_SHH + 4 * p), 1024 * p, reg=MGR_) for p in range(4)]
    f(0, V("v_sub_f32", f"v{ML_}", 0, f"v{CI_SH}"), accr(f"v{ML_+1}", f"a{L_SH}"))
    mlw = dsw64(MLW, ('v', ML_), 0, reg=MLR_)
    f(0, *mgw); f(0, mlw)
    f(4, accr(f"v{LO}", f"a{L_OWN}"))
    f(0, smov(f"s{sT+2}", hex(cfg.thresh)), vrcp(f"v{RI}", f"v{LO}"))
    f(13, accr(f"v{LO+1}", f"a{L_OWN+4}"))
    k = 0
    for x in stamp(1, 3): a(x)
    for n, m in enumerate(mm):
        if n == 1 and q.done < 0: q.o.append(wait(lg=min(15, len(q.ds))))
        a(m)
        c = 0
        while c < 2 and k < len(F) and F[k][0] <= n:
            x = F[k][1]; a(x); k += 1
            if x.k == 'trans': c += 2
            elif x.k not in ('salu', 'wait'): c += 1
    for x in stamp(6, 3): a(x)
    for _, x in F[k:]: a(x)
    q.wait_op(mlw); a(barrier())
    rb = [a(dsr128(('v', RB + 4 * p), MGR, 1024 * p, reg=MGR_)) for p in range(4)]
    a(dsr64(('v', MB), MLR, 0, reg=MLR_))
    a(vrcp(f"v{RI+1}", f"v{LO+1}")); a(nop(0))
    c0 = [fin(O_OWN + 4 * p, RI, 0, AW, p * 32, OT, True) for p in range(8)]
    c1 = [fin(O_OWN + 32 + 4 * p, RI, 1, AW, p * 32 + 4352, OT1, True) for p in range(8)]
    G = []
    G += [V("v_max_f32", "v1", f"v{ML_}", f"v{MB}"), V("v_sub_f32", "v2", f"v{ML_}", "v1"), V("v_sub_f32", "v3", f"v{MB}", "v1"),
          vexp("v2", "v2"), vexp("v3", "v3"),
          vcmp("v_cmp_nle_f32", "s[54:55]", f"v{ML_+1}", f"s{sT+2}"), vcmp("v_cmp_nle_f32", "s[56:57]", f"v{MB+1}", f"s{sT+2}"),
          vmul("v1", "v2", f"v{ML_+1}"), V("v_fmac_f32", "v1", "v3", f"v{MB+1}", rmw=True),
          raw("s_or_b64 s[54:55], s[54:55], s[56:57]", 'salu', ['s54', 's55', 's56', 's57'], ['s54', 's55', 'scc']),
          vrcp("v1", "v1"),
          vcmp("v_cmp_nle_f32", "s[52:53]", f"v{LO}", f"s{sT+2}"), vcmp("v_cmp_nle_f32", "s[56:57]", f"v{LO+1}", f"s{sT+2}"),
          vmul(f"v{GA}", "v2", "v1"), vmul(f"v{GA+1}", "v3", "v1"),
          raw("s_or_b64 s[52:53], s[52:53], s[56:57]", 'salu', ['s52', 's53', 's56', 's57'], ['s52', 's53', 'scc'])]
    for p in range(8):
        for x in c0[p]: a(x)
        for _ in range(2):
            if G: a(G.pop(0))
    for x in G: a(x)
    lastw = c0[7][-1]
    for x in stamp(7, 3): a(x)
    sc = []
    if cfg.force_slow:
        sc += [raw("s_mov_b64 s[54:55], -1", 'salu', [], ['s54', 's55']), raw("s_mov_b64 s[52:53], -1", 'salu', [], ['s52', 's53'])]
    sc += [smov(f"s{SO2}", f"s{SO}"), smov(f"s{SO2+1}", f"s{SO+1}"), smov(f"s{SO2+3}", "0x20000"),
           scmp("s_cmp_lg_u64", "s[54:55]", 0), S("s_cselect_b32", f"s{SO2+2}", 0, 40960, w_scc=False, r_scc=True),
           S("s_add_u32", f"s{sT+1}", f"s{sW8192}", 4096),
           S("s_lshl_b32", f"s{sT+3}", f"s{sH}", 7), S("s_add_u32", f"s{sT+3}", f"s{sT+3}", f"s{sQS}"), S("s_add_u32", f"s{sT+4}", f"s{sT+3}", 2048)]
    R0 = Sb(1)
    for x in c1[0]: a(x)
    q.wait_op(lastw)
    for n in range(4): a(dsr128(('v', R0 + 4 * n), AR, 1088 * n, reg=OT))
    st0 = [vstore(('v', R0 + 4 * n), 4, VLIN, SO, f"s{sW8192}", 1024 * n, SF) for n in range(4)]
    for p in range(1, 8):
        for x in c1[p]: a(x)
        if st0: a(st0.pop(0))
        for _ in range(2):
            if sc: a(sc.pop(0))
    lastw = c1[7][-1]
    for x in st0: a(x)
    for x in sc: a(x)
    sh = []
    for p in range(4):
        b, r = O_SHL + 4 * p, RB + 4 * p
        x = [V("v_pk_mul_f32", f"v[{b+i}:{b+i+1}]", f"v[{b+i}:{b+i+1}]", f"v[{GA}:{GA+1}]", mods="op_sel:[0,0] op_sel_hi:[1,0]") for i in (0, 2)]
        x += [V("v_pk_fma_f32", f"v[{b+i}:{b+i+1}]", f"v[{r+i}:{r+i+1}]", f"v[{GA}:{GA+1}]", f"v[{b+i}:{b+i+1}]", mods="op_sel:[0,1,0] op_sel_hi:[1,1,1]") for i in (0, 2)]
        x += [cvtpk(f"v{b}", f"v{b}", f"v{b+1}"), cvtpk(f"v{b+1}", f"v{b+2}", f"v{b+3}"), dsw64(SW, ('v', b), p * 32, reg=STG)]
        sh.append(x)
    for x in sh[0] + sh[1]: a(x)
    q.wait_op(lastw)
    R1 = O_OWN
    for n in range(4, 8): a(dsr128(('v', R1 + 4 * (n - 4)), AR, 1088 * n, reg=OT1))
    for x in sh[2] + sh[3]: a(x)
    for n in range(4, 8): a(vstore(('v', R1 + 4 * (n - 4)), 4, VLIN, SO, f"s{sT+1}", 1024 * (n % 4), SF))
    q.wait_op(sh[3][-1])
    for n in range(2): a(dsr128(('v', O_SHL + 4 * n), SR, 1152 * n, reg=STG))
    for n in range(2): a(vstore(('v', O_SHL + 4 * n), 4, SG, SO2, f"s{sT+3+n}", 0, SF))
    for x in stamp(9): a(x)
    a(raw("s_or_b64 s[56:57], s[52:53], s[54:55]", 'salu', ['s52', 's53', 's54', 's55'], ['s56', 's57', 'scc']))
    a(branch("s_cbranch_scc1", "L_slow", ['scc']))
    return q.o

def store_tile_rows(Oreg, rinv, soff):
    o = []
    for db in range(4):
        b = Oreg + 16 * db
        for i in range(16): o.append(vmul(f"v{b+i}", f"v{rinv}", f"v{b+i}"))
        for m in range(8): o.append(cvtpk(f"v{b+m}", f"v{b+2*m}", f"v{b+2*m+1}"))
        for pr in range(2):
            r0 = b + 4 * pr
            o.append(swap32(f"v{r0}", f"v{r0+2}")); o.append(swap32(f"v{r0+1}", f"v{r0+3}"))
        for pr in range(2): o.append(vstore(('v', b + 4 * pr), 4, VQ, SO, soff, db * 64 + pr * 32))
    return o

def slow_path():
    o = []; a = o.append
    Kr, Sr, Vr, Or, Pr = 80, 112, 128, O_OWN, 72
    mreg, lreg = SLM, SLL
    a(label("L_slow"))
    a(wait(vm=0, lg=0))
    a(smov(f"s{SO+2}", 40960))
    a(V("v_bfe_u32", "v1", f"v{VLIN}", 4, 5)); a(V("v_lshrrev_b32", "v2", 9, f"v{VLIN}"))
    a(V("v_lshlrev_b32", f"v{VQ}", 4, "v2")); a(V("v_lshl_add_u32", f"v{VQ}", "v1", 8, f"v{VQ}"))
    a(scmp("s_cmp_lg_u64", "s[52:53]", 0)); a(branch("s_cbranch_scc0", "L_slow_sh", ['scc']))
    a(smov("s33", f"s{sW8192}"))
    a(raw("s_mov_b64 s[52:53], 0", 'salu', [], ['s52', 's53']))
    a(raw("s_mov_b64 s[56:57], -1", 'salu', [], ['s56', 's57']))
    a(branch("s_branch", "L_slow_tile"))
    a(label("L_slow_sh"))
    a(scmp("s_cmp_lg_u64", "s[54:55]", 0)); a(branch("s_cbranch_scc0", "L_end", ['scc']))
    a(scmp("s_cmp_lg_u32", f"s{sH}", 0)); a(branch("s_cbranch_scc1", "L_end", ['scc']))
    a(smov("s33", 32768))
    a(raw("s_mov_b64 s[54:55], 0", 'salu', [], ['s54', 's55']))
    a(S("s_lshl_b32", "s38", f"s{sW}", 4)); a(S("s_lshl_b32", "s56", "0xffff", "s38")); a(smov("s57", "s56"))
    a(label("L_slow_tile"))
    for j in range(8): a(vload(('v', Q_OWN + 4 * j), 4, VQ, SQ, "s33", 32 * j))
    a(wait(vm=0))
    for g in range(8): o.extend(scale4(Q_OWN + 4 * g, 240, pk=False))
    a(vmov(f"v{mreg}", "0xff800000"))
    def qk():
        for j in range(8): a(vload(('v', Kr + 4 * j), 4, VQ, SK, "s38", 32 * j))
        a(wait(vm=0))
        for j in range(8): a(mfma(('v', Sr), ('v', Kr + 4 * j), ('v', Q_OWN + 4 * j), 0 if j == 0 else ('v', Sr)))
        a(nop(15))
    a(smov("s38", 0))
    a(label("L_slow_p1"))
    qk()
    for i in range(16): a(V("v_max_f32", f"v{mreg}", f"v{mreg}", f"v{Sr+i}"))
    a(S("s_add_u32", "s38", "s38", 8192)); a(scmp("s_cmp_lt_u32", "s38", 262144)); a(branch("s_cbranch_scc1", "L_slow_p1", ['scc']))
    a(vmov("v1", f"v{mreg}")); a(nop(1)); a(swap32(f"v{mreg}", "v1")); a(V("v_max_f32", f"v{mreg}", f"v{mreg}", "v1"))
    a(vmov(f"v{lreg}", 0))
    for i in range(64): a(vmov(f"v{Or+i}", 0))
    a(V("v_lshrrev_b32", "v2", 8, f"v{VQ}"))
    a(V("v_bfe_u32", "v3", f"v{VQ}", 4, 1))
    a(V("v_lshlrev_b32", "v2", 1, "v2")); a(V("v_lshl_add_u32", "v2", "v3", 10, "v2"))
    a(smov("s38", 0))
    a(label("L_slow_p2"))
    qk()
    for i in range(16): a(V("v_sub_f32", f"v{Sr+i}", f"v{Sr+i}", f"v{mreg}"))
    for i in range(16): a(vexp(f"v{Sr+i}", f"v{Sr+i}"))
    a(nop(0))
    for i in range(16): a(vadd(f"v{lreg}", f"v{lreg}", f"v{Sr+i}"))
    for m in range(8): a(cvtpk(f"v{Pr+m}", f"v{Sr+2*m}", f"v{Sr+2*m+1}"))
    for ks in range(2):
        a(S("s_add_u32", "s39", "s38", ks * 4096))
        for db in range(4):
            for r in range(4):
                for e in range(2):
                    j = 2 * r + e
                    off = (8 * (j // 4) + j % 4) * 256 + db * 64
                    a(vload(('v', Kr + 8 * db + 2 * r + e), 1, 2, SV, "s39", off, op="buffer_load_ushort"))
        a(wait(vm=0))
        for db in range(4):
            for r in range(4): a(V("v_lshl_or_b32", f"v{Vr+4*db+r}", f"v{Kr+8*db+2*r+1}", 16, f"v{Kr+8*db+2*r}"))
        a(nop(1))
        for db in range(4): a(mfma(('v', Or + 16 * db), ('v', Vr + 4 * db), ('v', Pr + 4 * ks), ('v', Or + 16 * db)))
        a(nop(7))
    a(S("s_add_u32", "s38", "s38", 8192)); a(scmp("s_cmp_lt_u32", "s38", 262144)); a(branch("s_cbranch_scc1", "L_slow_p2", ['scc']))
    a(nop(15))
    a(vmov("v1", f"v{lreg}")); a(nop(1)); a(swap32(f"v{lreg}", "v1")); a(vadd(f"v{lreg}", f"v{lreg}", "v1"))
    a(vrcp("v5", f"v{lreg}")); a(nop(0))
    for x in store_tile_rows(Or, 5, "s33"):
        if x.k == 'vstore':
            a(raw("s_mov_b64 exec, s[56:57]", 'salu', ['s56', 's57'], ['exec'])); a(x); a(raw("s_mov_b64 exec, -1", 'salu', [], ['exec'])); a(nop(1))
        else: a(x)
    a(wait(vm=0))
    a(branch("s_branch", "L_slow_sh"))
    return o

def stamp_out():
    o = []
    if not cfg.stamps: return o
    a = o.append
    a(raw("s_waitcnt vmcnt(0)", 'wait', vm=0)); o += [raw("s_memtime s[80:81]", 'stampi'), raw("s_memrealtime s[84:85]", 'stampi')]
    a(raw("s_waitcnt lgkmcnt(0)", 'wait', lg=0))
    if cfg.stamp_wg >= 0:
        a(scmp("s_cmp_lg_u32", "s2", cfg.stamp_wg)); a(branch("s_cbranch_scc1", "L_end", ['scc']))
        a(scmp("s_cmp_lg_u32", f"s{sW}", 0)); a(branch("s_cbranch_scc1", "L_end", ['scc']))
        a(vmov("v1", 0))
    else:
        a(raw("s_load_dwordx2 s[58:59], s[0:1], 40", 'smem', [], R('s', 58, 2))); a(wait(lg=0))
        a(S("s_lshl_b32", "s33", "s2", 2)); a(S("s_add_u32", "s33", "s33", f"s{sW}")); a(S("s_lshl_b32", "s33", "s33", 6))
        a(vmov("v1", "s33"))
    def put(off, x, y):
        if y is None: a(vmov("v2", x))
        else:
            a(S("s_sub_u32", "s33", x, y)); a(vmov("v2", "s33"))
        a(raw(f"global_store_dword v1, v2, s[58:59] offset:{off}", 'vstore', ['v1', 'v2', 's58', 's59'], [], data=['v2']))
        a(nop(1))
    if cfg.fine != 9:
        for i in range(11): put(4 * i, f"s{60+2*i}", "s60")
    else: put(40, "s80", "s60")
    put(44, "s84", "s82"); put(48, "s86", "s82"); put(52, "s88", "s82"); put(56, "s82", None)
    return o

def build():
    global MEM, LGW
    MEM = build_mem_schedule()
    LGW = compute_lgkm_waits()
    pro = prologue()
    body = body_iter(0)
    epi = epilogue()
    slow = slow_path()
    static = pro + [raw(".p2align 6", 'label'), label("L_loop")] + body + [label("L_exit")] + stamp(8) + \
             ([raw("s_memrealtime s[88:89]", 'stampi')] if cfg.stamps else []) + epi + stamp_out() + \
             [label("L_end"), raw("s_endpgm", 'branch')] + slow
    trace = list(pro)
    for it in range(4):
        b = body_iter(2 * it, last=(it == 3))
        assert [x.t for x in b] == [x.t for x in body[:len(b)]], "loop body is not periodic"
        trace += b
    trace += epi
    errs = verify(trace, "main")
    errs += verify(slow, "slow", check_lds=False)
    return static, errs, (pro, body, epi)

HEADER = """; Kernarg layout for this problem (48 bytes, ptrs only, base s[0:1]):
; One workgroup per (batch, q-head), four waves.  Wave w owns q rows 32w..32w+31 against all keys and the 16 rows
; @launch grid=(256,1,1) block=(256,1,1) lds=163840
.amdgcn_target "amdgcn-amd-amdhsa--gfx950"
.text
.globl {n}_kernel
.p2align 8
.type {n}_kernel,@function
{n}_kernel:
"""
FOOTER = """
.section .rodata,"a"
.p2align 6
.amdhsa_kernel {n}_kernel
  .amdhsa_next_free_vgpr 512
  .amdhsa_next_free_sgpr 96
  .amdhsa_accum_offset 256
  .amdhsa_group_segment_fixed_size 0
  .amdhsa_kernarg_size 48
  .amdhsa_user_sgpr_count 2
  .amdhsa_user_sgpr_kernarg_segment_ptr 1
  .amdhsa_system_sgpr_workgroup_id_x 1
.end_amdhsa_kernel
"""

def main(argv=None):
    ap = argparse.ArgumentParser()
    ap.add_argument("-o", default="cdna_kernels/%s.s" % NAME)
    ap.add_argument("--stamps", action="store_true")
    ap.add_argument("--stamp-wg", type=int, default=0)
    ap.add_argument("--force-slow", action="store_true")
    ap.add_argument("--thresh", default=None)
    ap.add_argument("--store-flags", default="nt")
    ap.add_argument("--ld", default="nt"); ap.add_argument("--qld", default="nt")
    ap.add_argument("--fine", type=int, default=0)
    ap.add_argument("--qsplit", type=int, default=2); ap.add_argument("--qsfirst", type=int, default=4)
    ap.add_argument("--v0pos", type=int, default=1); ap.add_argument("--codepf", type=int, default=12)
    ap.add_argument("--lead", type=int, default=8); ap.add_argument("--lag", type=int, default=6)
    ap.add_argument("--dv", default=None); ap.add_argument("--dk", default=None)
    ap.add_argument("--b1", type=int, default=132); ap.add_argument("--b2", type=int, default=34); ap.add_argument("--inc", type=int, default=80)
    ap.add_argument("--sched", default="early")
    ap.add_argument("--drop", default=""); ap.add_argument("--nobar", action="store_true")
    ap.add_argument("--epi", default="8,6")
    ap.add_argument("--show", action="store_true")
    args = ap.parse_args(argv)
    cfg.stamps = args.stamps; cfg.stamp_wg = args.stamp_wg; cfg.force_slow = args.force_slow; cfg.store_flags = args.store_flags
    cfg.ld = args.ld; cfg.qld = args.qld; cfg.fine = args.fine; cfg.qsplit = args.qsplit; cfg.qsfirst = args.qsfirst
    cfg.v0pos = args.v0pos; cfg.codepf = args.codepf
    cfg.LEAD = args.lead; cfg.LAG = args.lag; cfg.sched = args.sched
    cfg.B1 = args.b1; cfg.B2 = args.b2; cfg.inc_slot = args.inc
    cfg.drop = tuple(x for x in args.drop.split(",") if x); cfg.nobar = args.nobar
    cfg.epi_nv, cfg.epi_ng = [int(x) for x in args.epi.split(",")]
    def pick(lo, n, spacing):
        out = []; g = lo
        while len(out) < n:
            if sm_kind(g) is None and (not out or g - out[-1] >= spacing): out.append(g)
            g += 1
        return tuple(out)
    cfg.dk_slots = tuple(int(x) for x in args.dk.split(",")) if args.dk else (136, 140, 144, 152, 160, 168, 176, 182)
    cfg.dv_slots = tuple(int(x) for x in args.dv.split(",")) if args.dv else pick(cfg.B2 + 2, 8, 4)
    if args.thresh: cfg.thresh = int(args.thresh, 0)
    static, errs, parts = build()
    if args.show:
        for s in range(STEP): print(s, sm_kind(s) or "", LGW[s], MEM[s])
    for e in errs[:40]: print("ERR", e)
    cnt = lambda L: sum(1 for x in L if x.k != 'label')
    print("dk", cfg.dk_slots, "dv", cfg.dv_slots, "sharing", cfg.nshare)
    print("errors:", len(errs), " instructions:", cnt(static), " pro/body/epi:", [cnt(p) for p in parts])
    open(args.o, "w").write(HEADER.format(n=NAME) + text_of(static) + FOOTER.format(n=NAME))

if __name__ == "__main__": main()
```

```python
import sys, argparse, re
from asmlib import *

NAME = "standalone__gqa_softmax__near_ridge"
STEP = 170

class Cfg:
    LEAD = 8; LAG = 6
    thresh = 0x53800000
    stamps = False; stamp_wg = 0; fine = 0
    force_slow = False
    store_flags = "nt"; ld = "nt"; qld = "nt"
    qsplit = 2; v0pos = 1; codepf = 12
    B1 = 140; B2 = 34
    dk_slots = None; dv_slots = None
    inc_slot = 80
    sched = "early"; spread = True; drop = (); nobar = False
    epi_nv = 8; epi_ng = 6
    alldma = False; qfirst = False; v0c = 1
cfg = Cfg()

MGW, MGR, MLW, MLR = 8, 9, 10, 11
KDMA = 12
VDMA = 16
AW, VLIN, AR, SW, SR, SG = 18, 19, 20, 21, 22, 23
KADDR = 24
VADDR = 32
P = 48
S0 = 72
CI_OWN, CI_SH = 120, 128
VQRT = 132
MM = 133
TMPS = 136
Q_OWN = 144
O_OWN = 176
O_SHL = 240
VQ, SLM, SLL = 4, 6, 7
Q_SH, KF, VF, O_SHH, L_OWN, L_SH, ONES = 0, 16, 48, 80, 96, 104, 108
def Sb(b): return S0 + 24 * b
def Pb(b): return P + 12 * b
def osh(p): return ('v', O_SHL + 4 * p) if p < 4 else ('a', O_SHH + 4 * (p - 4))
sW, SQ, SK, SV, SO = 3, 8, 12, 16, 20
SO2 = 4
sW8192, sOff0, sOff1, sC, sMask = 24, 25, 26, 27, 28
sT = 29
sKill = 34
sH = 35
sM0 = 44
sC2 = 52
sQS, sQO1 = 90, 91
SCALE_BITS = 0x3e0293ee
LDS_K1, LDS_K0, LDS_X, LDS_V0, LDS_V1 = 0, 32768, 65536, 98304, 131072
LDS_MG = LDS_X
LDS_ML = LDS_X + 16384
DROP = 0x30000
def koff(buf): return LDS_K0 if buf == 0 else LDS_K1

NCOL = [3, 3, 2, 2]
QK0 = [0, 42, 93, 136]
PV0 = [66, 109, 152, 194]
EX0 = [7, 55, 103, 143]
def qk_mfma(pos, k, first_c=True):
    x, j = divmod(k, 4); a, col = x % 2, x // 2
    D = ('v', Sb(pos % 2) + 4 * x)
    B = ('a', Q_SH + 4 * j) if col == 2 else ('v', Q_OWN + 16 * col + 4 * j)
    C = (('v', CI_SH if col == 2 else CI_OWN + 4 * col) if first_c else 0) if j == 0 else D
    return mfma16(D, ('a', KF + 16 * a + 4 * j), B, C)
def ones_mfma(pos, col):
    Lr = L_SH if col == 2 else L_OWN + 4 * col
    return mfma16(('a', Lr), ('a', ONES), ('v', Pb(pos % 2) + 4 * col), ('a', Lr))
def pv_mfma(pos, p, col):
    O = osh(p) if col == 2 else ('v', O_OWN + 32 * col + 4 * p)
    return mfma16(O, ('a', VF + 4 * p), ('v', Pb(pos % 2) + 4 * col), O)
def pv_block(pos):
    n = NCOL[pos]
    return [pv_mfma(pos, p, col) for p in range(8) for col in range(n)] + [ones_mfma(pos, col) for col in range(n)]

def mfma_at(step, g):
    for pos in range(4):
        if QK0[pos] <= g < QK0[pos] + 8 * NCOL[pos]: return qk_mfma(pos, g - QK0[pos])
        for base in (PV0[pos], PV0[pos] - STEP):
            if base <= g < base + 9 * NCOL[pos]: return pv_block(pos)[g - base]
    raise Exception(g)

def sm_ops(step, g):
    ops = []
    for pos in range(4):
        for gg in (g, g + STEP):
            rel = gg - EX0[pos]; n = 8 * NCOL[pos]; S_ = Sb(pos % 2)
            if 0 <= rel <= 2 * (n - 1) and rel % 2 == 0: ops.append(vexp(f"v{S_+rel//2}", f"v{S_+rel//2}"))
            if 3 <= rel <= 2 * (n - 1) + 1 and rel % 4 == 3:
                m = (rel - 3) // 4
                ops.append(cvtpk(f"v{Pb(pos % 2)+m}", f"v{S_+2*m}", f"v{S_+2*m+1}"))
    return ops
def sm_pos(x):
    return None
def sm_kind(g):
    o = sm_ops(2, g % STEP)
    return 'exp' if any(x.k == 'trans' for x in o) else 'cvt' if o else None

def free_gaps(lo, hi): return [g for g in range(lo, hi) if sm_kind(g) is None]

def build_mem_schedule():
    ops = []
    L = cfg.LEAD; B1, B2 = cfg.B1, cfg.B2
    def add(d, e, l):
        assert e <= l, (d, e, l)
        ops.append([d, e, l])
    for a in range(2):
        for j in range(4):
            o = 4 * a + j
            for pos in range(4):
                prev = (pos - 1) % 4
                pst = QK0[prev] - (STEP if pos == 0 else 0)
                last = pst + (16 if NCOL[prev] == 3 else 8) + o
                use = QK0[pos] + o
                if pos == 0: add(('K', 0, a, j), max(last + STEP, B1 + 1), STEP + use - L)
                elif pos == 3: add(('K', 3, a, j), last, min(use - L, B1 - L))
                else: add(('K', pos, a, j), last, use - L)
    for pos in range(4):
        prev = (pos - 1) % 4
        pst = PV0[prev] - (STEP if pos == 0 else 0)
        for p in range(8):
            last = pst + NCOL[prev] * p + NCOL[prev] - 1
            use = PV0[pos] + NCOL[pos] * p
            e, l = last, use - L
            if pos == 0: e = max(e, B2 + 1)
            if pos == 3: l = min(l, STEP + B2 - L)
            for hh in range(2): add(('V', pos, p, hh), e, l)
    sched = {s: [] for s in range(STEP)}
    for n, sl in enumerate(cfg.dk_slots): sched[sl % STEP].append(('DK', n))
    for n, sl in enumerate(cfg.dv_slots): sched[sl % STEP].append(('DV', n))
    def cap(s):
        k = sm_kind(s)
        c = 0 if k == 'exp' else 1 if k == 'cvt' else 2
        if s in (B1, B2): c = 0
        return c
    for s in sched: assert len(sched[s]) <= cap(s), (s, sched[s], cap(s))
    fixed0 = {g: list(v) for g, v in sched.items()}
    busy = lambda g: any(d[0] in ('DK', 'DV') for d in fixed0[g])
    by_gap = {}
    for g in range(STEP):
        for k in range(cap(g) - len(sched[g])): by_gap.setdefault(g, []).append((g, k))
    def cands(e, l):
        ts = list(range(e, l + 1))
        if cfg.sched == "late": ts.reverse()
        elif cfg.sched == "mid":
            mid = (e + l) / 2; ts.sort(key=lambda t: abs(t - mid))
        first = [sl for t in ts for sl in by_gap.get(t % STEP, []) if sl[1] == 0 and not busy(sl[0])]
        second = [sl for t in ts for sl in by_gap.get(t % STEP, []) if sl[1] > 0 and not busy(sl[0])]
        last = [sl for t in ts for sl in by_gap.get(t % STEP, []) if busy(sl[0])]
        return first + second, last
    order = sorted(range(len(ops)), key=lambda i: (ops[i][2] - ops[i][1], ops[i][2]))
    match = {}
    full = {i: cands(ops[i][1], ops[i][2]) for i in order}
    cand = {i: full[i][0] for i in order}
    def aug(i, seen):
        for sl in cand[i]:
            if sl not in match: match[sl] = i; return True
        for sl in cand[i]:
            if sl in seen: continue
            seen.add(sl)
            if aug(match[sl], seen): match[sl] = i; return True
        return False
    sys.setrecursionlimit(10000)
    left = [i for i in order if not aug(i, set())]
    cand = {i: full[i][0] + full[i][1] for i in order}
    for i in left:
        if not aug(i, set()): raise Exception(f"cannot place {ops[i]}")
    cfg.nshare = len(left)
    for sl, i in match.items(): sched[sl[0]].append(ops[i][0])
    dl = {tuple(o[0]): o[2] for o in ops}
    for s in sched: sched[s].sort(key=lambda d: (1, 0) if d[0] in ('DK', 'DV') else (0, (dl[d] - s) % STEP))
    return sched

MEM = LGW = None

def mem_ins(step, g, d):
    if d[0] == 'K':
        _, pos, a, j = d
        cs = step + 1 if pos == 0 else step
        buf = cs % 2
        return dsr128(('a', KF + 16 * a + 4 * j), KADDR + 4 * (pos // 2) + j, koff(buf) + 8192 * (pos % 2) + 4096 * a,
                      reg=(('K', buf), cs, False) if cs < 8 else None)
    if d[0] == 'V':
        _, pos, p, hh = d
        cs = step - 1 if (pos == 3 and g < PV0[3] - STEP + 20 and g <= cfg.B2) else step
        buf = cs % 2
        return dstr(('a', VF + 4 * p + 2 * hh), VADDR + 8 * (pos // 2) + p, buf * 32768 + 8192 * (pos % 2) + hh * 4096,
                    reg=(('V', buf), cs, False) if 0 <= cs < 8 else None)
    if d[0] == 'DK':
        n = d[1]; cs = step + 2 if g > cfg.B1 else step + 1; buf = cs % 2
        return dma(KDMA + n % 4, SK, f"s{sOff0 if n < 4 else sOff1}", 1024 * (n % 4), reg=(('K', buf), cs, True) if cs < 8 else None, flags=cfg.ld)
    if d[0] == 'DV':
        n = d[1]; cs = step + 1; buf = cs % 2
        return dma(VDMA + n % 2, SV, f"s{sOff0 if n < 4 else sOff1}", 1024 * (n % 4), reg=(('V', buf), cs, True) if cs < 8 else None, flags=cfg.ld)

def m0_val_reg(kv, buf, grp): return sM0 + (0 if kv == 'K' else 4) + 2 * buf + grp

def scalar_ops(step, g):
    o = []
    def m0(kv, buf, grp): return S("s_max_u32", "m0", f"s{m0_val_reg(kv, buf, grp)}", f"s{sKill}")
    dk, dv = cfg.dk_slots, cfg.dv_slots
    assert max(dk) < STEP + cfg.B2 and min(dk) > cfg.B1 + 1 and max(dv) < cfg.inc_slot and min(dv) > cfg.B2 + 1
    kbuf = lambda gg: (step if gg > cfg.B1 else step + 1) % 2
    if g == (dk[0] - 1) % STEP: o.append(m0('K', kbuf(g), 0))
    if g == (dk[4] - 1) % STEP: o.append(m0('K', kbuf(g), 1))
    if g == dv[0] - 1: o.append(m0('V', (step + 1) % 2, 0))
    if g == dv[4] - 1: o.append(m0('V', (step + 1) % 2, 1))
    x = cfg.inc_slot
    if g == x + 1: o.append(S("s_add_u32", f"s{sOff0}", f"s{sOff0}", "0x8000"))
    if g == x + 3: o.append(S("s_add_u32", f"s{sOff1}", f"s{sOff1}", "0x8000"))
    if g == x + 5: o.append(scmp("s_cmp_ge_u32", f"s{sOff0}", "0x40000"))
    if g == x + 7: o.append(S("s_cselect_b32", f"s{sKill}", hex(DROP), 0, w_scc=False, r_scc=True))
    return o

def gap_mem(step, g): return [mem_ins(step, g, d) for d in MEM[g] if d[0] not in cfg.drop]

def compute_lgkm_waits():
    seq = []; prod = {}; covered = -1; res = {}
    for t in range(0, 6 * STEP):
        st, sl = divmod(t, STEP)
        nst, nsl = divmod(t + 1, STEP)
        nm = mfma_at(nst, nsl)
        need = max([prod.get(r, -1) for r in nm.x['AB']] + [-1])
        if sl == cfg.B1: need = max([need] + [i for i, (tt, d) in enumerate(seq) if d == 'K'])
        if sl == cfg.B2: need = max([need] + [i for i, (tt, d) in enumerate(seq) if d == 'V'])
        n = None
        if need > covered:
            tgt = need
            for i in range(len(seq) - 1, -1, -1):
                if seq[i][0] <= t - cfg.LAG: tgt = max(tgt, i); break
            n = len(seq) - 1 - tgt
            if n > 15: tgt = len(seq) - 1 - 15; n = 15
            covered = tgt
        res[(st, sl)] = n
        for d in MEM[sl]:
            if d[0] in ('DK', 'DV') or d[0] in cfg.drop: continue
            ins = mem_ins(2 + st % 2, sl, d)
            seq.append((t, d[0]))
            for r in ins.w: prod[r] = len(seq) - 1
    out = {}
    for sl in range(STEP):
        assert len({res[(s, sl)] for s in range(2, 6)}) == 1
        out[sl] = res[(4, sl)]
    return out

def gap(step, g, part='all'):
    head = [mfma_at(step, g)]
    n = LGW[g]
    if g == cfg.B1 or g == cfg.B2:
        head.append(wait(vm=8, lg=n))
        if not cfg.nobar: head.append(barrier())
    elif n is not None: head.append(wait(lg=n))
    head += scalar_ops(step, g)
    rest = gap_mem(step, g) + sm_ops(step, g)
    return head if part == 'head' else rest if part == 'rest' else head + rest

ENTRY = 41
EXIT = 169

def body_iter(st0, last=False):
    o = []
    o += gap(st0, ENTRY, 'rest')
    for s in range(ENTRY + 1, STEP): o += gap(st0, s)
    for s in range(0, EXIT):
        g = gap(st0 + 1, s)
        if s == EXIT - 2:
            g = gap(st0 + 1, s, 'head') + [scmp("s_cmp_eq_u32", f"s{sOff0}", hex(9 * 32768))] + gap(st0 + 1, s, 'rest')
        o += g
    o += gap(st0 + 1, EXIT, 'head') + [branch("s_cbranch_scc1", "L_exit", ['scc'])]
    if last: return o
    o += gap(st0 + 1, EXIT, 'rest')
    for s in range(EXIT + 1, STEP): o += gap(st0 + 1, s)
    for s in range(0, ENTRY): o += gap(st0 + 2, s)
    o += gap(st0 + 2, ENTRY, 'head') + [branch("s_branch", "L_loop")]
    return o

def scale4(src, tmp, pk=False):
    o = []
    for i in range(4): o.append(V("v_lshlrev_b32", f"v{tmp+2*i}", 16, f"v{src+i}"))
    for i in range(4): o.append(V("v_and_b32", f"v{tmp+2*i+1}", f"s{sMask}", f"v{src+i}"))
    if pk:
        for i in range(4): o.append(V("v_pk_mul_f32", f"v[{tmp+2*i}:{tmp+2*i+1}]", f"v[{tmp+2*i}:{tmp+2*i+1}]", f"s[{sC2}:{sC2+1}]"))
    else:
        for i in range(4): o.append(vmul(f"v{tmp+2*i}", f"s{sC}", f"v{tmp+2*i}"))
        for i in range(4): o.append(vmul(f"v{tmp+2*i+1}", f"s{sC}", f"v{tmp+2*i+1}"))
    for i in range(4): o.append(cvtpk(f"v{src+i}", f"v{tmp+2*i}", f"v{tmp+2*i+1}"))
    return o

def rowmax(Sbase, cols, t):
    o = []
    for n, c in enumerate(cols):
        b = Sbase + 8 * c
        o.append(V("v_max3_f32", f"v{t+2*n}", f"v{b}", f"v{b+1}", f"v{b+2}"))
        o.append(V("v_max3_f32", f"v{t+2*n+1}", f"v{b+3}", f"v{b+4}", f"v{b+5}"))
    for n, c in enumerate(cols):
        b = Sbase + 8 * c
        o.append(V("v_max3_f32", f"v{t+2*n}", f"v{t+2*n}", f"v{b+6}", f"v{b+7}"))
    if len(cols) == 1: o.append(nop(0))
    for n, c in enumerate(cols): o.append(V("v_max_f32", f"v{t+2*n}", f"v{t+2*n}", f"v{t+2*n+1}"))
    for sw in (swap16, swap32):
        for n, c in enumerate(cols): o.append(vmov(f"v{t+2*n+1}", f"v{t+2*n}"))
        o.append(nop(0 if len(cols) > 1 else 1))
        for n, c in enumerate(cols): o.append(sw(f"v{t+2*n}", f"v{t+2*n+1}"))
        for n, c in enumerate(cols): o.append(V("v_max_f32", f"v{t+2*n}" if sw is swap16 else f"v{MM+c}", f"v{t+2*n}", f"v{t+2*n+1}"))
    return o

def shift_by_max(Sbase, cols):
    o = []
    for c in cols:
        for a_ in range(2): o.append(mfma16_f32(('v', Sbase + 8 * c + 4 * a_), VQRT, MM + c, ('v', Sbase + 8 * c + 4 * a_)))
    for c in cols: o.append(mfma16_f32(('v', CI_SH if c == 2 else CI_OWN + 4 * c), VQRT, MM + c, 0))
    return o

def dense(ops):
    out = list(ops)
    i = 0
    while i < len(out) - 1:
        if out[i].k == 'trans' and out[i + 1].k == 'valu' and set(out[i].w) & set(out[i + 1].r):
            if i + 2 < len(out) and out[i + 2].k == 'trans': out[i + 1], out[i + 2] = out[i + 2], out[i + 1]; i += 1
            else: out.insert(i + 1, nop(0))
        i += 1
    return out

def stamp(idx, fine=0):
    if not cfg.stamps: return []
    if cfg.fine == 9 and idx != 0: return []
    if cfg.fine != fine and idx not in (0, 8, 9): return []
    return [raw(f"s_memtime s[{60+2*idx}:{61+2*idx}]", 'stampi')]

def prologue():
    o = []
    vmlist = []
    def a(x, tag=None):
        o.append(x)
        if x.k in ('vload', 'dma', 'vstore'): vmlist.append(tag)
    def wait_for(tag):
        last = max(i for i, t in enumerate(vmlist) if t == tag)
        return wait(vm=len(vmlist) - 1 - last)
    a(scmp("s_cmp_ge_u32", "s2", 256)); a(branch("s_cbranch_scc1", "L_end", ['scc']))
    a(raw("s_load_dwordx4 s[36:39], s[0:1], 0", 'smem', [], R('s', 36, 4)))
    a(raw("s_load_dwordx4 s[40:43], s[0:1], 16", 'smem', [], R('s', 40, 4)))
    if cfg.stamps:
        a(raw("s_load_dwordx2 s[58:59], s[0:1], 32", 'smem', [], R('s', 58, 2)))
        o += stamp(0)
        a(raw("s_memrealtime s[82:83]", 'stampi'))
    a(V("v_lshrrev_b32", "v1", 6, "v0"))
    a(V("v_and_b32", "v2", 63, "v0"))
    a(readfirst(f"s{sW}", "v1"))
    a(V("v_lshrrev_b32", "v3", 4, "v2"))
    a(V("v_and_b32", "v4", 15, "v2"))
    a(V("v_lshlrev_b32", f"v{VLIN}", 4, "v2"))
    if cfg.codepf:
        a(raw("s_getpc_b64 s[56:57]", 'salu', [], ['s56', 's57']))
        a(label("L_pc"))
        a(S("s_lshr_b32", f"s{sT}", "s2", 3)); a(S("s_and_b32", f"s{sT}", f"s{sT}", 3)); a(S("s_lshl_b32", f"s{sT}", f"s{sT}", 2))
        a(S("s_add_u32", f"s{sT}", f"s{sT}", f"s{sW}")); a(S("s_min_u32", f"s{sT}", f"s{sT}", cfg.codepf - 1)); a(S("s_lshl_b32", f"s{sT}", f"s{sT}", 10))
        a(raw(f"s_sub_u32 s{sT}, s{sT}, L_pc-{NAME}_kernel", 'salu', [f"s{sT}"], [f"s{sT}", 'scc']))
        a(S("s_ashr_i32", f"s{sT+1}", f"s{sT}", 31))
        a(S("s_add_u32", "s56", "s56", f"s{sT}")); a(S("s_addc_u32", "s57", "s57", f"s{sT+1}", r_scc=True))
        a(vmov("v7", "s57"))
        a(I(f"v_add_co_u32 v6, vcc, s56, v{VLIN}", 'valu', ['s56', f"v{VLIN}"], ['v6', 'vcc']))
        a(nop(1))
        a(I("v_addc_co_u32 v7, vcc, 0, v7, vcc", 'valu', ['v7', 'vcc'], ['v7', 'vcc']))
        a(I("global_load_dwordx4 a[0:3], v[6:7], off", 'vload', ['v6', 'v7'], R('a', 0, 4)), "PF")
    a(S("s_and_b32", f"s{sT}", "s2", 7))
    a(S("s_lshr_b32", f"s{sT+1}", "s2", 3))
    a(S("s_lshr_b32", f"s{sT+2}", "s2", 5))
    a(S("s_lshl_b32", f"s{sW8192}", f"s{sW}", 13))
    a(S("s_lshr_b32", f"s{sH}", f"s{sW}", 1))
    a(S("s_lshl_b32", f"s{sT+3}", f"s{sT}", 5)); a(S("s_add_u32", f"s{sT+3}", f"s{sT+3}", f"s{sT+1}"))
    a(S("s_mul_i32", f"s{sT+3}", f"s{sT+3}", 40960, w_scc=False))
    a(S("s_lshl_b32", f"s{sT+4}", f"s{sT}", 3)); a(S("s_add_u32", f"s{sT+4}", f"s{sT+4}", f"s{sT+2}"))
    a(S("s_lshl_b32", f"s{sT+4}", f"s{sT+4}", 18))
    a(V("v_xor_b32", "v5", "v3", "v4"))
    a(V("v_lshlrev_b32", "v5", 4, "v5"))
    a(V("v_lshl_add_u32", "v7", "v3", 8, "v5"))
    a(V("v_lshl_add_u32", "v6", "v4", 8, "v5"))
    a(V("v_add_u32", f"v{KDMA}", f"s{sW8192}", "v7"))
    for k in range(1, 4): a(V("v_xor_b32", f"v{KDMA+k}", 64 * k, f"v{KDMA}"))
    a(S("s_and_b32", f"s{sQS}", f"s{sW}", 1)); a(S("s_lshl_b32", f"s{sQS}", f"s{sQS}", 12)); a(S("s_add_u32", f"s{sQS}", f"s{sQS}", 32768))
    a(S("s_add_u32", f"s{sQO1}", f"s{sW8192}", 4096))
    a(smov(f"s{sOff0}", 0)); a(smov(f"s{sOff1}", 4096))
    SA, SB = Sb(0), Sb(1)
    RAWS = SB
    TWS = CI_OWN
    TRS = CI_OWN + 4
    TW = O_SHL
    TR = O_SHL + 4
    TM = P
    for k in range(4): a(V("v_add_u32", f"v{TWS+k}", LDS_V1, f"v{KDMA+k}"))
    a(S("s_add_u32", f"s{sT}", f"s{sW8192}", LDS_V1)); a(V("v_add_u32", f"v{TRS}", f"s{sT}", "v6"))
    for j in range(1, 4): a(V("v_xor_b32", f"v{TRS+j}", 64 * j, f"v{TRS}"))
    a(S("s_lshl_b32", f"s{sT}", f"s{sH}", 14)); a(V("v_add_u32", f"v{KADDR}", f"s{sT}", "v6"))
    for j in range(1, 4): a(V("v_xor_b32", f"v{KADDR+j}", 64 * j, f"v{KADDR}"))
    if cfg.alldma:
        for k in range(4): a(V("v_xor_b32", f"v{TMPS+4+k}", 64 * k, "v7"))
        a(smov("s92", 0)); a(smov("s93", 4096))
    a(smov(f"s{sC}", hex(SCALE_BITS))); a(smov(f"s{sMask}", "0xffff0000"))
    a(smov(f"s{sC2}", hex(SCALE_BITS))); a(smov(f"s{sC2+1}", hex(SCALE_BITS)))
    for base, n in ((SQ, 40960), (SK, 262144)): a(smov(f"s{base+2}", n)); a(smov(f"s{base+3}", "0x20000"))
    a(wait(lg=0))
    def srd(base, p, off, n):
        a(S("s_add_u32", f"s{base}", f"s{p}", f"s{off}")); a(S("s_addc_u32", f"s{base+1}", f"s{p+1}", 0, r_scc=True))
        a(S("s_and_b32", f"s{base+1}", f"s{base+1}", "0xffff"))
        if base not in (SQ, SK): a(smov(f"s{base+2}", n)); a(smov(f"s{base+3}", "0x20000"))
    o += stamp(1, 1)
    srd(SQ, 36, sT + 3, 40960)
    QD = TMPS + 4
    def qsh(n0, n1):
        for n in range(n0, n1):
            if cfg.alldma: a(dma(QD + n, SQ, f"s{sQS}", 1024 * n, reg=(('QS', 0), 'qs', True), flags=cfg.qld), f"QS{n}")
            else: a(vload(('v', RAWS + 4 * n), 4, VLIN, SQ, f"s{sQS}", 1024 * n, cfg.qld), f"QS{n}")
    def qown(n0, n1):
        for n in range(n0, n1):
            if cfg.alldma:
                if n == n0 or n == 4: a(S("s_add_u32", "m0", f"s{sW8192}", LDS_X + (4096 if n >= 4 else 0))); a(nop(0))
                a(dma(KDMA + n % 4, SQ, f"s{92 if n < 4 else 93}", 1024 * (n % 4), reg=(('QO', n // 4), 'qo', True), flags=cfg.qld), f"QO{n}")
            else: a(vload(('v', Q_OWN + 4 * n), 4, VLIN, SQ, f"s{sW8192 if n < 4 else sQO1}", 1024 * (n % 4), cfg.qld), f"QO{n}")
    def k0dma(n0=0, n1=8):
        for n in range(n0, n1):
            if n == n0 or n == 4: a(S("s_add_u32", "m0", f"s{sW8192}", LDS_K0 + (4096 if n >= 4 else 0))); a(nop(0))
            a(dma(KDMA + n % 4, SK, f"s{92 if n < 4 else 93}" if cfg.alldma else f"s{sOff0 if n < 4 else sOff1}", 1024 * (n % 4), reg=(('K', 0), 0, True), flags=cfg.ld), "K0")
    if cfg.alldma:
        a(S("s_add_u32", "m0", f"s{sW8192}", LDS_V1)); a(nop(0))
        qsh(0, 4)
    else: qsh(0, cfg.qsfirst)
    if cfg.qfirst:
        qown(0, cfg.qsplit)
        srd(SK, 38, sT + 4, 262144)
    else:
        srd(SK, 38, sT + 4, 262144)
        k0dma()
        if not cfg.alldma: qsh(cfg.qsfirst, 4)
        o += stamp(2, 1)
        qown(0, cfg.qsplit)
    o += stamp(1); o += stamp(3, 1)
    srd(SV, 40, sT + 4, 262144)
    srd(SO, 42, sT + 3, 40960)
    a(V("v_lshlrev_b32", "v1", 1, "v3")); a(V("v_xor_b32", "v1", "v1", "v4"))
    a(V("v_lshlrev_b32", "v1", 4, "v1")); a(V("v_lshl_add_u32", "v1", "v3", 8, "v1"))
    a(V("v_add_u32", f"v{VDMA}", f"s{sW8192}", "v1")); a(V("v_xor_b32", f"v{VDMA+1}", 128, f"v{VDMA}"))
    for j in range(4): a(V("v_xor_b32", f"v{KADDR+4+j}", 16384, f"v{KADDR+j}"))
    for k in range(4): a(V("v_add_u32", f"v{TW+k}", LDS_X, f"v{KDMA+k}"))
    a(S("s_add_u32", f"s{sT}", f"s{sW8192}", LDS_X)); a(V("v_add_u32", f"v{TR}", f"s{sT}", "v6"))
    for j in range(1, 4): a(V("v_xor_b32", f"v{TR+j}", 64 * j, f"v{TR}"))
    a(V("v_lshrrev_b32", "v1", 2, "v4")); a(V("v_lshl_add_u32", "v1", "v3", 2, "v1"))
    a(V("v_and_b32", "v5", 7, "v1"))
    a(S("s_lshl_b32", f"s{sT}", f"s{sH}", 2)); a(V("v_xor_b32", "v5", f"s{sT}", "v5"))
    a(V("v_lshlrev_b32", "v5", 5, "v5")); a(V("v_lshl_add_u32", "v5", "v1", 8, "v5"))
    a(V("v_and_b32", "v1", 3, "v4")); a(V("v_lshl_add_u32", "v5", "v1", 3, "v5"))
    a(S("s_lshl_b32", f"s{sT}", f"s{sH}", 14)); a(V("v_add_u32", "v5", f"s{sT}", "v5"))
    a(V("v_add_u32", f"v{VADDR}", LDS_V0, "v5"))
    a(V("v_xor_b32", "v5", 16384, "v5")); a(V("v_add_u32", f"v{VADDR+8}", LDS_V0, "v5"))
    for hf in range(2):
        for p in range(1, 8): a(V("v_xor_b32", f"v{VADDR+8*hf+p}", 32 * p, f"v{VADDR+8*hf}"))
    a(S("s_xor_b32", f"s{sT}", f"s{sW}", 2)); a(S("s_lshl_b32", f"s{sT+1}", f"s{sT}", 12)); a(S("s_add_u32", f"s{sT+1}", f"s{sT+1}", LDS_MG))
    a(V("v_add_u32", f"v{MGW}", f"s{sT+1}", f"v{VLIN}"))
    a(S("s_lshl_b32", f"s{sT+1}", f"s{sW}", 12)); a(S("s_add_u32", f"s{sT+1}", f"s{sT+1}", LDS_MG))
    a(V("v_add_u32", f"v{MGR}", f"s{sT+1}", f"v{VLIN}"))
    a(V("v_lshrrev_b32", "v1", 1, f"v{VLIN}"))
    a(S("s_lshl_b32", f"s{sT+1}", f"s{sT}", 9)); a(S("s_add_u32", f"s{sT+1}", f"s{sT+1}", LDS_ML)); a(V("v_add_u32", f"v{MLW}", f"s{sT+1}", "v1"))
    a(S("s_lshl_b32", f"s{sT+1}", f"s{sW}", 9)); a(S("s_add_u32", f"s{sT+1}", f"s{sT+1}", LDS_ML)); a(V("v_add_u32", f"v{MLR}", f"s{sT+1}", "v1"))
    a(S("s_mul_i32", f"s{sT}", f"s{sW}", 8704, w_scc=False))
    a(V("v_lshlrev_b32", "v5", 3, "v3"))
    a(V("v_mul_u32_u24", "v6", 272, "v4")); a(V("v_add_u32", "v6", "v6", "v5")); a(V("v_add_u32", f"v{AW}", f"s{sT}", "v6"))
    a(S("s_lshl_b32", f"s{sT+4}", f"s{sH}", 3)); a(V("v_xor_b32", "v6", f"s{sT+4}", "v4")); a(V("v_lshlrev_b32", "v6", 4, "v6"))
    a(V("v_mul_u32_u24", "v7", 272, "v3")); a(V("v_add_u32", "v6", "v6", "v7")); a(V("v_add_u32", f"v{AR}", f"s{sT}", "v6"))
    a(S("s_add_u32", f"s{sT}", f"s{sW8192}", LDS_V0))
    a(V("v_mul_u32_u24", "v6", 144, "v4")); a(V("v_add_u32", "v6", "v6", "v5")); a(V("v_add_u32", f"v{SW}", f"s{sT}", "v6"))
    a(V("v_lshrrev_b32", "v5", 3, "v2")); a(V("v_and_b32", "v6", 7, "v2")); a(V("v_lshlrev_b32", "v6", 4, "v6"))
    a(V("v_mul_u32_u24", "v7", 144, "v5")); a(V("v_add_u32", "v7", "v7", "v6")); a(V("v_add_u32", f"v{SR}", f"s{sT}", "v7"))
    a(V("v_lshl_add_u32", f"v{SG}", "v5", 8, "v6"))
    a(vmov(f"v{VQRT}", "0xbe800000"))
    a(vmov("v2", "0x3f803f80"))
    Z = TMPS
    for i in range(4): a(vmov(f"v{Z+i}", 0))
    for kv, b0, b1 in (('K', LDS_K0, LDS_K1), ('V', LDS_V0, LDS_V1)):
        for buf, base in ((0, b0), (1, b1)):
            for grp in range(2):
                a(S("s_add_u32", f"s{m0_val_reg(kv, buf, grp)}", f"s{sW8192}", base + grp * 4096))
    a(smov(f"s{sKill}", 0))
    for db in range(4): a(mfma(('v', O_OWN + 16 * db), ('v', Z), ('v', Z), 0))
    for b in (O_SHH, L_OWN): a(mfma(('a', b), ('v', Z), ('v', Z), 0))
    a(nop(7)); a(nop(3))
    for i in range(4): a(accw(f"a{ONES+i}", "v2"))
    o += stamp(2); o += stamp(4, 1)
    qown(cfg.qsplit, 8)
    if cfg.qfirst: k0dma()
    def vdma(buf, content, tag, only=None):
        for grp in range(2):
            a(S("s_mov_b32", "m0", f"s{m0_val_reg('V', buf, grp)}", w_scc=False)); a(nop(0))
            for n in range(4):
                if only is None or only(4 * grp + n):
                    a(dma(VDMA + n % 2, SV, f"s{sOff0 if grp == 0 else sOff1}", 1024 * n, reg=(('V', buf), content, True), flags=cfg.ld), tag)
    if cfg.qfirst:
        a(wait_for("QS3"))
        for j in range(4): a(dsr128(('v', RAWS + 4 * j), TRS + j, 0, reg=(('QS', 0), 'qs', True)))
        for j in range(4):
            a(wait(lg=3 - j))
            o.extend(scale4(RAWS + 4 * j, TM + 8 * (j % 2), pk=True))
            for i in range(4): a(accw(f"a{Q_SH+4*j+i}", f"v{RAWS+4*j+i}"))
        o.extend(stamp(1, 4))
        for c in range(2):
            a(wait_for(f"QO{4*c+3}"))
            for j in range(4): a(dsr128(('v', Q_OWN + 16 * c + 4 * j), TR + j, 4096 * c, reg=(('QO', c), 'qo', True)))
            if c == cfg.v0c: vdma(0, 0, "V0")
            for j in range(4):
                a(wait(lg=3 - j))
                o.extend(scale4(Q_OWN + 16 * c + 4 * j, TM + 8 * (j % 2), pk=True))
            o.extend(stamp(2 + c, 4))
        if cfg.v0c == 2: vdma(0, 0, "V0")
        a(wait_for("K0")); a(barrier())
        o.extend(stamp(4, 4))
        for aa in range(2):
            for j in range(4): a(dsr128(('a', KF + 16 * aa + 4 * j), KADDR + j, koff(0) + 4096 * aa, reg=(('K', 0), 0, False)))
        a(smov(f"s{sOff0}", 32768)); a(smov(f"s{sOff1}", 32768 + 4096))
        a(mfma(('v', O_SHL), ('v', Z), ('v', Z), 0))
        rm = [rowmax(SA, [c], TMPS + 4 if c != 1 else 0) for c in range(3)]
        for k in range(24):
            if k < 8: a(wait(lg=7 - k))
            a(qk_mfma(0, k, first_c=False))
            if 14 <= k < 23: o += rm[0][2 * (k - 14):2 * (k - 14) + 2]
        o += rm[0][18:]
        o.extend(stamp(5, 4))
        a(nop(0))
        o += shift_by_max(SA, [0])
        o += rm[1]
        for grp in range(2):
            a(S("s_mov_b32", "m0", f"s{m0_val_reg('K', 1, grp)}", w_scc=False)); a(nop(0))
            for k in range(4): a(dma(KDMA + k, SK, f"s{sOff0 if grp == 0 else sOff1}", 1024 * k, reg=(('K', 1), 1, True), flags=cfg.ld), "K1")
        o += shift_by_max(SA, [1])
        o += rm[2]
        a(nop(1))
        o += shift_by_max(SA, [2])
        headops = []
        for s_ in range(EX0[0], ENTRY): headops += sm_ops(0, s_)
        preK, preV = [], []
        for sl in range(0, ENTRY):
            for d in MEM[sl]:
                if d[0] == 'K': preK.append(mem_ins(0, sl, d))
                elif d[0] == 'V' and d[1] == 0: preV.append(mem_ins(0, sl, d))
        o += preK
        o.extend(stamp(6, 4))
        h = dense(headops)
        o += h[:-3]; a(nop(4)); o += h[-3:]
        o.extend(stamp(7, 4))
        a(wait_for("V0")); a(barrier())
        o += preV
        vdma(1, 1, "V1", lambda n: cfg.dv_slots[n] < ENTRY)
        nxt = [n for n in range(8) if not cfg.dv_slots[n] < ENTRY]
        if nxt and cfg.dv_slots[0 if nxt[0] < 4 else 4] - 1 < ENTRY:
            a(S("s_mov_b32", "m0", f"s{m0_val_reg('V', 1, 0 if nxt[0] < 4 else 1)}", w_scc=False))
        a(wait(lg=0))
        if cfg.stamps: a(raw("s_memrealtime s[86:87]", 'stampi'))
        return o
    if not cfg.alldma:
        for n in range(4):
            a(wait_for(f"QS{n}"))
            o.extend(scale4(RAWS + 4 * n, TM + 8 * (n % 2), pk=True))
            a(dsw128(TWS + n, ('v', RAWS + 4 * n), 1024 * n, reg=(('QS', 0), 'qs', True)))
        o += stamp(5, 1)
        a(wait_for("K0")); a(wait(lg=0))
        for j in range(4): a(dsr128(('a', Q_SH + 4 * j), TRS + j, 0, reg=(('QS', 0), 'qs', True)))
        a(barrier())
    else:
        a(wait_for("QS3"))
        for j in range(4): a(dsr128(('v', RAWS + 4 * j), TRS + j, 0, reg=(('QS', 0), 'qs', True)))
        for j in range(4):
            a(wait(lg=3 - j))
            o.extend(scale4(RAWS + 4 * j, TM + 8 * (j % 2), pk=True))
            for i in range(4): a(accw(f"a{Q_SH+4*j+i}", f"v{RAWS+4*j+i}"))
        o += stamp(5, 1)
        a(wait_for("K0")); a(barrier())
    for aa in range(2):
        for j in range(4): a(dsr128(('a', KF + 16 * aa + 4 * j), KADDR + j, koff(0) + 4096 * aa, reg=(('K', 0), 0, False)))
    o += stamp(6, 1)
    for k in range(16, 24):
        if k < 20: a(wait(lg=7 - (k - 16)))
        if k == 20: a(wait(lg=0))
        a(qk_mfma(0, k, first_c=False))
    o += stamp(3); o += stamp(7, 1)
    def k1dma():
        for grp in range(2):
            a(S("s_mov_b32", "m0", f"s{m0_val_reg('K', 1, grp)}", w_scc=False)); a(nop(0))
            for k in range(4): a(dma(KDMA + k, SK, f"s{sOff0 if grp == 0 else sOff1}", 1024 * k, reg=(('K', 1), 1, True), flags=cfg.ld), "K1")
    if not cfg.alldma:
        def piece(n, pk):
            a(wait_for(f"QO{n}"))
            o.extend(scale4(Q_OWN + 4 * n, TM + 8 * (n % 2), pk=pk))
            a(dsw128(TW + n % 4, ('v', Q_OWN + 4 * n), 1024 * n, reg=(('QO', 0), 'qo', True)))
        piece(0, False)
        o += rowmax(SA, [2], TM)
        a(nop(1))
        o += shift_by_max(SA, [2])
        o += stamp(4)
        if cfg.v0pos == 0: vdma(0, 0, "V0")
        for n in range(1, 8):
            piece(n, n >= 2)
            if n == cfg.v0pos: vdma(0, 0, "V0")
        o += stamp(5)
        a(smov(f"s{sOff0}", 32768)); a(smov(f"s{sOff1}", 32768 + 4096))
        a(wait(lg=0))
        for c in range(2):
            for j in range(4): a(dsr128(('v', Q_OWN + 16 * c + 4 * j), TR + j, 4096 * c, reg=(('QO', 0), 'qo', True)))
        for k in range(16):
            if k < 4: a(wait(lg=7 - k))
            if k == 8: a(wait(lg=0))
            a(qk_mfma(0, k, first_c=False))
        a(mfma(('v', O_SHL), ('v', Z), ('v', Z), 0))
        k1dma()
    else:
        vdma(0, 0, "V0")
        a(nop(3))
        o += rowmax(SA, [2], TM)
        a(nop(1))
        o += shift_by_max(SA, [2])
        o += stamp(4)
        a(smov(f"s{sOff0}", 32768)); a(smov(f"s{sOff1}", 32768 + 4096))
        headops = []
        for s_ in range(EX0[0], ENTRY): headops += sm_ops(0, s_)
        def touches(x, lo, hi): return bool((set(x.w) | set(x.r)) & set(R('v', SA + lo, hi - lo)))
        h0 = dense([x for x in headops if touches(x, 0, 8)])
        h1 = dense([x for x in headops if not touches(x, 0, 8)])
        preK, preV = [], []
        for sl in range(0, ENTRY):
            for d in MEM[sl]:
                if d[0] == 'K': preK.append(mem_ins(0, sl, d))
                elif d[0] == 'V' and d[1] == 0: preV.append(mem_ins(0, sl, d))
        for c in range(2):
            o.extend(stamp(1 + 3 * c, 4))
            a(wait_for(f"QO{4*c+3}"))
            o.extend(stamp(2 + 3 * c, 4))
            for j in range(4): a(dsr128(('v', Q_OWN + 16 * c + 4 * j), TR + j, 4096 * c, reg=(('QO', c), 'qo', True)))
            if c == 1: k1dma()
            for j in range(4):
                a(wait(lg=3 - j))
                o.extend(scale4(Q_OWN + 16 * c + 4 * j, (TM + 8 * (j % 2)) if c == 0 else Pb(1), pk=True))
            a(nop(1))
            for k in range(8 * c, 8 * c + 8): a(qk_mfma(0, k, first_c=False))
            o.extend(stamp(3 + 3 * c, 4))
            if c == 0:
                a(nop(7))
            else:
                a(mfma(('v', O_SHL), ('v', Z), ('v', Z), 0))
                o += preK
            o += rowmax(SA, [c], TMPS + 4)
            a(nop(1))
            o += shift_by_max(SA, [c])
            a(nop(7)); a(nop(1))
            o += h0 if c == 0 else h1
            if c == 0: o += stamp(5)
        o += stamp(6); o.extend(stamp(7, 4))
        a(wait_for("V0")); a(barrier())
        o += preV
        vdma(1, 1, "V1", lambda n: cfg.dv_slots[n] < ENTRY)
        nxt = [n for n in range(8) if not cfg.dv_slots[n] < ENTRY]
        if nxt and cfg.dv_slots[0 if nxt[0] < 4 else 4] - 1 < ENTRY:
            a(S("s_mov_b32", "m0", f"s{m0_val_reg('V', 1, 0 if nxt[0] < 4 else 1)}", w_scc=False))
        a(wait(lg=0))
        if cfg.fine != 4: o += stamp(7)
        if cfg.stamps: a(raw("s_memrealtime s[86:87]", 'stampi'))
        return o
    o += stamp(6)
    o += rowmax(SA, [0, 1], TMPS + 4)
    a(nop(1))
    o += shift_by_max(SA, [0, 1])
    if cfg.B2 < ENTRY: a(wait_for("V0")); a(barrier())
    else: a(nop(7))
    def v1_in_prologue(n): return cfg.dv_slots[n] < ENTRY
    pre = []
    for sl in range(0, ENTRY):
        for d in MEM[sl]:
            if d[0] == 'K' or (d[0] == 'V' and d[1] == 0): pre.append(mem_ins(0, sl, d))
    o += pre
    head = []
    for s in range(EX0[0], ENTRY): head += sm_ops(0, s)
    o += dense(head)
    vdma(1, 1, "V1", v1_in_prologue)
    nxt = [n for n in range(8) if not v1_in_prologue(n)]
    if nxt and cfg.dv_slots[0 if nxt[0] < 4 else 4] - 1 < ENTRY:
        a(S("s_mov_b32", "m0", f"s{m0_val_reg('V', 1, 0 if nxt[0] < 4 else 1)}", w_scc=False))
    a(wait(lg=0))
    o += stamp(7)
    if cfg.stamps: a(raw("s_memrealtime s[86:87]", 'stampi'))
    return o

class Seq:
    def __init__(self): self.o = []; self.ds = []; self.done = -1; self.prod = {}
    def wait_idx(self, idx):
        if idx > self.done:
            n = min(15, len(self.ds) - 1 - idx)
            self.o.append(wait(lg=n)); self.done = len(self.ds) - 1 - n
    def wait_op(self, x): self.wait_idx(max(i for i, y in enumerate(self.ds) if y is x))
    def __call__(self, x):
        need = max([self.prod.get(r, -1) for r in x.r] + [-1])
        if x.k not in ('dsr',): need = max([need] + [self.prod.get(r, -1) for r in x.w])
        self.wait_idx(need) if need >= 0 else None
        self.o.append(x)
        if x.k in ('dsr', 'dsw'):
            self.ds.append(x)
            for r in x.w: self.prod[r] = len(self.ds) - 1
        return x

def epilogue():
    q = Seq(); a = q
    st = 7
    SF = cfg.store_flags
    vr = []
    for s, stp in [(s, st) for s in range(EXIT, STEP)] + [(s, st + 1) for s in range(0, cfg.B2 + 1)]:
        for d in MEM[s]:
            if d[0] == 'V' and d[1] == 3: vr.append((d[2], mem_ins(stp, s, d)))
    vr.sort(key=lambda x: x[0]); vr = [x for _, x in vr]
    tail = []
    for s in list(range(EXIT, STEP)) + list(range(0, EX0[0])):
        tail += [x for x in sm_ops(st, s) if (set(x.w) | set(x.r)) & set(R('v', Sb(1), 16))]
    LO, RI = Pb(0), Pb(0) + 2
    ML_, MB = Pb(0) + 4, Pb(0) + 6
    GA = Pb(0) + 8
    RB = Sb(0)
    OT, OT1, STG = (('OT', 0), 'ot', True), (('OT', 1), 'ot', True), (('ST', 0), 'st', True)
    MGR_, MLR_ = (('MG', 0), 'mg', False), (('MG', 0), 'mg', False)
    mm = [ones_mfma(3, 0)] + [pv_mfma(3, p, 0) for p in range(8)] + [ones_mfma(3, 1)] + [pv_mfma(3, p, 1) for p in range(8)]
    def fin(b, rinv_pair, sel, addr, off, reg, pk):
        if not pk: mul = [vmul(f"v{b+i}", f"v{rinv_pair+sel}", f"v{b+i}") for i in range(4)]
        else: mul = [V("v_pk_mul_f32", f"v[{b+i}:{b+i+1}]", f"v[{b+i}:{b+i+1}]", f"v[{rinv_pair}:{rinv_pair+1}]",
                       mods="op_sel:[0,1] op_sel_hi:[1,1]" if sel else "op_sel:[0,0] op_sel_hi:[1,0]") for i in (0, 2)]
        return mul + [cvtpk(f"v{b}", f"v{b}", f"v{b+1}"), cvtpk(f"v{b+1}", f"v{b+2}", f"v{b+3}"), dsw64(addr, ('v', b), off, reg=reg)]
    F = []
    def f(n, *xs):
        for x in xs: F.append((n, x))
    nv = cfg.epi_nv
    for x in vr[:nv]: a(x)
    t = dense(tail); rest = vr[nv:]
    while rest or t:
        f(0, *rest[:2]); rest = rest[2:]
        if t: f(0, t.pop(0))
    mgw = [dsw128(MGW, ('a', O_SHH + 4 * p), 1024 * p, reg=MGR_) for p in range(4)]
    f(0, V("v_sub_f32", f"v{ML_}", 0, f"v{CI_SH}"), accr(f"v{ML_+1}", f"a{L_SH}"))
    mlw = dsw64(MLW, ('v', ML_), 0, reg=MLR_)
    f(0, *mgw); f(0, mlw)
    f(4, accr(f"v{LO}", f"a{L_OWN}"))
    f(0, smov(f"s{sT+2}", hex(cfg.thresh)), vrcp(f"v{RI}", f"v{LO}"))
    f(13, accr(f"v{LO+1}", f"a{L_OWN+4}"))
    k = 0
    for x in stamp(1, 3): a(x)
    for n, m in enumerate(mm):
        if n == 1 and q.done < 0: q.o.append(wait(lg=min(15, len(q.ds))))
        a(m)
        c = 0
        while c < 2 and k < len(F) and F[k][0] <= n:
            x = F[k][1]; a(x); k += 1
            if x.k == 'trans': c += 2
            elif x.k not in ('salu', 'wait'): c += 1
    for x in stamp(6, 3): a(x)
    for _, x in F[k:]: a(x)
    q.wait_op(mlw); a(barrier())
    rb = [a(dsr128(('v', RB + 4 * p), MGR, 1024 * p, reg=MGR_)) for p in range(4)]
    a(dsr64(('v', MB), MLR, 0, reg=MLR_))
    a(vrcp(f"v{RI+1}", f"v{LO+1}")); a(nop(0))
    c0 = [fin(O_OWN + 4 * p, RI, 0, AW, p * 32, OT, True) for p in range(8)]
    c1 = [fin(O_OWN + 32 + 4 * p, RI, 1, AW, p * 32 + 4352, OT1, True) for p in range(8)]
    G = []
    G += [V("v_max_f32", "v1", f"v{ML_}", f"v{MB}"), V("v_sub_f32", "v2", f"v{ML_}", "v1"), V("v_sub_f32", "v3", f"v{MB}", "v1"),
          vexp("v2", "v2"), vexp("v3", "v3"),
          vcmp("v_cmp_nle_f32", "s[54:55]", f"v{ML_+1}", f"s{sT+2}"), vcmp("v_cmp_nle_f32", "s[56:57]", f"v{MB+1}", f"s{sT+2}"),
          vmul("v1", "v2", f"v{ML_+1}"), V("v_fmac_f32", "v1", "v3", f"v{MB+1}", rmw=True),
          raw("s_or_b64 s[54:55], s[54:55], s[56:57]", 'salu', ['s54', 's55', 's56', 's57'], ['s54', 's55', 'scc']),
          vrcp("v1", "v1"),
          vcmp("v_cmp_nle_f32", "s[52:53]", f"v{LO}", f"s{sT+2}"), vcmp("v_cmp_nle_f32", "s[56:57]", f"v{LO+1}", f"s{sT+2}"),
          vmul(f"v{GA}", "v2", "v1"), vmul(f"v{GA+1}", "v3", "v1"),
          raw("s_or_b64 s[52:53], s[52:53], s[56:57]", 'salu', ['s52', 's53', 's56', 's57'], ['s52', 's53', 'scc'])]
    for p in range(8):
        for x in c0[p]: a(x)
        for _ in range(2):
            if G: a(G.pop(0))
    for x in G: a(x)
    lastw = c0[7][-1]
    for x in stamp(7, 3): a(x)
    sc = []
    if cfg.force_slow:
        sc += [raw("s_mov_b64 s[54:55], -1", 'salu', [], ['s54', 's55']), raw("s_mov_b64 s[52:53], -1", 'salu', [], ['s52', 's53'])]
    sc += [smov(f"s{SO2}", f"s{SO}"), smov(f"s{SO2+1}", f"s{SO+1}"), smov(f"s{SO2+3}", "0x20000"),
           scmp("s_cmp_lg_u64", "s[54:55]", 0), S("s_cselect_b32", f"s{SO2+2}", 0, 40960, w_scc=False, r_scc=True),
           S("s_add_u32", f"s{sT+1}", f"s{sW8192}", 4096),
           S("s_lshl_b32", f"s{sT+3}", f"s{sH}", 7), S("s_add_u32", f"s{sT+3}", f"s{sT+3}", f"s{sQS}"), S("s_add_u32", f"s{sT+4}", f"s{sT+3}", 2048)]
    R0 = Sb(1)
    for x in c1[0]: a(x)
    q.wait_op(lastw)
    for n in range(4): a(dsr128(('v', R0 + 4 * n), AR, 1088 * n, reg=OT))
    st0 = [vstore(('v', R0 + 4 * n), 4, VLIN, SO, f"s{sW8192}", 1024 * n, SF) for n in range(4)]
    for p in range(1, 8):
        for x in c1[p]: a(x)
        if st0: a(st0.pop(0))
        for _ in range(2):
            if sc: a(sc.pop(0))
    lastw = c1[7][-1]
    for x in st0: a(x)
    for x in sc: a(x)
    sh = []
    for p in range(4):
        b, r = O_SHL + 4 * p, RB + 4 * p
        x = [V("v_pk_mul_f32", f"v[{b+i}:{b+i+1}]", f"v[{b+i}:{b+i+1}]", f"v[{GA}:{GA+1}]", mods="op_sel:[0,0] op_sel_hi:[1,0]") for i in (0, 2)]
        x += [V("v_pk_fma_f32", f"v[{b+i}:{b+i+1}]", f"v[{r+i}:{r+i+1}]", f"v[{GA}:{GA+1}]", f"v[{b+i}:{b+i+1}]", mods="op_sel:[0,1,0] op_sel_hi:[1,1,1]") for i in (0, 2)]
        x += [cvtpk(f"v{b}", f"v{b}", f"v{b+1}"), cvtpk(f"v{b+1}", f"v{b+2}", f"v{b+3}"), dsw64(SW, ('v', b), p * 32, reg=STG)]
        sh.append(x)
    for x in sh[0] + sh[1]: a(x)
    q.wait_op(lastw)
    R1 = O_OWN
    for n in range(4, 8): a(dsr128(('v', R1 + 4 * (n - 4)), AR, 1088 * n, reg=OT1))
    for x in sh[2] + sh[3]: a(x)
    for n in range(4, 8): a(vstore(('v', R1 + 4 * (n - 4)), 4, VLIN, SO, f"s{sT+1}", 1024 * (n % 4), SF))
    q.wait_op(sh[3][-1])
    for n in range(2): a(dsr128(('v', O_SHL + 4 * n), SR, 1152 * n, reg=STG))
    for n in range(2): a(vstore(('v', O_SHL + 4 * n), 4, SG, SO2, f"s{sT+3+n}", 0, SF))
    for x in stamp(9): a(x)
    a(raw("s_or_b64 s[56:57], s[52:53], s[54:55]", 'salu', ['s52', 's53', 's54', 's55'], ['s56', 's57', 'scc']))
    a(branch("s_cbranch_scc1", "L_slow", ['scc']))
    return q.o

def store_tile_rows(Oreg, rinv, soff):
    o = []
    for db in range(4):
        b = Oreg + 16 * db
        for i in range(16): o.append(vmul(f"v{b+i}", f"v{rinv}", f"v{b+i}"))
        for m in range(8): o.append(cvtpk(f"v{b+m}", f"v{b+2*m}", f"v{b+2*m+1}"))
        for pr in range(2):
            r0 = b + 4 * pr
            o.append(swap32(f"v{r0}", f"v{r0+2}")); o.append(swap32(f"v{r0+1}", f"v{r0+3}"))
        for pr in range(2): o.append(vstore(('v', b + 4 * pr), 4, VQ, SO, soff, db * 64 + pr * 32))
    return o

def slow_path():
    o = []; a = o.append
    Kr, Sr, Vr, Or, Pr = 80, 112, 128, O_OWN, 72
    mreg, lreg = SLM, SLL
    a(label("L_slow"))
    a(wait(vm=0, lg=0))
    a(smov(f"s{SO+2}", 40960))
    a(V("v_bfe_u32", "v1", f"v{VLIN}", 4, 5)); a(V("v_lshrrev_b32", "v2", 9, f"v{VLIN}"))
    a(V("v_lshlrev_b32", f"v{VQ}", 4, "v2")); a(V("v_lshl_add_u32", f"v{VQ}", "v1", 8, f"v{VQ}"))
    a(scmp("s_cmp_lg_u64", "s[52:53]", 0)); a(branch("s_cbranch_scc0", "L_slow_sh", ['scc']))
    a(smov("s33", f"s{sW8192}"))
    a(raw("s_mov_b64 s[52:53], 0", 'salu', [], ['s52', 's53']))
    a(raw("s_mov_b64 s[56:57], -1", 'salu', [], ['s56', 's57']))
    a(branch("s_branch", "L_slow_tile"))
    a(label("L_slow_sh"))
    a(scmp("s_cmp_lg_u64", "s[54:55]", 0)); a(branch("s_cbranch_scc0", "L_end", ['scc']))
    a(scmp("s_cmp_lg_u32", f"s{sH}", 0)); a(branch("s_cbranch_scc1", "L_end", ['scc']))
    a(smov("s33", 32768))
    a(raw("s_mov_b64 s[54:55], 0", 'salu', [], ['s54', 's55']))
    a(S("s_lshl_b32", "s38", f"s{sW}", 4)); a(S("s_lshl_b32", "s56", "0xffff", "s38")); a(smov("s57", "s56"))
    a(label("L_slow_tile"))
    for j in range(8): a(vload(('v', Q_OWN + 4 * j), 4, VQ, SQ, "s33", 32 * j))
    a(wait(vm=0))
    for g in range(8): o.extend(scale4(Q_OWN + 4 * g, 240, pk=False))
    a(vmov(f"v{mreg}", "0xff800000"))
    def qk():
        for j in range(8): a(vload(('v', Kr + 4 * j), 4, VQ, SK, "s38", 32 * j))
        a(wait(vm=0))
        for j in range(8): a(mfma(('v', Sr), ('v', Kr + 4 * j), ('v', Q_OWN + 4 * j), 0 if j == 0 else ('v', Sr)))
        a(nop(15))
    a(smov("s38", 0))
    a(label("L_slow_p1"))
    qk()
    for i in range(16): a(V("v_max_f32", f"v{mreg}", f"v{mreg}", f"v{Sr+i}"))
    a(S("s_add_u32", "s38", "s38", 8192)); a(scmp("s_cmp_lt_u32", "s38", 262144)); a(branch("s_cbranch_scc1", "L_slow_p1", ['scc']))
    a(vmov("v1", f"v{mreg}")); a(nop(1)); a(swap32(f"v{mreg}", "v1")); a(V("v_max_f32", f"v{mreg}", f"v{mreg}", "v1"))
    a(vmov(f"v{lreg}", 0))
    for i in range(64): a(vmov(f"v{Or+i}", 0))
    a(V("v_lshrrev_b32", "v2", 8, f"v{VQ}"))
    a(V("v_bfe_u32", "v3", f"v{VQ}", 4, 1))
    a(V("v_lshlrev_b32", "v2", 1, "v2")); a(V("v_lshl_add_u32", "v2", "v3", 10, "v2"))
    a(smov("s38", 0))
    a(label("L_slow_p2"))
    qk()
    for i in range(16): a(V("v_sub_f32", f"v{Sr+i}", f"v{Sr+i}", f"v{mreg}"))
    for i in range(16): a(vexp(f"v{Sr+i}", f"v{Sr+i}"))
    a(nop(0))
    for i in range(16): a(vadd(f"v{lreg}", f"v{lreg}", f"v{Sr+i}"))
    for m in range(8): a(cvtpk(f"v{Pr+m}", f"v{Sr+2*m}", f"v{Sr+2*m+1}"))
    for ks in range(2):
        a(S("s_add_u32", "s39", "s38", ks * 4096))
        for db in range(4):
            for r in range(4):
                for e in range(2):
                    j = 2 * r + e
                    off = (8 * (j // 4) + j % 4) * 256 + db * 64
                    a(vload(('v', Kr + 8 * db + 2 * r + e), 1, 2, SV, "s39", off, op="buffer_load_ushort"))
        a(wait(vm=0))
        for db in range(4):
            for r in range(4): a(V("v_lshl_or_b32", f"v{Vr+4*db+r}", f"v{Kr+8*db+2*r+1}", 16, f"v{Kr+8*db+2*r}"))
        a(nop(1))
        for db in range(4): a(mfma(('v', Or + 16 * db), ('v', Vr + 4 * db), ('v', Pr + 4 * ks), ('v', Or + 16 * db)))
        a(nop(7))
    a(S("s_add_u32", "s38", "s38", 8192)); a(scmp("s_cmp_lt_u32", "s38", 262144)); a(branch("s_cbranch_scc1", "L_slow_p2", ['scc']))
    a(nop(15))
    a(vmov("v1", f"v{lreg}")); a(nop(1)); a(swap32(f"v{lreg}", "v1")); a(vadd(f"v{lreg}", f"v{lreg}", "v1"))
    a(vrcp("v5", f"v{lreg}")); a(nop(0))
    for x in store_tile_rows(Or, 5, "s33"):
        if x.k == 'vstore':
            a(raw("s_mov_b64 exec, s[56:57]", 'salu', ['s56', 's57'], ['exec'])); a(x); a(raw("s_mov_b64 exec, -1", 'salu', [], ['exec'])); a(nop(1))
        else: a(x)
    a(wait(vm=0))
    a(branch("s_branch", "L_slow_sh"))
    return o

def stamp_out():
    o = []
    if not cfg.stamps: return o
    a = o.append
    a(raw("s_waitcnt vmcnt(0)", 'wait', vm=0)); o += [raw("s_memtime s[80:81]", 'stampi'), raw("s_memrealtime s[84:85]", 'stampi')]
    a(raw("s_waitcnt lgkmcnt(0)", 'wait', lg=0))
    if cfg.stamp_wg >= 0:
        a(scmp("s_cmp_lg_u32", "s2", cfg.stamp_wg)); a(branch("s_cbranch_scc1", "L_end", ['scc']))
        a(scmp("s_cmp_lg_u32", f"s{sW}", 0)); a(branch("s_cbranch_scc1", "L_end", ['scc']))
        a(vmov("v1", 0))
    else:
        a(raw("s_load_dwordx2 s[58:59], s[0:1], 40", 'smem', [], R('s', 58, 2))); a(wait(lg=0))
        a(S("s_lshl_b32", "s33", "s2", 2)); a(S("s_add_u32", "s33", "s33", f"s{sW}")); a(S("s_lshl_b32", "s33", "s33", 6))
        a(vmov("v1", "s33"))
    def put(off, x, y):
        if y is None: a(vmov("v2", x))
        else:
            a(S("s_sub_u32", "s33", x, y)); a(vmov("v2", "s33"))
        a(raw(f"global_store_dword v1, v2, s[58:59] offset:{off}", 'vstore', ['v1', 'v2', 's58', 's59'], [], data=['v2']))
        a(nop(1))
    if cfg.fine != 9:
        for i in range(11): put(4 * i, f"s{60+2*i}", "s60")
    else: put(40, "s80", "s60")
    put(44, "s84", "s82"); put(48, "s86", "s82"); put(52, "s88", "s82"); put(56, "s82", None)
    return o

def build():
    global MEM, LGW
    MEM = build_mem_schedule()
    LGW = compute_lgkm_waits()
    pro = prologue()
    body = body_iter(0)
    epi = epilogue()
    slow = slow_path()
    static = pro + [raw(".p2align 6", 'label'), label("L_loop")] + body + [label("L_exit")] + stamp(8) + \
             ([raw("s_memrealtime s[88:89]", 'stampi')] if cfg.stamps else []) + epi + stamp_out() + \
             [label("L_end"), raw("s_endpgm", 'branch')] + slow
    trace = list(pro)
    for it in range(4):
        b = body_iter(2 * it, last=(it == 3))
        assert [x.t for x in b] == [x.t for x in body[:len(b)]], "loop body is not periodic"
        trace += b
    trace += epi
    errs = verify(trace, "main")
    errs += verify(slow, "slow", check_lds=False)
    return static, errs, (pro, body, epi)

HEADER = """; Kernarg layout for this problem (48 bytes, ptrs only, base s[0:1]):
; One workgroup per (batch, q-head), four waves.  Wave w owns q rows 32w..32w+31 against all keys and the 16 rows
; @launch grid=(256,1,1) block=(256,1,1) lds=163840
.amdgcn_target "amdgcn-amd-amdhsa--gfx950"
.text
.globl {n}_kernel
.p2align 8
.type {n}_kernel,@function
{n}_kernel:
"""
FOOTER = """
.section .rodata,"a"
.p2align 6
.amdhsa_kernel {n}_kernel
  .amdhsa_next_free_vgpr 512
  .amdhsa_next_free_sgpr 96
  .amdhsa_accum_offset 256
  .amdhsa_group_segment_fixed_size 0
  .amdhsa_kernarg_size 48
  .amdhsa_user_sgpr_count 2
  .amdhsa_user_sgpr_kernarg_segment_ptr 1
  .amdhsa_system_sgpr_workgroup_id_x 1
.end_amdhsa_kernel
"""

def main(argv=None):
    ap = argparse.ArgumentParser()
    ap.add_argument("-o", default="cdna_kernels/%s.s" % NAME)
    ap.add_argument("--stamps", action="store_true")
    ap.add_argument("--stamp-wg", type=int, default=0)
    ap.add_argument("--force-slow", action="store_true")
    ap.add_argument("--thresh", default=None)
    ap.add_argument("--store-flags", default="nt")
    ap.add_argument("--ld", default="nt"); ap.add_argument("--qld", default="nt")
    ap.add_argument("--fine", type=int, default=0)
    ap.add_argument("--qsplit", type=int, default=2); ap.add_argument("--qsfirst", type=int, default=4)
    ap.add_argument("--v0pos", type=int, default=1); ap.add_argument("--codepf", type=int, default=12)
    ap.add_argument("--lead", type=int, default=8); ap.add_argument("--lag", type=int, default=6)
    ap.add_argument("--dv", default=None); ap.add_argument("--dk", default=None)
    ap.add_argument("--b1", type=int, default=132); ap.add_argument("--b2", type=int, default=34); ap.add_argument("--inc", type=int, default=80)
    ap.add_argument("--sched", default="early")
    ap.add_argument("--drop", default=""); ap.add_argument("--nobar", action="store_true")
    ap.add_argument("--epi", default="8,6")
    ap.add_argument("--show", action="store_true")
    ap.add_argument("--alldma", action="store_true"); ap.add_argument("--qfirst", action="store_true"); ap.add_argument("--v0c", type=int, default=1)
    args = ap.parse_args(argv)
    cfg.stamps = args.stamps; cfg.stamp_wg = args.stamp_wg; cfg.force_slow = args.force_slow; cfg.store_flags = args.store_flags
    cfg.ld = args.ld; cfg.qld = args.qld; cfg.fine = args.fine; cfg.qsplit = args.qsplit; cfg.qsfirst = args.qsfirst
    cfg.alldma = args.alldma or args.qfirst; cfg.qfirst = args.qfirst; cfg.v0c = args.v0c
    cfg.v0pos = args.v0pos; cfg.codepf = args.codepf
    cfg.LEAD = args.lead; cfg.LAG = args.lag; cfg.sched = args.sched
    cfg.B1 = args.b1; cfg.B2 = args.b2; cfg.inc_slot = args.inc
    cfg.drop = tuple(x for x in args.drop.split(",") if x); cfg.nobar = args.nobar
    cfg.epi_nv, cfg.epi_ng = [int(x) for x in args.epi.split(",")]
    def pick(lo, n, spacing):
        out = []; g = lo
        while len(out) < n:
            if sm_kind(g) is None and (not out or g - out[-1] >= spacing): out.append(g)
            g += 1
        return tuple(out)
    cfg.dk_slots = tuple(int(x) for x in args.dk.split(",")) if args.dk else (136, 140, 144, 152, 160, 168, 176, 182)
    cfg.dv_slots = tuple(int(x) for x in args.dv.split(",")) if args.dv else pick(cfg.B2 + 2, 8, 4)
    if args.thresh: cfg.thresh = int(args.thresh, 0)
    static, errs, parts = build()
    if args.show:
        for s in range(STEP): print(s, sm_kind(s) or "", LGW[s], MEM[s])
    for e in errs[:40]: print("ERR", e)
    cnt = lambda L: sum(1 for x in L if x.k != 'label')
    print("dk", cfg.dk_slots, "dv", cfg.dv_slots, "sharing", cfg.nshare)
    print("errors:", len(errs), " instructions:", cnt(static), " pro/body/epi:", [cnt(p) for p in parts])
    open(args.o, "w").write(HEADER.format(n=NAME) + text_of(static) + FOOTER.format(n=NAME))

if __name__ == "__main__": main()
```

```python
import sys, argparse, re
from asmlib import *

NAME = "standalone__gqa_softmax__near_ridge"
STEP = 170

class Cfg:
    LEAD = 8; LAG = 6
    thresh = 0x53800000
    stamps = False; stamp_wg = 0; fine = 0
    force_slow = False
    store_flags = "nt"; ld = "nt"; qld = "nt"
    qsplit = 2; v0pos = 1; codepf = 12
    B1 = 140; B2 = 34
    dk_slots = None; dv_slots = None
    inc_slot = 80
    sched = "early"; spread = True; drop = (); nobar = False
    epi_nv = 8; epi_ng = 0; epi_pub = 0
    fakeqk = 0; fakepv = 0; pvpair = True
    alldma = False; qfirst = False; v0c = 1
cfg = Cfg()

MGW, MGR, MLW, MLR = 8, 9, 10, 11
KDMA = 12
VDMA = 16
AW, VLIN, AR, SW, SR, SG = 18, 19, 20, 21, 22, 23
KADDR = 24
VADDR = 32
P = 48
S0 = 72
CI_OWN, CI_SH = 120, 128
VQRT = 132
MM = 133
TMPS = 136
Q_OWN = 144
O_OWN = 176
O_SHL = 240
VQ, SLM, SLL = 4, 6, 7
Q_SH, KF, VF, O_SHH, L_OWN, L_SH, ONES = 0, 16, 48, 80, 96, 104, 108
def Sb(b): return S0 + 24 * b
def Pb(b): return P + 12 * b
def osh(p): return ('v', O_SHL + 4 * p) if p < 4 else ('a', O_SHH + 4 * (p - 4))
sW, SQ, SK, SV, SO = 3, 8, 12, 16, 20
SO2 = 4
sW8192, sOff0, sOff1, sC, sMask = 24, 25, 26, 27, 28
sT = 29
sKill = 34
sH = 35
sM0 = 44
sC2 = 52
sQS, sQO1 = 90, 91
SCALE_BITS = 0x3e0293ee
LDS_K1, LDS_K0, LDS_X, LDS_V0, LDS_V1 = 0, 32768, 65536, 98304, 131072
LDS_MG = LDS_X
LDS_ML = LDS_X + 16384
DROP = 0x30000
def koff(buf): return LDS_K0 if buf == 0 else LDS_K1

NCOL = [3, 3, 2, 2]
QK0 = [0, 42, 93, 136]
PV0 = [66, 109, 152, 194]
EX0 = [7, 55, 103, 143]
def qk_mfma(pos, k, first_c=True):
    x, j = divmod(k, 4); a, col = x % 2, x // 2
    D = ('v', Sb(pos % 2) + 4 * x)
    B = ('a', Q_SH + 4 * j) if col == 2 else ('v', Q_OWN + 16 * col + 4 * j)
    C = (('v', CI_SH if col == 2 else CI_OWN + 4 * col) if first_c else 0) if j == 0 else D
    return mfma16(D, ('a', KF + 16 * a + 4 * j), B, C)
def ones_mfma(pos, col):
    Lr = L_SH if col == 2 else L_OWN + 4 * col
    return mfma16(('a', Lr), ('a', ONES), ('v', Pb(pos % 2) + 4 * col), ('a', Lr))
def pv_mfma(pos, p, col):
    O = osh(p) if col == 2 else ('v', O_OWN + 32 * col + 4 * p)
    return mfma16(O, ('a', VF + 4 * p), ('v', Pb(pos % 2) + 4 * col), O)
def pv_order(pos):
    n = NCOL[pos]
    if cfg.pvpair: return [(p + e, col) for p in range(0, 8, 2) for col in range(n) for e in range(2)]
    return [(p, col) for p in range(8) for col in range(n)]
def pv_block(pos):
    n = NCOL[pos]
    if cfg.pvpair and not cfg.fakepv: return [pv_mfma(pos, p, col) for p, col in pv_order(pos)] + [ones_mfma(pos, col) for col in range(n)]
    if cfg.fakepv == 3:
        out = []
        for p in range(0, 8, 2):
            for col in range(n):
                for e in range(2):
                    O = osh(p) if col == 2 else ('v', O_OWN + 32 * col + 4 * p)
                    out.append(mfma16(O, ('a', VF + 4 * (p + e)), ('v', Pb((pos + e) % 2) + 4 * col), O))
        return out + [ones_mfma(pos, col) for col in range(n)]
    if cfg.fakepv == 4:
        out = []
        for p in range(0, 8, 2):
            for col in range(n):
                for e in range(2):
                    O = osh(p + e) if col == 2 else ('v', O_OWN + 32 * col + 4 * (p + e))
                    out.append(mfma16(O, ('a', VF + 4 * (p + e)), ('v', Pb(pos % 2) + 4 * col), O))
        return out + [ones_mfma(pos, col) for col in range(n)]
    if cfg.fakepv == 2:
        out = []
        for p in range(0, 8, 2):
            for col in range(n):
                for e in range(2):
                    O = osh(p) if col == 2 else ('v', O_OWN + 32 * col + 4 * p)
                    out.append(mfma16(O, ('a', VF + 4 * (p + e)), ('v', Pb(pos % 2) + 4 * col), O))
        return out + [ones_mfma(pos, col) for col in range(n)]
    if cfg.fakepv == 1: return [pv_mfma(pos, p, col) for col in range(n) for p in range(8)] + [ones_mfma(pos, col) for col in range(n)]
    return [pv_mfma(pos, p, col) for p in range(8) for col in range(n)] + [ones_mfma(pos, col) for col in range(n)]

def mfma_at(step, g):
    for pos in range(4):
        if QK0[pos] <= g < QK0[pos] + 8 * NCOL[pos]:
            k = g - QK0[pos]
            if cfg.fakeqk == 1:
                n = NCOL[pos]; aj, col = divmod(k, n); a_, j = divmod(aj, 4)
                k = 4 * (2 * col + a_) + j
            return qk_mfma(pos, k)
        for base in (PV0[pos], PV0[pos] - STEP):
            if base <= g < base + 9 * NCOL[pos]: return pv_block(pos)[g - base]
    raise Exception(g)

def sm_ops(step, g):
    ops = []
    for pos in range(4):
        for gg in (g, g + STEP):
            rel = gg - EX0[pos]; n = 8 * NCOL[pos]; S_ = Sb(pos % 2)
            if 0 <= rel <= 2 * (n - 1) and rel % 2 == 0: ops.append(vexp(f"v{S_+rel//2}", f"v{S_+rel//2}"))
            if 3 <= rel <= 2 * (n - 1) + 1 and rel % 4 == 3:
                m = (rel - 3) // 4
                ops.append(cvtpk(f"v{Pb(pos % 2)+m}", f"v{S_+2*m}", f"v{S_+2*m+1}"))
    return ops
def sm_pos(x):
    return None
def sm_kind(g):
    o = sm_ops(2, g % STEP)
    return 'exp' if any(x.k == 'trans' for x in o) else 'cvt' if o else None

def free_gaps(lo, hi): return [g for g in range(lo, hi) if sm_kind(g) is None]

def build_mem_schedule():
    ops = []
    L = cfg.LEAD; B1, B2 = cfg.B1, cfg.B2
    def add(d, e, l):
        assert e <= l, (d, e, l)
        ops.append([d, e, l])
    for a in range(2):
        for j in range(4):
            o = 4 * a + j
            for pos in range(4):
                prev = (pos - 1) % 4
                pst = QK0[prev] - (STEP if pos == 0 else 0)
                last = pst + (16 if NCOL[prev] == 3 else 8) + o
                use = QK0[pos] + o
                if pos == 0: add(('K', 0, a, j), max(last + STEP, B1 + 1), STEP + use - L)
                elif pos == 3: add(('K', 3, a, j), last, min(use - L, B1 - L))
                else: add(('K', pos, a, j), last, use - L)
    for pos in range(4):
        prev = (pos - 1) % 4
        pst = PV0[prev] - (STEP if pos == 0 else 0)
        for p in range(8):
            last = pst + max(i for i, (pp, cc) in enumerate(pv_order(prev)) if pp == p)
            use = PV0[pos] + min(i for i, (pp, cc) in enumerate(pv_order(pos)) if pp == p)
            e, l = last, use - L
            if pos == 0: e = max(e, B2 + 1)
            if pos == 3: l = min(l, STEP + B2 - L)
            for hh in range(2): add(('V', pos, p, hh), e, l)
    sched = {s: [] for s in range(STEP)}
    for n, sl in enumerate(cfg.dk_slots): sched[sl % STEP].append(('DK', n))
    for n, sl in enumerate(cfg.dv_slots): sched[sl % STEP].append(('DV', n))
    def cap(s):
        k = sm_kind(s)
        c = 0 if k == 'exp' else 1 if k == 'cvt' else 2
        if s in (B1, B2): c = 0
        return c
    for s in sched: assert len(sched[s]) <= cap(s), (s, sched[s], cap(s))
    fixed0 = {g: list(v) for g, v in sched.items()}
    busy = lambda g: any(d[0] in ('DK', 'DV') for d in fixed0[g])
    by_gap = {}
    for g in range(STEP):
        for k in range(cap(g) - len(sched[g])): by_gap.setdefault(g, []).append((g, k))
    def cands(e, l):
        ts = list(range(e, l + 1))
        if cfg.sched == "late": ts.reverse()
        elif cfg.sched == "mid":
            mid = (e + l) / 2; ts.sort(key=lambda t: abs(t - mid))
        first = [sl for t in ts for sl in by_gap.get(t % STEP, []) if sl[1] == 0 and not busy(sl[0])]
        second = [sl for t in ts for sl in by_gap.get(t % STEP, []) if sl[1] > 0 and not busy(sl[0])]
        last = [sl for t in ts for sl in by_gap.get(t % STEP, []) if busy(sl[0])]
        return first + second, last
    order = sorted(range(len(ops)), key=lambda i: (ops[i][2] - ops[i][1], ops[i][2]))
    match = {}
    full = {i: cands(ops[i][1], ops[i][2]) for i in order}
    cand = {i: full[i][0] for i in order}
    def aug(i, seen):
        for sl in cand[i]:
            if sl not in match: match[sl] = i; return True
        for sl in cand[i]:
            if sl in seen: continue
            seen.add(sl)
            if aug(match[sl], seen): match[sl] = i; return True
        return False
    sys.setrecursionlimit(10000)
    left = [i for i in order if not aug(i, set())]
    cand = {i: full[i][0] + full[i][1] for i in order}
    for i in left:
        if not aug(i, set()): raise Exception(f"cannot place {ops[i]}")
    cfg.nshare = len(left)
    for sl, i in match.items(): sched[sl[0]].append(ops[i][0])
    dl = {tuple(o[0]): o[2] for o in ops}
    for s in sched: sched[s].sort(key=lambda d: (1, 0) if d[0] in ('DK', 'DV') else (0, (dl[d] - s) % STEP))
    return sched

MEM = LGW = None

def mem_ins(step, g, d):
    if d[0] == 'K':
        _, pos, a, j = d
        cs = step + 1 if pos == 0 else step
        buf = cs % 2
        return dsr128(('a', KF + 16 * a + 4 * j), KADDR + 4 * (pos // 2) + j, koff(buf) + 8192 * (pos % 2) + 4096 * a,
                      reg=(('K', buf), cs, False) if cs < 8 else None)
    if d[0] == 'V':
        _, pos, p, hh = d
        cs = step - 1 if (pos == 3 and g < PV0[3] - STEP + 20 and g <= cfg.B2) else step
        buf = cs % 2
        return dstr(('a', VF + 4 * p + 2 * hh), VADDR + 8 * (pos // 2) + p, buf * 32768 + 8192 * (pos % 2) + hh * 4096,
                    reg=(('V', buf), cs, False) if 0 <= cs < 8 else None)
    if d[0] == 'DK':
        n = d[1]; cs = step + 2 if g > cfg.B1 else step + 1; buf = cs % 2
        return dma(KDMA + n % 4, SK, f"s{sOff0 if n < 4 else sOff1}", 1024 * (n % 4), reg=(('K', buf), cs, True) if cs < 8 else None, flags=cfg.ld)
    if d[0] == 'DV':
        n = d[1]; cs = step + 1; buf = cs % 2
        return dma(VDMA + n % 2, SV, f"s{sOff0 if n < 4 else sOff1}", 1024 * (n % 4), reg=(('V', buf), cs, True) if cs < 8 else None, flags=cfg.ld)

def m0_val_reg(kv, buf, grp): return sM0 + (0 if kv == 'K' else 4) + 2 * buf + grp

def scalar_ops(step, g):
    o = []
    def m0(kv, buf, grp): return S("s_max_u32", "m0", f"s{m0_val_reg(kv, buf, grp)}", f"s{sKill}")
    dk, dv = cfg.dk_slots, cfg.dv_slots
    assert max(dk) < STEP + cfg.B2 and min(dk) > cfg.B1 + 1 and max(dv) < cfg.inc_slot and min(dv) > cfg.B2 + 1
    kbuf = lambda gg: (step if gg > cfg.B1 else step + 1) % 2
    if g == (dk[0] - 1) % STEP: o.append(m0('K', kbuf(g), 0))
    if g == (dk[4] - 1) % STEP: o.append(m0('K', kbuf(g), 1))
    if g == dv[0] - 1: o.append(m0('V', (step + 1) % 2, 0))
    if g == dv[4] - 1: o.append(m0('V', (step + 1) % 2, 1))
    x = cfg.inc_slot
    if g == x + 1: o.append(S("s_add_u32", f"s{sOff0}", f"s{sOff0}", "0x8000"))
    if g == x + 3: o.append(S("s_add_u32", f"s{sOff1}", f"s{sOff1}", "0x8000"))
    if g == x + 5: o.append(scmp("s_cmp_ge_u32", f"s{sOff0}", "0x40000"))
    if g == x + 7: o.append(S("s_cselect_b32", f"s{sKill}", hex(DROP), 0, w_scc=False, r_scc=True))
    return o

def gap_mem(step, g): return [mem_ins(step, g, d) for d in MEM[g] if d[0] not in cfg.drop]

def compute_lgkm_waits():
    seq = []; prod = {}; covered = -1; res = {}
    for t in range(0, 6 * STEP):
        st, sl = divmod(t, STEP)
        nst, nsl = divmod(t + 1, STEP)
        nm = mfma_at(nst, nsl)
        need = max([prod.get(r, -1) for r in nm.x['AB']] + [-1])
        if sl == cfg.B1: need = max([need] + [i for i, (tt, d) in enumerate(seq) if d == 'K'])
        if sl == cfg.B2: need = max([need] + [i for i, (tt, d) in enumerate(seq) if d == 'V'])
        n = None
        if need > covered:
            tgt = need
            for i in range(len(seq) - 1, -1, -1):
                if seq[i][0] <= t - cfg.LAG: tgt = max(tgt, i); break
            n = len(seq) - 1 - tgt
            if n > 15: tgt = len(seq) - 1 - 15; n = 15
            covered = tgt
        res[(st, sl)] = n
        for d in MEM[sl]:
            if d[0] in ('DK', 'DV') or d[0] in cfg.drop: continue
            ins = mem_ins(2 + st % 2, sl, d)
            seq.append((t, d[0]))
            for r in ins.w: prod[r] = len(seq) - 1
    out = {}
    for sl in range(STEP):
        assert len({res[(s, sl)] for s in range(2, 6)}) == 1
        out[sl] = res[(4, sl)]
    return out

def gap(step, g, part='all'):
    head = [mfma_at(step, g)]
    n = LGW[g]
    if g == cfg.B1 or g == cfg.B2:
        head.append(wait(vm=8, lg=n))
        if not cfg.nobar: head.append(barrier())
    elif n is not None: head.append(wait(lg=n))
    head += scalar_ops(step, g)
    rest = gap_mem(step, g) + sm_ops(step, g)
    return head if part == 'head' else rest if part == 'rest' else head + rest

ENTRY = 41
EXIT = 169

def body_iter(st0, last=False):
    o = []
    o += gap(st0, ENTRY, 'rest')
    for s in range(ENTRY + 1, STEP): o += gap(st0, s)
    for s in range(0, EXIT):
        g = gap(st0 + 1, s)
        if s == EXIT - 2:
            g = gap(st0 + 1, s, 'head') + [scmp("s_cmp_eq_u32", f"s{sOff0}", hex(9 * 32768))] + gap(st0 + 1, s, 'rest')
        o += g
    o += gap(st0 + 1, EXIT, 'head') + [branch("s_cbranch_scc1", "L_exit", ['scc'])]
    if last: return o
    o += gap(st0 + 1, EXIT, 'rest')
    for s in range(EXIT + 1, STEP): o += gap(st0 + 1, s)
    for s in range(0, ENTRY): o += gap(st0 + 2, s)
    o += gap(st0 + 2, ENTRY, 'head') + [branch("s_branch", "L_loop")]
    return o

def scale4(src, tmp, pk=False):
    o = []
    for i in range(4): o.append(V("v_lshlrev_b32", f"v{tmp+2*i}", 16, f"v{src+i}"))
    for i in range(4): o.append(V("v_and_b32", f"v{tmp+2*i+1}", f"s{sMask}", f"v{src+i}"))
    if pk:
        for i in range(4): o.append(V("v_pk_mul_f32", f"v[{tmp+2*i}:{tmp+2*i+1}]", f"v[{tmp+2*i}:{tmp+2*i+1}]", f"s[{sC2}:{sC2+1}]"))
    else:
        for i in range(4): o.append(vmul(f"v{tmp+2*i}", f"s{sC}", f"v{tmp+2*i}"))
        for i in range(4): o.append(vmul(f"v{tmp+2*i+1}", f"s{sC}", f"v{tmp+2*i+1}"))
    for i in range(4): o.append(cvtpk(f"v{src+i}", f"v{tmp+2*i}", f"v{tmp+2*i+1}"))
    return o

def rowmax(Sbase, cols, t):
    o = []
    for n, c in enumerate(cols):
        b = Sbase + 8 * c
        o.append(V("v_max3_f32", f"v{t+2*n}", f"v{b}", f"v{b+1}", f"v{b+2}"))
        o.append(V("v_max3_f32", f"v{t+2*n+1}", f"v{b+3}", f"v{b+4}", f"v{b+5}"))
    for n, c in enumerate(cols):
        b = Sbase + 8 * c
        o.append(V("v_max3_f32", f"v{t+2*n}", f"v{t+2*n}", f"v{b+6}", f"v{b+7}"))
    if len(cols) == 1: o.append(nop(0))
    for n, c in enumerate(cols): o.append(V("v_max_f32", f"v{t+2*n}", f"v{t+2*n}", f"v{t+2*n+1}"))
    for sw in (swap16, swap32):
        for n, c in enumerate(cols): o.append(vmov(f"v{t+2*n+1}", f"v{t+2*n}"))
        o.append(nop(0 if len(cols) > 1 else 1))
        for n, c in enumerate(cols): o.append(sw(f"v{t+2*n}", f"v{t+2*n+1}"))
        for n, c in enumerate(cols): o.append(V("v_max_f32", f"v{t+2*n}" if sw is swap16 else f"v{MM+c}", f"v{t+2*n}", f"v{t+2*n+1}"))
    return o

def shift_by_max(Sbase, cols):
    o = []
    for c in cols:
        for a_ in range(2): o.append(mfma16_f32(('v', Sbase + 8 * c + 4 * a_), VQRT, MM + c, ('v', Sbase + 8 * c + 4 * a_)))
    for c in cols: o.append(mfma16_f32(('v', CI_SH if c == 2 else CI_OWN + 4 * c), VQRT, MM + c, 0))
    return o

def dense(ops):
    out = list(ops)
    i = 0
    while i < len(out) - 1:
        if out[i].k == 'trans' and out[i + 1].k == 'valu' and set(out[i].w) & set(out[i + 1].r):
            if i + 2 < len(out) and out[i + 2].k == 'trans': out[i + 1], out[i + 2] = out[i + 2], out[i + 1]; i += 1
            else: out.insert(i + 1, nop(0))
        i += 1
    return out

def stamp(idx, fine=0):
    if not cfg.stamps: return []
    if cfg.fine == 9 and idx != 0: return []
    if cfg.fine != fine and idx not in (0, 8, 9): return []
    return [raw(f"s_memtime s[{60+2*idx}:{61+2*idx}]", 'stampi')]

def prologue():
    o = []
    vmlist = []
    def a(x, tag=None):
        o.append(x)
        if x.k in ('vload', 'dma', 'vstore'): vmlist.append(tag)
    def wait_for(tag):
        last = max(i for i, t in enumerate(vmlist) if t == tag)
        return wait(vm=len(vmlist) - 1 - last)
    a(scmp("s_cmp_ge_u32", "s2", 256)); a(branch("s_cbranch_scc1", "L_end", ['scc']))
    a(raw("s_load_dwordx4 s[36:39], s[0:1], 0", 'smem', [], R('s', 36, 4)))
    a(raw("s_load_dwordx4 s[40:43], s[0:1], 16", 'smem', [], R('s', 40, 4)))
    if cfg.stamps:
        a(raw("s_load_dwordx2 s[58:59], s[0:1], 32", 'smem', [], R('s', 58, 2)))
        o += stamp(0)
        a(raw("s_memrealtime s[82:83]", 'stampi'))
    a(V("v_lshrrev_b32", "v1", 6, "v0"))
    a(V("v_and_b32", "v2", 63, "v0"))
    a(readfirst(f"s{sW}", "v1"))
    a(V("v_lshrrev_b32", "v3", 4, "v2"))
    a(V("v_and_b32", "v4", 15, "v2"))
    a(V("v_lshlrev_b32", f"v{VLIN}", 4, "v2"))
    if cfg.codepf:
        a(raw("s_getpc_b64 s[56:57]", 'salu', [], ['s56', 's57']))
        a(label("L_pc"))
        a(S("s_lshr_b32", f"s{sT}", "s2", 3)); a(S("s_and_b32", f"s{sT}", f"s{sT}", 3)); a(S("s_lshl_b32", f"s{sT}", f"s{sT}", 2))
        a(S("s_add_u32", f"s{sT}", f"s{sT}", f"s{sW}")); a(S("s_min_u32", f"s{sT}", f"s{sT}", cfg.codepf - 1)); a(S("s_lshl_b32", f"s{sT}", f"s{sT}", 10))
        a(raw(f"s_sub_u32 s{sT}, s{sT}, L_pc-{NAME}_kernel", 'salu', [f"s{sT}"], [f"s{sT}", 'scc']))
        a(S("s_ashr_i32", f"s{sT+1}", f"s{sT}", 31))
        a(S("s_add_u32", "s56", "s56", f"s{sT}")); a(S("s_addc_u32", "s57", "s57", f"s{sT+1}", r_scc=True))
        a(vmov("v7", "s57"))
        a(I(f"v_add_co_u32 v6, vcc, s56, v{VLIN}", 'valu', ['s56', f"v{VLIN}"], ['v6', 'vcc']))
        a(nop(1))
        a(I("v_addc_co_u32 v7, vcc, 0, v7, vcc", 'valu', ['v7', 'vcc'], ['v7', 'vcc']))
        a(I("global_load_dwordx4 a[0:3], v[6:7], off", 'vload', ['v6', 'v7'], R('a', 0, 4)), "PF")
    a(S("s_and_b32", f"s{sT}", "s2", 7))
    a(S("s_lshr_b32", f"s{sT+1}", "s2", 3))
    a(S("s_lshr_b32", f"s{sT+2}", "s2", 5))
    a(S("s_lshl_b32", f"s{sW8192}", f"s{sW}", 13))
    a(S("s_lshr_b32", f"s{sH}", f"s{sW}", 1))
    a(S("s_lshl_b32", f"s{sT+3}", f"s{sT}", 5)); a(S("s_add_u32", f"s{sT+3}", f"s{sT+3}", f"s{sT+1}"))
    a(S("s_mul_i32", f"s{sT+3}", f"s{sT+3}", 40960, w_scc=False))
    a(S("s_lshl_b32", f"s{sT+4}", f"s{sT}", 3)); a(S("s_add_u32", f"s{sT+4}", f"s{sT+4}", f"s{sT+2}"))
    a(S("s_lshl_b32", f"s{sT+4}", f"s{sT+4}", 18))
    a(V("v_xor_b32", "v5", "v3", "v4"))
    a(V("v_lshlrev_b32", "v5", 4, "v5"))
    a(V("v_lshl_add_u32", "v7", "v3", 8, "v5"))
    a(V("v_lshl_add_u32", "v6", "v4", 8, "v5"))
    a(V("v_add_u32", f"v{KDMA}", f"s{sW8192}", "v7"))
    for k in range(1, 4): a(V("v_xor_b32", f"v{KDMA+k}", 64 * k, f"v{KDMA}"))
    a(S("s_and_b32", f"s{sQS}", f"s{sW}", 1)); a(S("s_lshl_b32", f"s{sQS}", f"s{sQS}", 12)); a(S("s_add_u32", f"s{sQS}", f"s{sQS}", 32768))
    a(S("s_add_u32", f"s{sQO1}", f"s{sW8192}", 4096))
    a(smov(f"s{sOff0}", 0)); a(smov(f"s{sOff1}", 4096))
    SA, SB = Sb(0), Sb(1)
    RAWS = SB
    TWS = CI_OWN
    TRS = CI_OWN + 4
    TW = O_SHL
    TR = O_SHL + 4
    TM = P
    for k in range(4): a(V("v_add_u32", f"v{TWS+k}", LDS_V1, f"v{KDMA+k}"))
    a(S("s_add_u32", f"s{sT}", f"s{sW8192}", LDS_V1)); a(V("v_add_u32", f"v{TRS}", f"s{sT}", "v6"))
    for j in range(1, 4): a(V("v_xor_b32", f"v{TRS+j}", 64 * j, f"v{TRS}"))
    a(S("s_lshl_b32", f"s{sT}", f"s{sH}", 14)); a(V("v_add_u32", f"v{KADDR}", f"s{sT}", "v6"))
    for j in range(1, 4): a(V("v_xor_b32", f"v{KADDR+j}", 64 * j, f"v{KADDR}"))
    if cfg.alldma:
        for k in range(4): a(V("v_xor_b32", f"v{TMPS+4+k}", 64 * k, "v7"))
        a(smov("s92", 0)); a(smov("s93", 4096))
    a(smov(f"s{sC}", hex(SCALE_BITS))); a(smov(f"s{sMask}", "0xffff0000"))
    a(smov(f"s{sC2}", hex(SCALE_BITS))); a(smov(f"s{sC2+1}", hex(SCALE_BITS)))
    for base, n in ((SQ, 40960), (SK, 262144)): a(smov(f"s{base+2}", n)); a(smov(f"s{base+3}", "0x20000"))
    a(wait(lg=0))
    def srd(base, p, off, n):
        a(S("s_add_u32", f"s{base}", f"s{p}", f"s{off}")); a(S("s_addc_u32", f"s{base+1}", f"s{p+1}", 0, r_scc=True))
        a(S("s_and_b32", f"s{base+1}", f"s{base+1}", "0xffff"))
        if base not in (SQ, SK): a(smov(f"s{base+2}", n)); a(smov(f"s{base+3}", "0x20000"))
    o += stamp(1, 1)
    srd(SQ, 36, sT + 3, 40960)
    QD = TMPS + 4
    def qsh(n0, n1):
        for n in range(n0, n1):
            if cfg.alldma: a(dma(QD + n, SQ, f"s{sQS}", 1024 * n, reg=(('QS', 0), 'qs', True), flags=cfg.qld), f"QS{n}")
            else: a(vload(('v', RAWS + 4 * n), 4, VLIN, SQ, f"s{sQS}", 1024 * n, cfg.qld), f"QS{n}")
    def qown(n0, n1):
        for n in range(n0, n1):
            if cfg.alldma:
                if n == n0 or n == 4: a(S("s_add_u32", "m0", f"s{sW8192}", LDS_X + (4096 if n >= 4 else 0))); a(nop(0))
                a(dma(KDMA + n % 4, SQ, f"s{92 if n < 4 else 93}", 1024 * (n % 4), reg=(('QO', n // 4), 'qo', True), flags=cfg.qld), f"QO{n}")
            else: a(vload(('v', Q_OWN + 4 * n), 4, VLIN, SQ, f"s{sW8192 if n < 4 else sQO1}", 1024 * (n % 4), cfg.qld), f"QO{n}")
    def k0dma(n0=0, n1=8):
        for n in range(n0, n1):
            if n == n0 or n == 4: a(S("s_add_u32", "m0", f"s{sW8192}", LDS_K0 + (4096 if n >= 4 else 0))); a(nop(0))
            a(dma(KDMA + n % 4, SK, f"s{92 if n < 4 else 93}" if cfg.alldma else f"s{sOff0 if n < 4 else sOff1}", 1024 * (n % 4), reg=(('K', 0), 0, True), flags=cfg.ld), "K0")
    if cfg.alldma:
        a(S("s_add_u32", "m0", f"s{sW8192}", LDS_V1)); a(nop(0))
        qsh(0, 4)
    else: qsh(0, cfg.qsfirst)
    if cfg.qfirst:
        qown(0, cfg.qsplit)
        srd(SK, 38, sT + 4, 262144)
    else:
        srd(SK, 38, sT + 4, 262144)
        k0dma()
        if not cfg.alldma: qsh(cfg.qsfirst, 4)
        o += stamp(2, 1)
        qown(0, cfg.qsplit)
    o += stamp(1); o += stamp(3, 1)
    srd(SV, 40, sT + 4, 262144)
    srd(SO, 42, sT + 3, 40960)
    a(V("v_lshlrev_b32", "v1", 1, "v3")); a(V("v_xor_b32", "v1", "v1", "v4"))
    a(V("v_lshlrev_b32", "v1", 4, "v1")); a(V("v_lshl_add_u32", "v1", "v3", 8, "v1"))
    a(V("v_add_u32", f"v{VDMA}", f"s{sW8192}", "v1")); a(V("v_xor_b32", f"v{VDMA+1}", 128, f"v{VDMA}"))
    for j in range(4): a(V("v_xor_b32", f"v{KADDR+4+j}", 16384, f"v{KADDR+j}"))
    for k in range(4): a(V("v_add_u32", f"v{TW+k}", LDS_X, f"v{KDMA+k}"))
    a(S("s_add_u32", f"s{sT}", f"s{sW8192}", LDS_X)); a(V("v_add_u32", f"v{TR}", f"s{sT}", "v6"))
    for j in range(1, 4): a(V("v_xor_b32", f"v{TR+j}", 64 * j, f"v{TR}"))
    a(V("v_lshrrev_b32", "v1", 2, "v4")); a(V("v_lshl_add_u32", "v1", "v3", 2, "v1"))
    a(V("v_and_b32", "v5", 7, "v1"))
    a(S("s_lshl_b32", f"s{sT}", f"s{sH}", 2)); a(V("v_xor_b32", "v5", f"s{sT}", "v5"))
    a(V("v_lshlrev_b32", "v5", 5, "v5")); a(V("v_lshl_add_u32", "v5", "v1", 8, "v5"))
    a(V("v_and_b32", "v1", 3, "v4")); a(V("v_lshl_add_u32", "v5", "v1", 3, "v5"))
    a(S("s_lshl_b32", f"s{sT}", f"s{sH}", 14)); a(V("v_add_u32", "v5", f"s{sT}", "v5"))
    a(V("v_add_u32", f"v{VADDR}", LDS_V0, "v5"))
    a(V("v_xor_b32", "v5", 16384, "v5")); a(V("v_add_u32", f"v{VADDR+8}", LDS_V0, "v5"))
    for hf in range(2):
        for p in range(1, 8): a(V("v_xor_b32", f"v{VADDR+8*hf+p}", 32 * p, f"v{VADDR+8*hf}"))
    a(S("s_xor_b32", f"s{sT}", f"s{sW}", 2)); a(S("s_lshl_b32", f"s{sT+1}", f"s{sT}", 12)); a(S("s_add_u32", f"s{sT+1}", f"s{sT+1}", LDS_MG))
    a(V("v_add_u32", f"v{MGW}", f"s{sT+1}", f"v{VLIN}"))
    a(S("s_lshl_b32", f"s{sT+1}", f"s{sW}", 12)); a(S("s_add_u32", f"s{sT+1}", f"s{sT+1}", LDS_MG))
    a(V("v_add_u32", f"v{MGR}", f"s{sT+1}", f"v{VLIN}"))
    a(V("v_lshrrev_b32", "v1", 1, f"v{VLIN}"))
    a(S("s_lshl_b32", f"s{sT+1}", f"s{sT}", 9)); a(S("s_add_u32", f"s{sT+1}", f"s{sT+1}", LDS_ML)); a(V("v_add_u32", f"v{MLW}", f"s{sT+1}", "v1"))
    a(S("s_lshl_b32", f"s{sT+1}", f"s{sW}", 9)); a(S("s_add_u32", f"s{sT+1}", f"s{sT+1}", LDS_ML)); a(V("v_add_u32", f"v{MLR}", f"s{sT+1}", "v1"))
    a(S("s_mul_i32", f"s{sT}", f"s{sW}", 8704, w_scc=False))
    a(V("v_lshlrev_b32", "v5", 3, "v3"))
    a(V("v_mul_u32_u24", "v6", 272, "v4")); a(V("v_add_u32", "v6", "v6", "v5")); a(V("v_add_u32", f"v{AW}", f"s{sT}", "v6"))
    a(S("s_lshl_b32", f"s{sT+4}", f"s{sH}", 3)); a(V("v_xor_b32", "v6", f"s{sT+4}", "v4")); a(V("v_lshlrev_b32", "v6", 4, "v6"))
    a(V("v_mul_u32_u24", "v7", 272, "v3")); a(V("v_add_u32", "v6", "v6", "v7")); a(V("v_add_u32", f"v{AR}", f"s{sT}", "v6"))
    a(S("s_add_u32", f"s{sT}", f"s{sW8192}", LDS_V0))
    a(V("v_mul_u32_u24", "v6", 144, "v4")); a(V("v_add_u32", "v6", "v6", "v5")); a(V("v_add_u32", f"v{SW}", f"s{sT}", "v6"))
    a(V("v_lshrrev_b32", "v5", 3, "v2")); a(V("v_and_b32", "v6", 7, "v2")); a(V("v_lshlrev_b32", "v6", 4, "v6"))
    a(V("v_mul_u32_u24", "v7", 144, "v5")); a(V("v_add_u32", "v7", "v7", "v6")); a(V("v_add_u32", f"v{SR}", f"s{sT}", "v7"))
    a(V("v_lshl_add_u32", f"v{SG}", "v5", 8, "v6"))
    a(vmov(f"v{VQRT}", "0xbe800000"))
    a(vmov("v2", "0x3f803f80"))
    Z = TMPS
    for i in range(4): a(vmov(f"v{Z+i}", 0))
    for kv, b0, b1 in (('K', LDS_K0, LDS_K1), ('V', LDS_V0, LDS_V1)):
        for buf, base in ((0, b0), (1, b1)):
            for grp in range(2):
                a(S("s_add_u32", f"s{m0_val_reg(kv, buf, grp)}", f"s{sW8192}", base + grp * 4096))
    a(smov(f"s{sKill}", 0))
    for db in range(4): a(mfma(('v', O_OWN + 16 * db), ('v', Z), ('v', Z), 0))
    for b in (O_SHH, L_OWN): a(mfma(('a', b), ('v', Z), ('v', Z), 0))
    a(nop(7)); a(nop(3))
    for i in range(4): a(accw(f"a{ONES+i}", "v2"))
    o += stamp(2); o += stamp(4, 1)
    qown(cfg.qsplit, 8)
    if cfg.qfirst: k0dma()
    def vdma(buf, content, tag, only=None):
        for grp in range(2):
            a(S("s_mov_b32", "m0", f"s{m0_val_reg('V', buf, grp)}", w_scc=False)); a(nop(0))
            for n in range(4):
                if only is None or only(4 * grp + n):
                    a(dma(VDMA + n % 2, SV, f"s{sOff0 if grp == 0 else sOff1}", 1024 * n, reg=(('V', buf), content, True), flags=cfg.ld), tag)
    if cfg.qfirst:
        a(wait_for("QS3"))
        for j in range(4): a(dsr128(('v', RAWS + 4 * j), TRS + j, 0, reg=(('QS', 0), 'qs', True)))
        for j in range(4):
            a(wait(lg=3 - j))
            o.extend(scale4(RAWS + 4 * j, TM + 8 * (j % 2), pk=True))
            for i in range(4): a(accw(f"a{Q_SH+4*j+i}", f"v{RAWS+4*j+i}"))
        o.extend(stamp(1, 4))
        for c in range(2):
            a(wait_for(f"QO{4*c+3}"))
            for j in range(4): a(dsr128(('v', Q_OWN + 16 * c + 4 * j), TR + j, 4096 * c, reg=(('QO', c), 'qo', True)))
            if c == cfg.v0c: vdma(0, 0, "V0")
            for j in range(4):
                a(wait(lg=3 - j))
                o.extend(scale4(Q_OWN + 16 * c + 4 * j, TM + 8 * (j % 2), pk=True))
            o.extend(stamp(2 + c, 4))
        if cfg.v0c == 2: vdma(0, 0, "V0")
        a(wait_for("K0")); a(barrier())
        o.extend(stamp(4, 4))
        for aa in range(2):
            for j in range(4): a(dsr128(('a', KF + 16 * aa + 4 * j), KADDR + j, koff(0) + 4096 * aa, reg=(('K', 0), 0, False)))
        a(smov(f"s{sOff0}", 32768)); a(smov(f"s{sOff1}", 32768 + 4096))
        a(mfma(('v', O_SHL), ('v', Z), ('v', Z), 0))
        rm = [rowmax(SA, [c], TMPS + 4 if c != 1 else 0) for c in range(3)]
        for k in range(24):
            if k < 8: a(wait(lg=7 - k))
            a(qk_mfma(0, k, first_c=False))
            if 14 <= k < 23: o += rm[0][2 * (k - 14):2 * (k - 14) + 2]
        o += rm[0][18:]
        o.extend(stamp(5, 4))
        a(nop(0))
        o += shift_by_max(SA, [0])
        o += rm[1]
        for grp in range(2):
            a(S("s_mov_b32", "m0", f"s{m0_val_reg('K', 1, grp)}", w_scc=False)); a(nop(0))
            for k in range(4): a(dma(KDMA + k, SK, f"s{sOff0 if grp == 0 else sOff1}", 1024 * k, reg=(('K', 1), 1, True), flags=cfg.ld), "K1")
        o += shift_by_max(SA, [1])
        o += rm[2]
        a(nop(1))
        o += shift_by_max(SA, [2])
        headops = []
        for s_ in range(EX0[0], ENTRY): headops += sm_ops(0, s_)
        preK, preV = [], []
        for sl in range(0, ENTRY):
            for d in MEM[sl]:
                if d[0] == 'K': preK.append(mem_ins(0, sl, d))
                elif d[0] == 'V' and d[1] == 0: preV.append(mem_ins(0, sl, d))
        o += preK
        o.extend(stamp(6, 4))
        h = dense(headops)
        o += h[:-3]; a(nop(4)); o += h[-3:]
        o.extend(stamp(7, 4))
        a(wait_for("V0")); a(barrier())
        o += preV
        vdma(1, 1, "V1", lambda n: cfg.dv_slots[n] < ENTRY)
        nxt = [n for n in range(8) if not cfg.dv_slots[n] < ENTRY]
        if nxt and cfg.dv_slots[0 if nxt[0] < 4 else 4] - 1 < ENTRY:
            a(S("s_mov_b32", "m0", f"s{m0_val_reg('V', 1, 0 if nxt[0] < 4 else 1)}", w_scc=False))
        a(wait(lg=0))
        if cfg.stamps: a(raw("s_memrealtime s[86:87]", 'stampi'))
        return o
    if not cfg.alldma:
        for n in range(4):
            a(wait_for(f"QS{n}"))
            o.extend(scale4(RAWS + 4 * n, TM + 8 * (n % 2), pk=True))
            a(dsw128(TWS + n, ('v', RAWS + 4 * n), 1024 * n, reg=(('QS', 0), 'qs', True)))
        o += stamp(5, 1)
        a(wait_for("K0")); a(wait(lg=0))
        for j in range(4): a(dsr128(('a', Q_SH + 4 * j), TRS + j, 0, reg=(('QS', 0), 'qs', True)))
        a(barrier())
    else:
        a(wait_for("QS3"))
        for j in range(4): a(dsr128(('v', RAWS + 4 * j), TRS + j, 0, reg=(('QS', 0), 'qs', True)))
        for j in range(4):
            a(wait(lg=3 - j))
            o.extend(scale4(RAWS + 4 * j, TM + 8 * (j % 2), pk=True))
            for i in range(4): a(accw(f"a{Q_SH+4*j+i}", f"v{RAWS+4*j+i}"))
        o += stamp(5, 1)
        a(wait_for("K0")); a(barrier())
    for aa in range(2):
        for j in range(4): a(dsr128(('a', KF + 16 * aa + 4 * j), KADDR + j, koff(0) + 4096 * aa, reg=(('K', 0), 0, False)))
    o += stamp(6, 1)
    for k in range(16, 24):
        if k < 20: a(wait(lg=7 - (k - 16)))
        if k == 20: a(wait(lg=0))
        a(qk_mfma(0, k, first_c=False))
    o += stamp(3); o += stamp(7, 1)
    def k1dma():
        for grp in range(2):
            a(S("s_mov_b32", "m0", f"s{m0_val_reg('K', 1, grp)}", w_scc=False)); a(nop(0))
            for k in range(4): a(dma(KDMA + k, SK, f"s{sOff0 if grp == 0 else sOff1}", 1024 * k, reg=(('K', 1), 1, True), flags=cfg.ld), "K1")
    if not cfg.alldma:
        def piece(n, pk):
            a(wait_for(f"QO{n}"))
            o.extend(scale4(Q_OWN + 4 * n, TM + 8 * (n % 2), pk=pk))
            a(dsw128(TW + n % 4, ('v', Q_OWN + 4 * n), 1024 * n, reg=(('QO', 0), 'qo', True)))
        piece(0, False)
        o += rowmax(SA, [2], TM)
        a(nop(1))
        o += shift_by_max(SA, [2])
        o += stamp(4)
        if cfg.v0pos == 0: vdma(0, 0, "V0")
        for n in range(1, 8):
            piece(n, n >= 2)
            if n == cfg.v0pos: vdma(0, 0, "V0")
        o += stamp(5)
        a(smov(f"s{sOff0}", 32768)); a(smov(f"s{sOff1}", 32768 + 4096))
        a(wait(lg=0))
        for c in range(2):
            for j in range(4): a(dsr128(('v', Q_OWN + 16 * c + 4 * j), TR + j, 4096 * c, reg=(('QO', 0), 'qo', True)))
        for k in range(16):
            if k < 4: a(wait(lg=7 - k))
            if k == 8: a(wait(lg=0))
            a(qk_mfma(0, k, first_c=False))
        a(mfma(('v', O_SHL), ('v', Z), ('v', Z), 0))
        k1dma()
    else:
        vdma(0, 0, "V0")
        a(nop(3))
        o += rowmax(SA, [2], TM)
        a(nop(1))
        o += shift_by_max(SA, [2])
        o += stamp(4)
        a(smov(f"s{sOff0}", 32768)); a(smov(f"s{sOff1}", 32768 + 4096))
        headops = []
        for s_ in range(EX0[0], ENTRY): headops += sm_ops(0, s_)
        def touches(x, lo, hi): return bool((set(x.w) | set(x.r)) & set(R('v', SA + lo, hi - lo)))
        h0 = dense([x for x in headops if touches(x, 0, 8)])
        h1 = dense([x for x in headops if not touches(x, 0, 8)])
        preK, preV = [], []
        for sl in range(0, ENTRY):
            for d in MEM[sl]:
                if d[0] == 'K': preK.append(mem_ins(0, sl, d))
                elif d[0] == 'V' and d[1] == 0: preV.append(mem_ins(0, sl, d))
        for c in range(2):
            o.extend(stamp(1 + 3 * c, 4))
            a(wait_for(f"QO{4*c+3}"))
            o.extend(stamp(2 + 3 * c, 4))
            for j in range(4): a(dsr128(('v', Q_OWN + 16 * c + 4 * j), TR + j, 4096 * c, reg=(('QO', c), 'qo', True)))
            if c == 1: k1dma()
            for j in range(4):
                a(wait(lg=3 - j))
                o.extend(scale4(Q_OWN + 16 * c + 4 * j, (TM + 8 * (j % 2)) if c == 0 else Pb(1), pk=True))
            a(nop(1))
            for k in range(8 * c, 8 * c + 8): a(qk_mfma(0, k, first_c=False))
            o.extend(stamp(3 + 3 * c, 4))
            if c == 0:
                a(nop(7))
            else:
                a(mfma(('v', O_SHL), ('v', Z), ('v', Z), 0))
                o += preK
            o += rowmax(SA, [c], TMPS + 4)
            a(nop(1))
            o += shift_by_max(SA, [c])
            a(nop(7)); a(nop(1))
            o += h0 if c == 0 else h1
            if c == 0: o += stamp(5)
        o += stamp(6); o.extend(stamp(7, 4))
        a(wait_for("V0")); a(barrier())
        o += preV
        vdma(1, 1, "V1", lambda n: cfg.dv_slots[n] < ENTRY)
        nxt = [n for n in range(8) if not cfg.dv_slots[n] < ENTRY]
        if nxt and cfg.dv_slots[0 if nxt[0] < 4 else 4] - 1 < ENTRY:
            a(S("s_mov_b32", "m0", f"s{m0_val_reg('V', 1, 0 if nxt[0] < 4 else 1)}", w_scc=False))
        a(wait(lg=0))
        if cfg.fine != 4: o += stamp(7)
        if cfg.stamps: a(raw("s_memrealtime s[86:87]", 'stampi'))
        return o
    o += stamp(6)
    o += rowmax(SA, [0, 1], TMPS + 4)
    a(nop(1))
    o += shift_by_max(SA, [0, 1])
    if cfg.B2 < ENTRY: a(wait_for("V0")); a(barrier())
    else: a(nop(7))
    def v1_in_prologue(n): return cfg.dv_slots[n] < ENTRY
    pre = []
    for sl in range(0, ENTRY):
        for d in MEM[sl]:
            if d[0] == 'K' or (d[0] == 'V' and d[1] == 0): pre.append(mem_ins(0, sl, d))
    o += pre
    head = []
    for s in range(EX0[0], ENTRY): head += sm_ops(0, s)
    o += dense(head)
    vdma(1, 1, "V1", v1_in_prologue)
    nxt = [n for n in range(8) if not v1_in_prologue(n)]
    if nxt and cfg.dv_slots[0 if nxt[0] < 4 else 4] - 1 < ENTRY:
        a(S("s_mov_b32", "m0", f"s{m0_val_reg('V', 1, 0 if nxt[0] < 4 else 1)}", w_scc=False))
    a(wait(lg=0))
    o += stamp(7)
    if cfg.stamps: a(raw("s_memrealtime s[86:87]", 'stampi'))
    return o

class Seq:
    def __init__(self): self.o = []; self.ds = []; self.done = -1; self.prod = {}
    def wait_idx(self, idx):
        if idx > self.done:
            n = min(15, len(self.ds) - 1 - idx)
            self.o.append(wait(lg=n)); self.done = len(self.ds) - 1 - n
    def wait_op(self, x): self.wait_idx(max(i for i, y in enumerate(self.ds) if y is x))
    def __call__(self, x):
        need = max([self.prod.get(r, -1) for r in x.r] + [-1])
        if x.k not in ('dsr',): need = max([need] + [self.prod.get(r, -1) for r in x.w])
        self.wait_idx(need) if need >= 0 else None
        self.o.append(x)
        if x.k in ('dsr', 'dsw'):
            self.ds.append(x)
            for r in x.w: self.prod[r] = len(self.ds) - 1
        return x

def epilogue():
    q = Seq(); a = q
    st = 7
    SF = cfg.store_flags
    vr = []
    for s, stp in [(s, st) for s in range(EXIT, STEP)] + [(s, st + 1) for s in range(0, cfg.B2 + 1)]:
        for d in MEM[s]:
            if d[0] == 'V' and d[1] == 3: vr.append((d[2], mem_ins(stp, s, d)))
    vr.sort(key=lambda x: x[0]); vr = [x for _, x in vr]
    tail = []
    for s in list(range(EXIT, STEP)) + list(range(0, EX0[0])):
        tail += [x for x in sm_ops(st, s) if (set(x.w) | set(x.r)) & set(R('v', Sb(1), 16))]
    LO, RI = Pb(0), Pb(0) + 2
    ML_, MB = Pb(0) + 4, Pb(0) + 6
    GA = Pb(0) + 8
    RB = Sb(0)
    OT, OT1, STG = (('OT', 0), 'ot', True), (('OT', 1), 'ot', True), (('ST', 0), 'st', True)
    MGR_, MLR_ = (('MG', 0), 'mg', False), (('MG', 0), 'mg', False)
    mm = [ones_mfma(3, 0)] + [pv_mfma(3, p, 0) for p in range(8)] + [ones_mfma(3, 1)] + [pv_mfma(3, p, 1) for p in range(8)]
    def fin(b, rinv_pair, sel, addr, off, reg, pk):
        if not pk: mul = [vmul(f"v{b+i}", f"v{rinv_pair+sel}", f"v{b+i}") for i in range(4)]
        else: mul = [V("v_pk_mul_f32", f"v[{b+i}:{b+i+1}]", f"v[{b+i}:{b+i+1}]", f"v[{rinv_pair}:{rinv_pair+1}]",
                       mods="op_sel:[0,1] op_sel_hi:[1,1]" if sel else "op_sel:[0,0] op_sel_hi:[1,0]") for i in (0, 2)]
        return mul + [cvtpk(f"v{b}", f"v{b}", f"v{b+1}"), cvtpk(f"v{b+1}", f"v{b+2}", f"v{b+3}"), dsw64(addr, ('v', b), off, reg=reg)]
    F = []
    def f(n, *xs):
        for x in xs: F.append((n, x))
    nv = cfg.epi_nv
    for x in vr[:nv]: a(x)
    t = dense(tail); rest = vr[nv:]
    while rest or t:
        f(0, *rest[:2]); rest = rest[2:]
        if t: f(0, t.pop(0))
    mgw = [dsw128(MGW, ('a', O_SHH + 4 * p), 1024 * p, reg=MGR_) for p in range(4)]
    mlw = dsw64(MLW, ('v', ML_), 0, reg=MLR_)
    pub = [V("v_sub_f32", f"v{ML_}", 0, f"v{CI_SH}"), accr(f"v{ML_+1}", f"a{L_SH}")] + mgw + [mlw]
    c0n = cfg.epi_ng
    if cfg.epi_pub == 0: f(0, *pub)
    f(4, accr(f"v{LO}", f"a{L_OWN}"))
    f(0, smov(f"s{sT+2}", hex(cfg.thresh)), vrcp(f"v{RI}", f"v{LO}"))
    c0w = []
    for p in range(c0n):
        x = fin(O_OWN + 4 * p, RI, 0, AW, p * 32, OT, False); c0w.append(x[-1]); f(p + 5, *x)
    f(17, accr(f"v{LO+1}", f"a{L_OWN+4}"))
    k = 0
    for x in stamp(1, 3): a(x)
    for n, m in enumerate(mm):
        if n == 1 and q.done < 0: q.o.append(wait(lg=min(15, len(q.ds))))
        a(m)
        c = 0
        while c < 2 and k < len(F) and F[k][0] <= n:
            x = F[k][1]; a(x); k += 1
            if x.k == 'trans': c += 2
            elif x.k not in ('salu', 'wait'): c += 1
    for x in stamp(6, 3): a(x)
    for _, x in F[k:]: a(x)
    if cfg.epi_pub == 1:
        for x in pub: a(x)
    a(vrcp(f"v{RI+1}", f"v{LO+1}")); a(nop(0))
    def merge_in():
        q.wait_op(mlw); a(barrier())
        for p in range(4): a(dsr128(('v', RB + 4 * p), MGR, 1024 * p, reg=MGR_))
        a(dsr64(('v', MB), MLR, 0, reg=MLR_))
    if cfg.epi_pub == 0: merge_in()
    c0 = [fin(O_OWN + 4 * p, RI, 0, AW, p * 32, OT, True) for p in range(c0n, 8)]
    c1 = [fin(O_OWN + 32 + 4 * p, RI, 1, AW, p * 32 + 4352, OT1, True) for p in range(8)]
    G = []
    G += [V("v_max_f32", "v1", f"v{ML_}", f"v{MB}"), V("v_sub_f32", "v2", f"v{ML_}", "v1"), V("v_sub_f32", "v3", f"v{MB}", "v1"),
          vexp("v2", "v2"), vexp("v3", "v3"),
          vcmp("v_cmp_nle_f32", "s[54:55]", f"v{ML_+1}", f"s{sT+2}"), vcmp("v_cmp_nle_f32", "s[56:57]", f"v{MB+1}", f"s{sT+2}"),
          vmul("v1", "v2", f"v{ML_+1}"), V("v_fmac_f32", "v1", "v3", f"v{MB+1}", rmw=True),
          raw("s_or_b64 s[54:55], s[54:55], s[56:57]", 'salu', ['s54', 's55', 's56', 's57'], ['s54', 's55', 'scc']),
          vrcp("v1", "v1"),
          vcmp("v_cmp_nle_f32", "s[52:53]", f"v{LO}", f"s{sT+2}"), vcmp("v_cmp_nle_f32", "s[56:57]", f"v{LO+1}", f"s{sT+2}"),
          vmul(f"v{GA}", "v2", "v1"), vmul(f"v{GA+1}", "v3", "v1"),
          raw("s_or_b64 s[52:53], s[52:53], s[56:57]", 'salu', ['s52', 's53', 's56', 's57'], ['s52', 's53', 'scc'])]
    for g_ in c0:
        for x in g_: a(x)
        if cfg.epi_pub == 0:
            for _ in range(2):
                if G: a(G.pop(0))
    lastw = [y for y in q.ds if y.k == 'dsw' and y.x.get('reg') == OT][-1]
    for x in stamp(7, 3): a(x)
    sc = []
    if cfg.force_slow:
        sc += [raw("s_mov_b64 s[54:55], -1", 'salu', [], ['s54', 's55']), raw("s_mov_b64 s[52:53], -1", 'salu', [], ['s52', 's53'])]
    sc += [smov(f"s{SO2}", f"s{SO}"), smov(f"s{SO2+1}", f"s{SO+1}"), smov(f"s{SO2+3}", "0x20000"),
           scmp("s_cmp_lg_u64", "s[54:55]", 0), S("s_cselect_b32", f"s{SO2+2}", 0, 40960, w_scc=False, r_scc=True),
           S("s_add_u32", f"s{sT+1}", f"s{sW8192}", 4096),
           S("s_lshl_b32", f"s{sT+3}", f"s{sH}", 7), S("s_add_u32", f"s{sT+3}", f"s{sT+3}", f"s{sQS}"), S("s_add_u32", f"s{sT+4}", f"s{sT+3}", 2048)]
    R0 = Sb(1)
    for x in c1[0]: a(x)
    q.wait_op(lastw)
    for n in range(4): a(dsr128(('v', R0 + 4 * n), AR, 1088 * n, reg=OT))
    st0 = [vstore(('v', R0 + 4 * n), 4, VLIN, SO, f"s{sW8192}", 1024 * n, SF) for n in range(4)]
    if cfg.epi_pub == 1: merge_in()
    for p in range(1, 8):
        for x in c1[p]: a(x)
        if st0: a(st0.pop(0))
        for _ in range(3):
            if G: a(G.pop(0))
    for x in G: a(x)
    lastw = c1[7][-1]
    for x in st0: a(x)
    for x in sc: a(x)
    sh = []
    for p in range(4):
        b, r = O_SHL + 4 * p, RB + 4 * p
        x = [V("v_pk_mul_f32", f"v[{b+i}:{b+i+1}]", f"v[{b+i}:{b+i+1}]", f"v[{GA}:{GA+1}]", mods="op_sel:[0,0] op_sel_hi:[1,0]") for i in (0, 2)]
        x += [V("v_pk_fma_f32", f"v[{b+i}:{b+i+1}]", f"v[{r+i}:{r+i+1}]", f"v[{GA}:{GA+1}]", f"v[{b+i}:{b+i+1}]", mods="op_sel:[0,1,0] op_sel_hi:[1,1,1]") for i in (0, 2)]
        x += [cvtpk(f"v{b}", f"v{b}", f"v{b+1}"), cvtpk(f"v{b+1}", f"v{b+2}", f"v{b+3}"), dsw64(SW, ('v', b), p * 32, reg=STG)]
        sh.append(x)
    for x in sh[0] + sh[1]: a(x)
    q.wait_op(lastw)
    R1 = O_OWN
    for n in range(4, 8): a(dsr128(('v', R1 + 4 * (n - 4)), AR, 1088 * n, reg=OT1))
    for x in sh[2] + sh[3]: a(x)
    for n in range(4, 8): a(vstore(('v', R1 + 4 * (n - 4)), 4, VLIN, SO, f"s{sT+1}", 1024 * (n % 4), SF))
    q.wait_op(sh[3][-1])
    for n in range(2): a(dsr128(('v', O_SHL + 4 * n), SR, 1152 * n, reg=STG))
    for n in range(2): a(vstore(('v', O_SHL + 4 * n), 4, SG, SO2, f"s{sT+3+n}", 0, SF))
    for x in stamp(9): a(x)
    a(raw("s_or_b64 s[56:57], s[52:53], s[54:55]", 'salu', ['s52', 's53', 's54', 's55'], ['s56', 's57', 'scc']))
    if not (cfg.fakeqk or cfg.fakepv): a(branch("s_cbranch_scc1", "L_slow", ['scc']))
    return q.o

def store_tile_rows(Oreg, rinv, soff):
    o = []
    for db in range(4):
        b = Oreg + 16 * db
        for i in range(16): o.append(vmul(f"v{b+i}", f"v{rinv}", f"v{b+i}"))
        for m in range(8): o.append(cvtpk(f"v{b+m}", f"v{b+2*m}", f"v{b+2*m+1}"))
        for pr in range(2):
            r0 = b + 4 * pr
            o.append(swap32(f"v{r0}", f"v{r0+2}")); o.append(swap32(f"v{r0+1}", f"v{r0+3}"))
        for pr in range(2): o.append(vstore(('v', b + 4 * pr), 4, VQ, SO, soff, db * 64 + pr * 32))
    return o

def slow_path():
    o = []; a = o.append
    Kr, Sr, Vr, Or, Pr = 80, 112, 128, O_OWN, 72
    mreg, lreg = SLM, SLL
    a(label("L_slow"))
    a(wait(vm=0, lg=0))
    a(smov(f"s{SO+2}", 40960))
    a(V("v_bfe_u32", "v1", f"v{VLIN}", 4, 5)); a(V("v_lshrrev_b32", "v2", 9, f"v{VLIN}"))
    a(V("v_lshlrev_b32", f"v{VQ}", 4, "v2")); a(V("v_lshl_add_u32", f"v{VQ}", "v1", 8, f"v{VQ}"))
    a(scmp("s_cmp_lg_u64", "s[52:53]", 0)); a(branch("s_cbranch_scc0", "L_slow_sh", ['scc']))
    a(smov("s33", f"s{sW8192}"))
    a(raw("s_mov_b64 s[52:53], 0", 'salu', [], ['s52', 's53']))
    a(raw("s_mov_b64 s[56:57], -1", 'salu', [], ['s56', 's57']))
    a(branch("s_branch", "L_slow_tile"))
    a(label("L_slow_sh"))
    a(scmp("s_cmp_lg_u64", "s[54:55]", 0)); a(branch("s_cbranch_scc0", "L_end", ['scc']))
    a(scmp("s_cmp_lg_u32", f"s{sH}", 0)); a(branch("s_cbranch_scc1", "L_end", ['scc']))
    a(smov("s33", 32768))
    a(raw("s_mov_b64 s[54:55], 0", 'salu', [], ['s54', 's55']))
    a(S("s_lshl_b32", "s38", f"s{sW}", 4)); a(S("s_lshl_b32", "s56", "0xffff", "s38")); a(smov("s57", "s56"))
    a(label("L_slow_tile"))
    for j in range(8): a(vload(('v', Q_OWN + 4 * j), 4, VQ, SQ, "s33", 32 * j))
    a(wait(vm=0))
    for g in range(8): o.extend(scale4(Q_OWN + 4 * g, 240, pk=False))
    a(vmov(f"v{mreg}", "0xff800000"))
    def qk():
        for j in range(8): a(vload(('v', Kr + 4 * j), 4, VQ, SK, "s38", 32 * j))
        a(wait(vm=0))
        for j in range(8): a(mfma(('v', Sr), ('v', Kr + 4 * j), ('v', Q_OWN + 4 * j), 0 if j == 0 else ('v', Sr)))
        a(nop(15))
    a(smov("s38", 0))
    a(label("L_slow_p1"))
    qk()
    for i in range(16): a(V("v_max_f32", f"v{mreg}", f"v{mreg}", f"v{Sr+i}"))
    a(S("s_add_u32", "s38", "s38", 8192)); a(scmp("s_cmp_lt_u32", "s38", 262144)); a(branch("s_cbranch_scc1", "L_slow_p1", ['scc']))
    a(vmov("v1", f"v{mreg}")); a(nop(1)); a(swap32(f"v{mreg}", "v1")); a(V("v_max_f32", f"v{mreg}", f"v{mreg}", "v1"))
    a(vmov(f"v{lreg}", 0))
    for i in range(64): a(vmov(f"v{Or+i}", 0))
    a(V("v_lshrrev_b32", "v2", 8, f"v{VQ}"))
    a(V("v_bfe_u32", "v3", f"v{VQ}", 4, 1))
    a(V("v_lshlrev_b32", "v2", 1, "v2")); a(V("v_lshl_add_u32", "v2", "v3", 10, "v2"))
    a(smov("s38", 0))
    a(label("L_slow_p2"))
    qk()
    for i in range(16): a(V("v_sub_f32", f"v{Sr+i}", f"v{Sr+i}", f"v{mreg}"))
    for i in range(16): a(vexp(f"v{Sr+i}", f"v{Sr+i}"))
    a(nop(0))
    for i in range(16): a(vadd(f"v{lreg}", f"v{lreg}", f"v{Sr+i}"))
    for m in range(8): a(cvtpk(f"v{Pr+m}", f"v{Sr+2*m}", f"v{Sr+2*m+1}"))
    for ks in range(2):
        a(S("s_add_u32", "s39", "s38", ks * 4096))
        for db in range(4):
            for r in range(4):
                for e in range(2):
                    j = 2 * r + e
                    off = (8 * (j // 4) + j % 4) * 256 + db * 64
                    a(vload(('v', Kr + 8 * db + 2 * r + e), 1, 2, SV, "s39", off, op="buffer_load_ushort"))
        a(wait(vm=0))
        for db in range(4):
            for r in range(4): a(V("v_lshl_or_b32", f"v{Vr+4*db+r}", f"v{Kr+8*db+2*r+1}", 16, f"v{Kr+8*db+2*r}"))
        a(nop(1))
        for db in range(4): a(mfma(('v', Or + 16 * db), ('v', Vr + 4 * db), ('v', Pr + 4 * ks), ('v', Or + 16 * db)))
        a(nop(7))
    a(S("s_add_u32", "s38", "s38", 8192)); a(scmp("s_cmp_lt_u32", "s38", 262144)); a(branch("s_cbranch_scc1", "L_slow_p2", ['scc']))
    a(nop(15))
    a(vmov("v1", f"v{lreg}")); a(nop(1)); a(swap32(f"v{lreg}", "v1")); a(vadd(f"v{lreg}", f"v{lreg}", "v1"))
    a(vrcp("v5", f"v{lreg}")); a(nop(0))
    for x in store_tile_rows(Or, 5, "s33"):
        if x.k == 'vstore':
            a(raw("s_mov_b64 exec, s[56:57]", 'salu', ['s56', 's57'], ['exec'])); a(x); a(raw("s_mov_b64 exec, -1", 'salu', [], ['exec'])); a(nop(1))
        else: a(x)
    a(wait(vm=0))
    a(branch("s_branch", "L_slow_sh"))
    return o

def stamp_out():
    o = []
    if not cfg.stamps: return o
    a = o.append
    a(raw("s_waitcnt vmcnt(0)", 'wait', vm=0)); o += [raw("s_memtime s[80:81]", 'stampi'), raw("s_memrealtime s[84:85]", 'stampi')]
    a(raw("s_waitcnt lgkmcnt(0)", 'wait', lg=0))
    if cfg.stamp_wg >= 0:
        a(scmp("s_cmp_lg_u32", "s2", cfg.stamp_wg)); a(branch("s_cbranch_scc1", "L_end", ['scc']))
        a(scmp("s_cmp_lg_u32", f"s{sW}", 0)); a(branch("s_cbranch_scc1", "L_end", ['scc']))
        a(vmov("v1", 0))
    else:
        a(raw("s_load_dwordx2 s[58:59], s[0:1], 40", 'smem', [], R('s', 58, 2))); a(wait(lg=0))
        a(S("s_lshl_b32", "s33", "s2", 2)); a(S("s_add_u32", "s33", "s33", f"s{sW}")); a(S("s_lshl_b32", "s33", "s33", 6))
        a(vmov("v1", "s33"))
    def put(off, x, y):
        if y is None: a(vmov("v2", x))
        else:
            a(S("s_sub_u32", "s33", x, y)); a(vmov("v2", "s33"))
        a(raw(f"global_store_dword v1, v2, s[58:59] offset:{off}", 'vstore', ['v1', 'v2', 's58', 's59'], [], data=['v2']))
        a(nop(1))
    if cfg.fine != 9:
        for i in range(11): put(4 * i, f"s{60+2*i}", "s60")
    else: put(40, "s80", "s60")
    put(44, "s84", "s82"); put(48, "s86", "s82"); put(52, "s88", "s82"); put(56, "s82", None)
    return o

def build():
    global MEM, LGW
    MEM = build_mem_schedule()
    LGW = compute_lgkm_waits()
    pro = prologue()
    body = body_iter(0)
    epi = epilogue()
    slow = slow_path()
    static = pro + [raw(".p2align 6", 'label'), label("L_loop")] + body + [label("L_exit")] + stamp(8) + \
             ([raw("s_memrealtime s[88:89]", 'stampi')] if cfg.stamps else []) + epi + stamp_out() + \
             [label("L_end"), raw("s_endpgm", 'branch')] + slow
    trace = list(pro)
    for it in range(4):
        b = body_iter(2 * it, last=(it == 3))
        assert [x.t for x in b] == [x.t for x in body[:len(b)]], "loop body is not periodic"
        trace += b
    trace += epi
    errs = verify(trace, "main")
    errs += verify(slow, "slow", check_lds=False)
    return static, errs, (pro, body, epi)

HEADER = """; Kernarg layout for this problem (48 bytes, ptrs only, base s[0:1]):
; One workgroup per (batch, q-head), four waves.  Wave w owns q rows 32w..32w+31 against all keys and the 16 rows
; @launch grid=(256,1,1) block=(256,1,1) lds=163840
.amdgcn_target "amdgcn-amd-amdhsa--gfx950"
.text
.globl {n}_kernel
.p2align 8
.type {n}_kernel,@function
{n}_kernel:
"""
FOOTER = """
.section .rodata,"a"
.p2align 6
.amdhsa_kernel {n}_kernel
  .amdhsa_next_free_vgpr 512
  .amdhsa_next_free_sgpr 96
  .amdhsa_accum_offset 256
  .amdhsa_group_segment_fixed_size 0
  .amdhsa_kernarg_size 48
  .amdhsa_user_sgpr_count 2
  .amdhsa_user_sgpr_kernarg_segment_ptr 1
  .amdhsa_system_sgpr_workgroup_id_x 1
.end_amdhsa_kernel
"""

def main(argv=None):
    ap = argparse.ArgumentParser()
    ap.add_argument("-o", default="cdna_kernels/%s.s" % NAME)
    ap.add_argument("--stamps", action="store_true")
    ap.add_argument("--stamp-wg", type=int, default=0)
    ap.add_argument("--force-slow", action="store_true")
    ap.add_argument("--thresh", default=None)
    ap.add_argument("--store-flags", default="nt")
    ap.add_argument("--ld", default="nt"); ap.add_argument("--qld", default="nt")
    ap.add_argument("--fine", type=int, default=0)
    ap.add_argument("--qsplit", type=int, default=2); ap.add_argument("--qsfirst", type=int, default=4)
    ap.add_argument("--v0pos", type=int, default=1); ap.add_argument("--codepf", type=int, default=12)
    ap.add_argument("--lead", type=int, default=8); ap.add_argument("--lag", type=int, default=6)
    ap.add_argument("--dv", default=None); ap.add_argument("--dk", default=None)
    ap.add_argument("--b1", type=int, default=132); ap.add_argument("--b2", type=int, default=34); ap.add_argument("--inc", type=int, default=80)
    ap.add_argument("--sched", default="early")
    ap.add_argument("--drop", default=""); ap.add_argument("--nobar", action="store_true")
    ap.add_argument("--epi", default="8,2,1")
    ap.add_argument("--show", action="store_true")
    ap.add_argument("--nopvpair", action="store_true")
    ap.add_argument("--fakeqk", type=int, default=0); ap.add_argument("--fakepv", type=int, default=0)
    ap.add_argument("--alldma", action="store_true"); ap.add_argument("--qfirst", action="store_true"); ap.add_argument("--v0c", type=int, default=1)
    args = ap.parse_args(argv)
    cfg.stamps = args.stamps; cfg.stamp_wg = args.stamp_wg; cfg.force_slow = args.force_slow; cfg.store_flags = args.store_flags
    cfg.ld = args.ld; cfg.qld = args.qld; cfg.fine = args.fine; cfg.qsplit = args.qsplit; cfg.qsfirst = args.qsfirst
    cfg.pvpair = not args.nopvpair
    cfg.fakeqk = args.fakeqk; cfg.fakepv = args.fakepv
    cfg.alldma = args.alldma or args.qfirst; cfg.qfirst = args.qfirst; cfg.v0c = args.v0c
    cfg.v0pos = args.v0pos; cfg.codepf = args.codepf
    cfg.LEAD = args.lead; cfg.LAG = args.lag; cfg.sched = args.sched
    cfg.B1 = args.b1; cfg.B2 = args.b2; cfg.inc_slot = args.inc
    cfg.drop = tuple(x for x in args.drop.split(",") if x); cfg.nobar = args.nobar
    cfg.epi_nv, cfg.epi_ng, cfg.epi_pub = [int(x) for x in args.epi.split(",")]
    def pick(lo, n, spacing):
        out = []; g = lo
        while len(out) < n:
            if sm_kind(g) is None and (not out or g - out[-1] >= spacing): out.append(g)
            g += 1
        return tuple(out)
    cfg.dk_slots = tuple(int(x) for x in args.dk.split(",")) if args.dk else (136, 140, 144, 152, 160, 168, 176, 182)
    cfg.dv_slots = tuple(int(x) for x in args.dv.split(",")) if args.dv else pick(cfg.B2 + 2, 8, 4)
    if args.thresh: cfg.thresh = int(args.thresh, 0)
    static, errs, parts = build()
    if args.show:
        for s in range(STEP): print(s, sm_kind(s) or "", LGW[s], MEM[s])
    for e in errs[:40]: print("ERR", e)
    cnt = lambda L: sum(1 for x in L if x.k != 'label')
    print("dk", cfg.dk_slots, "dv", cfg.dv_slots, "sharing", cfg.nshare)
    print("errors:", len(errs), " instructions:", cnt(static), " pro/body/epi:", [cnt(p) for p in parts])
    open(args.o, "w").write(HEADER.format(n=NAME) + text_of(static) + FOOTER.format(n=NAME))

if __name__ == "__main__": main()
```

```python
import re

def R(f, b, n=1):
    return [f"{f}{b+i}" for i in range(n)]
def T(f, b, n=1):
    return f"{f}{b}" if n == 1 else f"{f}[{b}:{b+n-1}]"

class I:
    __slots__ = ('t', 'k', 'r', 'w', 'x')
    def __init__(self, t, k, r=(), w=(), **x):
        self.t = t; self.k = k; self.r = tuple(r); self.w = tuple(w); self.x = x
    def __repr__(self): return self.t

def mfma(D, A, B, C):
    ct = "0" if C == 0 else T(C[0], C[1], 16)
    r = R(A[0], A[1], 4) + R(B[0], B[1], 4) + ([] if C == 0 else R(C[0], C[1], 16))
    return I(f"v_mfma_f32_32x32x16_bf16 {T(D[0],D[1],16)}, {T(A[0],A[1],4)}, {T(B[0],B[1],4)}, {ct}", 'mfma',
             r, R(D[0], D[1], 16), passes=8, cls='xdl', C=([] if C == 0 else R(C[0], C[1], 16)),
             AB=R(A[0], A[1], 4) + R(B[0], B[1], 4))
def mfma16(D, A, B, C):
    ct = "0" if C == 0 else T(C[0], C[1], 4)
    r = R(A[0], A[1], 4) + R(B[0], B[1], 4) + ([] if C == 0 else R(C[0], C[1], 4))
    return I(f"v_mfma_f32_16x16x32_bf16 {T(D[0],D[1],4)}, {T(A[0],A[1],4)}, {T(B[0],B[1],4)}, {ct}", 'mfma',
             r, R(D[0], D[1], 4), passes=4, cls='xdl', C=([] if C == 0 else R(C[0], C[1], 4)),
             AB=R(A[0], A[1], 4) + R(B[0], B[1], 4))
def mfma16_f32(D, a, b, C):
    ct = "0" if C == 0 else T(C[0], C[1], 4)
    r = [f"v{a}", f"v{b}"] + ([] if C == 0 else R(C[0], C[1], 4))
    return I(f"v_mfma_f32_16x16x4_f32 {T(D[0],D[1],4)}, v{a}, v{b}, {ct}", 'mfma', r, R(D[0], D[1], 4),
             passes=8, cls='sgemm', C=([] if C == 0 else R(C[0], C[1], 4)), AB=[f"v{a}", f"v{b}"])
def swap16(a, b): return I(f"v_permlane16_swap_b32 {a}, {b}", 'perm', [a, b], [a, b])
def mfma_f32(D, a, b, C):
    ct = "0" if C == 0 else T(C[0], C[1], 16)
    r = [f"v{a}", f"v{b}"] + ([] if C == 0 else R(C[0], C[1], 16))
    return I(f"v_mfma_f32_32x32x2_f32 {T(D[0],D[1],16)}, v{a}, v{b}, {ct}", 'mfma', r, R(D[0], D[1], 16),
             passes=16, cls='sgemm', C=([] if C == 0 else R(C[0], C[1], 16)), AB=[f"v{a}", f"v{b}"])
def _regs(*ops):
    out = []
    for o in ops:
        if isinstance(o, str):
            m = re.fullmatch(r'-?\|?([vas])(\d+)\|?', o)
            if m: out.append(m.group(1) + m.group(2)); continue
            m = re.fullmatch(r'([vas])\[(\d+):(\d+)\]', o)
            if m: out += R(m.group(1), int(m.group(2)), int(m.group(3)) - int(m.group(2)) + 1); continue
            if o in ('vcc', 'exec', 'm0', 'scc'): out.append(o)
    return out
def V(op, d, *srcs, trans=False, rmw=False, extra_r=(), extra_w=(), mods=""):
    srcs = [str(s) for s in srcs]
    t = f"{op} {d}, " + ", ".join(srcs) + (" " + mods if mods else "")
    r = _regs(*srcs) + list(extra_r) + (_regs(d) if rmw else [])
    return I(t, 'trans' if trans else 'valu', r, _regs(d) + list(extra_w))
def vexp(d, s): return V("v_exp_f32", d, s, trans=True)
def vrcp(d, s): return V("v_rcp_f32", d, s, trans=True)
def vadd(d, a, b): return V("v_add_f32", d, a, b)
def vmul(d, a, b): return V("v_mul_f32", d, a, b)
def cvtpk(d, a, b): return V("v_cvt_pk_bf16_f32", d, a, b)
def vmov(d, s): return V("v_mov_b32", d, s)
def accw(d, s): return V("v_accvgpr_write_b32", d, s)
def accr(d, s): return V("v_accvgpr_read_b32", d, s)
def swap32(a, b): return I(f"v_permlane32_swap_b32 {a}, {b}", 'perm', [a, b], [a, b])
def vcmp(op, d, a, b):
    return I(f"{op} {d}, {a}, {b}", 'valu', _regs(a, b), _regs(d) if d != 'vcc' else ['vcc'])
def readfirst(s, v): return I(f"v_readfirstlane_b32 {s}, {v}", 'valu', [v], [s], rfl=True)
def S(op, d, *srcs, w_scc=True, r_scc=False):
    srcs = [str(s) for s in srcs]
    t = f"{op} {d}" + ("".join(", " + s for s in srcs))
    return I(t, 'salu', _regs(*srcs) + (['scc'] if r_scc else []), _regs(d) + (['scc'] if w_scc else []))
def smov(d, s): return S("s_mov_b32", d, s, w_scc=False)
def scmp(op, a, b): return I(f"{op} {a}, {b}", 'salu', _regs(str(a), str(b)), ['scc'])
def dsr128(D, addr, off, reg=None):
    return I(f"ds_read_b128 {T(D[0],D[1],4)}, v{addr}" + (f" offset:{off}" if off else ""), 'dsr', [f"v{addr}"], R(D[0], D[1], 4), reg=reg)
def dsr64(D, addr, off, reg=None):
    return I(f"ds_read_b64 {T(D[0],D[1],2)}, v{addr}" + (f" offset:{off}" if off else ""), 'dsr', [f"v{addr}"], R(D[0], D[1], 2), reg=reg)
def dstr(D, addr, off, reg=None):
    return I(f"ds_read_b64_tr_b16 {T(D[0],D[1],2)}, v{addr}" + (f" offset:{off}" if off else ""), 'dsr', [f"v{addr}"], R(D[0], D[1], 2), reg=reg)
def dsw128(addr, Sr, off, reg=None):
    return I(f"ds_write_b128 v{addr}, {T(Sr[0],Sr[1],4)}" + (f" offset:{off}" if off else ""), 'dsw', [f"v{addr}"] + R(Sr[0], Sr[1], 4), [], reg=reg)
def dsw64(addr, Sr, off, reg=None):
    return I(f"ds_write_b64 v{addr}, {T(Sr[0],Sr[1],2)}" + (f" offset:{off}" if off else ""), 'dsw', [f"v{addr}"] + R(Sr[0], Sr[1], 2), [], reg=reg)
def dma(voff, srd, soff, off, reg=None, flags=""):
    so = soff if isinstance(soff, str) else str(soff)
    return I(f"buffer_load_dwordx4 v{voff}, s[{srd}:{srd+3}], {so} offen" + (f" offset:{off}" if off else "") + (" " + flags if flags else "") + " lds",
             'dma', [f"v{voff}", 'm0'] + R('s', srd, 4) + _regs(so), [], reg=reg)
def vload(D, n, voff, srd, soff, off, flags="", op=None):
    so = soff if isinstance(soff, str) else str(soff)
    op = op or {1: "buffer_load_dword", 2: "buffer_load_dwordx2", 4: "buffer_load_dwordx4"}[n]
    return I(f"{op} {T(D[0],D[1],n)}, v{voff}, s[{srd}:{srd+3}], {so} offen" + (f" offset:{off}" if off else "") + (" " + flags if flags else ""),
             'vload', [f"v{voff}"] + R('s', srd, 4) + _regs(so), R(D[0], D[1], n))
def vstore(Sr, n, voff, srd, soff, off, flags=""):
    so = soff if isinstance(soff, str) else str(soff)
    op = {1: "buffer_store_dword", 2: "buffer_store_dwordx2", 4: "buffer_store_dwordx4"}[n]
    return I(f"{op} {T(Sr[0],Sr[1],n)}, v{voff}, s[{srd}:{srd+3}], {so} offen" + (f" offset:{off}" if off else "") + (" " + flags if flags else ""),
             'vstore', [f"v{voff}"] + R('s', srd, 4) + _regs(so) + R(Sr[0], Sr[1], n), [], data=R(Sr[0], Sr[1], n), wide=(n >= 3))
def wait(vm=None, lg=None):
    p = []
    if vm is not None: p.append(f"vmcnt({vm})")
    if lg is not None: p.append(f"lgkmcnt({lg})")
    return I("s_waitcnt " + " ".join(p), 'wait', vm=vm, lg=lg)
def barrier(): return I("s_barrier", 'bar')
def nop(n): return I(f"s_nop {n}", 'nop', n=n)
def label(name): return I(f"{name}:", 'label')
def branch(op, target, r=()): return I(f"{op} {target}", 'branch', r)
def raw(t, k='salu', r=(), w=(), **x): return I(t, k, r, w, **x)
def comment(t): return I(f"; {t}", 'label')

class VerifyError(Exception): pass

def verify(trace, name="trace", check_lds=True, verbose=False):
    errs = []
    real = [x for x in trace if x.k != 'label']
    def states_between(i, j):
        n = 0
        for q in range(i + 1, j):
            n += (real[q].x['n'] + 1) if real[q].k == 'nop' else 1
        return n
    VAL = ('valu', 'trans', 'perm')
    for j, c in enumerate(real):
        cr, cw = set(c.r), set(c.w)
        n = 0
        for i in range(j - 1, max(-1, j - 26), -1):
            p = real[i]
            if n > 21: break
            pw, pr = set(p.w), set(p.r)
            need = 0; why = None
            def req(k, s):
                nonlocal need, why
                if k > need: need, why = k, s
            if p.k in VAL:
                vw = {x for x in pw if x[0] in 'va' and x != 'vcc'}
                sw = {x for x in pw if x[0] == 's' and x != 'scc' or x == 'vcc'}
                if c.k == 'mfma' and vw & cr: req(2, "VALU->MFMA read")
                if c.k == 'perm' and vw & cr: req(2, "VALU->permlane")
                if c.x.get('rfl') and vw & cr: req(1, "VALU->readfirstlane")
                if p.k == 'trans' and c.k in ('valu', 'perm') and vw & cr: req(1, "trans->valu")
                if p.k == 'trans' and c.k in ('dsw', 'vstore', 'mfma') and vw & cr: req(2, "trans->mem/mfma (conservative)")
                if sw & cr:
                    if c.k in VAL: req(2, "VALU sgpr/vcc->VALU read")
                    if c.k in ('dma', 'vload', 'vstore'): req(5, "VALU sgpr->VMEM")
                    if c.k in ('salu', 'branch'): req(1, "VALU sgpr->SALU (conservative)")
            if p.k == 'mfma':
                ps = p.x['passes']; D = pw
                xdl = p.x['cls'] == 'xdl'
                if c.k == 'mfma':
                    cC = set(c.x['C']); cAB = set(c.x['AB'])
                    if cAB & D: req({4: 8, 8: 12, 16: 20}[ps] if xdl else {8: 10, 16: 18}[ps], "MFMA D->MFMA A/B")
                    if cC & D:
                        exact = (cC == D and c.x['cls'] == p.x['cls'])
                        if not exact:
                            if xdl: req({4: 6, 8: 10}[ps], "XDL D->overlap SrcC")
                            elif c.x['cls'] == 'sgemm': req({8: 8, 16: 16}[ps], "SGEMM D->SGEMM C overlap")
                            else: req(4, "SGEMM D->XDL C (padded)")
                    if (cw & D) and not (cC & D):
                        req({4: 6, 8: 10, 16: 18}[ps], "MFMA D WAW MFMA")
                else:
                    k = ({4: 8, 8: 12}[ps] if xdl else {8: 10, 16: 18}[ps])
                    if c.k in VAL and ((cr | cw) & D): req(k, "MFMA D->VALU")
                    if c.k in ('dsw', 'vstore', 'dsr', 'vload', 'dma') and ((cr | cw) & D): req(k, "MFMA D->mem")
                    pc = set(p.x['C'])
                    if c.k in VAL and (cw & pc) and xdl: req({4: 3, 8: 7}[ps], "XDL SrcC WAR VALU")
            if p.k == 'salu' and 'm0' in pw and c.k == 'dma': req(1, "M0->DMA")
            if p.k == 'vstore' and p.x.get('wide') and c.k in VAL and (cw & set(p.x['data'])): req(2, "store data WAR")
            if p.k == 'vstore' and p.x.get('wide') and c.k in ('dsr', 'vload') and (cw & set(p.x['data'])): req(1, "store data WAR(load)")
            if need > n:
                errs.append(f"[{name}] hazard '{why}': '{p.t}' -> '{c.t}' has {n} states, needs {need} (idx {i}->{j})")
            n += (p.x['n'] + 1) if p.k == 'nop' else 1
    if check_lds:
        written = {'v0', 's0', 's1', 's2', 'exec', 'm0x'}
        seen = set()
        for j, c in enumerate(real):
            for r in c.r:
                if r not in written and r not in seen and r not in ('vcc', 'scc'):
                    seen.add(r); errs.append(f"[{name}] '{c.t}' (idx {j}) reads {r} before anything wrote it")
            written.update(c.w)
    lgq = []
    vmq = []
    pend = {}
    seq = 0
    bufs = {}
    def B(b):
        return bufs.setdefault(b, dict(cur=None, out=0, landed=None, visible=None, reads_out=0, unsafe=False, wr_out=0))
    for j, c in enumerate(real):
        if c.k == 'wait':
            if c.x.get('lg') is not None:
                while len(lgq) > c.x['lg']:
                    o = lgq.pop(0)
                    for w in o.w:
                        if pend.get(w) is o: del pend[w]
                    rg = o.x.get('reg')
                    if rg is not None:
                        b = B(rg[0])
                        if o.k == 'dsr': b['reads_out'] -= 1
                        else:
                            b['wr_out'] -= 1
                            if b['wr_out'] == 0 and b['out'] == 0: b['landed'] = b['cur']
            if c.x.get('vm') is not None:
                while len(vmq) > c.x['vm']:
                    o = vmq.pop(0)
                    for w in o.w:
                        if pend.get(w) is o: del pend[w]
                    if o.k == 'dma' and o.x.get('reg') is not None:
                        b = B(o.x['reg'][0]); b['out'] -= 1
                        if b['out'] == 0 and b.get('expect_more', 0) == 0: b['landed'] = b['cur']
            continue
        if c.k == 'bar':
            for b in bufs.values():
                if b['out'] == 0 and b['wr_out'] == 0 and b['landed'] == b['cur']: b['visible'] = b['landed']
                b['unsafe'] = b['reads_out'] > 0
                b['read_since_bar'] = False
            continue
        for r in c.r:
            if r in pend: errs.append(f"[{name}] '{c.t}' (idx {j}) reads {r} with load outstanding: '{pend[r].t}'")
        for w in c.w:
            if w in pend and not (c.k in ('dsr',) and pend[w].k == 'dsr') and not (c.k == 'vload' and pend[w].k == 'vload'):
                errs.append(f"[{name}] '{c.t}' (idx {j}) writes {w} with load outstanding: '{pend[w].t}'")
        if c.k in ('dsr', 'dsw', 'smem'):
            lgq.append(c)
            if len(lgq) > 15 + 48: pass
            for w in c.w: pend[w] = c
        if c.k in ('vload', 'dma', 'vstore'):
            vmq.append(c)
            if len(vmq) > 63: errs.append(f"[{name}] vmcnt overflow at idx {j}")
            for w in c.w: pend[w] = c
        rg = c.x.get('reg')
        if check_lds and rg is not None:
            b = B(rg[0])
            if c.k == 'dsr':
                ok = (b['visible'] == rg[1]) or (rg[2] and b['landed'] == rg[1])
                if not ok: errs.append(f"[{name}] LDS read '{c.t}' (idx {j}) of {rg}: landed={b['landed']} visible={b['visible']}")
                b['reads_out'] += 1; b['read_since_bar'] = True
            elif c.k in ('dma', 'dsw'):
                if b['cur'] != rg[1]:
                    if b['unsafe'] or b.get('read_since_bar', False):
                        errs.append(f"[{name}] LDS WAR: '{c.t}' (idx {j}) overwrites {rg[0]} (content {b['cur']}) without barrier after its reads")
                    b['cur'] = rg[1]; b['landed'] = None; b['visible'] = None
                else:
                    b['landed'] = None; b['visible'] = None
                if c.k == 'dma': b['out'] += 1
                else: b['wr_out'] += 1
    return errs

def text_of(stream):
    out = []
    for x in stream:
        if x.k == 'label': out.append(x.t)
        else: out.append("    " + x.t)
    return "\n".join(out)

def dsr2st64_64(D, addr, o0, o1, reg=None):
    return I(f"ds_read2st64_b64 {T(D[0],D[1],4)}, v{addr} offset0:{o0} offset1:{o1}", 'dsr', [f"v{addr}"], R(D[0], D[1], 4), reg=reg)
def dsr2_32(D, addr, o0, o1, reg=None):
    return I(f"ds_read2_b32 {T(D[0],D[1],2)}, v{addr} offset0:{o0} offset1:{o1}", 'dsr', [f"v{addr}"], R(D[0], D[1], 2), reg=reg)
```

```python
import sys, argparse, re
from asmlib import *

NAME = "standalone__gqa_softmax__near_ridge"
STEP = 170

class Cfg:
    LEAD = 8; LAG = 6
    thresh = 0x53800000
    stamps = False; stamp_wg = 0; fine = 0
    force_slow = False
    store_flags = "nt"; ld = "nt"; qld = "nt"
    qsplit = 2; v0pos = 1; codepf = 12
    B1 = 140; B2 = 34
    dk_slots = None; dv_slots = None
    inc_slot = 80
    sched = "early"; spread = True; drop = (); nobar = False
    epi_nv = 8; epi_ng = 0; epi_pub = 0
    fakeqk = 0; fakepv = 0; pvpair = True
    alldma = False; qfirst = False; v0c = 1
cfg = Cfg()

MGW, MGR, MLW, MLR = 8, 9, 10, 11
KDMA = 12
VDMA = 16
AW, VLIN, AR, SW, SR, SG = 18, 19, 20, 21, 22, 23
KADDR = 24
VADDR = 32
P = 48
S0 = 72
CI_OWN, CI_SH = 120, 128
VQRT = 132
MM = 133
TMPS = 136
Q_OWN = 144
O_OWN = 176
O_SHL = 240
VQ, SLM, SLL = 4, 6, 7
Q_SH, KF, VF, O_SHH, L_OWN, L_SH, ONES = 0, 16, 48, 80, 96, 104, 108
def Sb(b): return S0 + 24 * b
def Pb(b): return P + 12 * b
def osh(p): return ('v', O_SHL + 4 * p) if p < 4 else ('a', O_SHH + 4 * (p - 4))
sW, SQ, SK, SV, SO = 3, 8, 12, 16, 20
SO2 = 4
sW8192, sOff0, sOff1, sC, sMask = 24, 25, 26, 27, 28
sT = 29
sKill = 34
sH = 35
sM0 = 44
sC2 = 52
sQS, sQO1 = 90, 91
SCALE_BITS = 0x3e0293ee
LDS_K1, LDS_K0, LDS_X, LDS_V0, LDS_V1 = 0, 32768, 65536, 98304, 131072
LDS_MG = LDS_X
LDS_ML = LDS_X + 16384
DROP = 0x30000
def koff(buf): return LDS_K0 if buf == 0 else LDS_K1

NCOL = [3, 3, 2, 2]
QK0 = [0, 42, 93, 136]
PV0 = [66, 109, 152, 194]
EX0 = [7, 55, 103, 143]
def qk_mfma(pos, k, first_c=True):
    x, j = divmod(k, 4); a, col = x % 2, x // 2
    D = ('v', Sb(pos % 2) + 4 * x)
    B = ('a', Q_SH + 4 * j) if col == 2 else ('v', Q_OWN + 16 * col + 4 * j)
    C = (('v', CI_SH if col == 2 else CI_OWN + 4 * col) if first_c else 0) if j == 0 else D
    return mfma16(D, ('a', KF + 16 * a + 4 * j), B, C)
def ones_mfma(pos, col):
    Lr = L_SH if col == 2 else L_OWN + 4 * col
    return mfma16(('a', Lr), ('a', ONES), ('v', Pb(pos % 2) + 4 * col), ('a', Lr))
def pv_mfma(pos, p, col):
    O = osh(p) if col == 2 else ('v', O_OWN + 32 * col + 4 * p)
    return mfma16(O, ('a', VF + 4 * p), ('v', Pb(pos % 2) + 4 * col), O)
def pv_order(pos):
    n = NCOL[pos]
    if cfg.pvpair: return [(p + e, col) for p in range(0, 8, 2) for col in range(n) for e in range(2)]
    return [(p, col) for p in range(8) for col in range(n)]
def pv_block(pos):
    n = NCOL[pos]
    if cfg.pvpair and not cfg.fakepv: return [pv_mfma(pos, p, col) for p, col in pv_order(pos)] + [ones_mfma(pos, col) for col in range(n)]
    if cfg.fakepv == 3:
        out = []
        for p in range(0, 8, 2):
            for col in range(n):
                for e in range(2):
                    O = osh(p) if col == 2 else ('v', O_OWN + 32 * col + 4 * p)
                    out.append(mfma16(O, ('a', VF + 4 * (p + e)), ('v', Pb((pos + e) % 2) + 4 * col), O))
        return out + [ones_mfma(pos, col) for col in range(n)]
    if cfg.fakepv == 4:
        out = []
        for p in range(0, 8, 2):
            for col in range(n):
                for e in range(2):
                    O = osh(p + e) if col == 2 else ('v', O_OWN + 32 * col + 4 * (p + e))
                    out.append(mfma16(O, ('a', VF + 4 * (p + e)), ('v', Pb(pos % 2) + 4 * col), O))
        return out + [ones_mfma(pos, col) for col in range(n)]
    if cfg.fakepv == 2:
        out = []
        for p in range(0, 8, 2):
            for col in range(n):
                for e in range(2):
                    O = osh(p) if col == 2 else ('v', O_OWN + 32 * col + 4 * p)
                    out.append(mfma16(O, ('a', VF + 4 * (p + e)), ('v', Pb(pos % 2) + 4 * col), O))
        return out + [ones_mfma(pos, col) for col in range(n)]
    if cfg.fakepv == 1: return [pv_mfma(pos, p, col) for col in range(n) for p in range(8)] + [ones_mfma(pos, col) for col in range(n)]
    return [pv_mfma(pos, p, col) for p in range(8) for col in range(n)] + [ones_mfma(pos, col) for col in range(n)]

def mfma_at(step, g):
    for pos in range(4):
        if QK0[pos] <= g < QK0[pos] + 8 * NCOL[pos]:
            k = g - QK0[pos]
            if cfg.fakeqk == 1:
                n = NCOL[pos]; aj, col = divmod(k, n); a_, j = divmod(aj, 4)
                k = 4 * (2 * col + a_) + j
            return qk_mfma(pos, k)
        for base in (PV0[pos], PV0[pos] - STEP):
            if base <= g < base + 9 * NCOL[pos]: return pv_block(pos)[g - base]
    raise Exception(g)

def sm_ops(step, g):
    ops = []
    for pos in range(4):
        for gg in (g, g + STEP):
            rel = gg - EX0[pos]; n = 8 * NCOL[pos]; S_ = Sb(pos % 2)
            if 0 <= rel <= 2 * (n - 1) and rel % 2 == 0: ops.append(vexp(f"v{S_+rel//2}", f"v{S_+rel//2}"))
            if 3 <= rel <= 2 * (n - 1) + 1 and rel % 4 == 3:
                m = (rel - 3) // 4
                ops.append(cvtpk(f"v{Pb(pos % 2)+m}", f"v{S_+2*m}", f"v{S_+2*m+1}"))
    return ops
def sm_pos(x):
    return None
def sm_kind(g):
    o = sm_ops(2, g % STEP)
    return 'exp' if any(x.k == 'trans' for x in o) else 'cvt' if o else None

def free_gaps(lo, hi): return [g for g in range(lo, hi) if sm_kind(g) is None]

def build_mem_schedule():
    ops = []
    L = cfg.LEAD; B1, B2 = cfg.B1, cfg.B2
    def add(d, e, l):
        assert e <= l, (d, e, l)
        ops.append([d, e, l])
    for a in range(2):
        for j in range(4):
            o = 4 * a + j
            for pos in range(4):
                prev = (pos - 1) % 4
                pst = QK0[prev] - (STEP if pos == 0 else 0)
                last = pst + (16 if NCOL[prev] == 3 else 8) + o
                use = QK0[pos] + o
                if pos == 0: add(('K', 0, a, j), max(last + STEP, B1 + 1), STEP + use - L)
                elif pos == 3: add(('K', 3, a, j), last, min(use - L, B1 - L))
                else: add(('K', pos, a, j), last, use - L)
    for pos in range(4):
        prev = (pos - 1) % 4
        pst = PV0[prev] - (STEP if pos == 0 else 0)
        for p in range(8):
            last = pst + max(i for i, (pp, cc) in enumerate(pv_order(prev)) if pp == p)
            use = PV0[pos] + min(i for i, (pp, cc) in enumerate(pv_order(pos)) if pp == p)
            e, l = last, use - L
            if pos == 0: e = max(e, B2 + 1)
            if pos == 3: l = min(l, STEP + B2 - L)
            for hh in range(2): add(('V', pos, p, hh), e, l)
    sched = {s: [] for s in range(STEP)}
    for n, sl in enumerate(cfg.dk_slots): sched[sl % STEP].append(('DK', n))
    for n, sl in enumerate(cfg.dv_slots): sched[sl % STEP].append(('DV', n))
    def cap(s):
        k = sm_kind(s)
        c = 0 if k == 'exp' else 1 if k == 'cvt' else 2
        if s in (B1, B2): c = 0
        return c
    for s in sched: assert len(sched[s]) <= cap(s), (s, sched[s], cap(s))
    fixed0 = {g: list(v) for g, v in sched.items()}
    busy = lambda g: any(d[0] in ('DK', 'DV') for d in fixed0[g])
    by_gap = {}
    for g in range(STEP):
        for k in range(cap(g) - len(sched[g])): by_gap.setdefault(g, []).append((g, k))
    def cands(e, l):
        ts = list(range(e, l + 1))
        if cfg.sched == "late": ts.reverse()
        elif cfg.sched == "mid":
            mid = (e + l) / 2; ts.sort(key=lambda t: abs(t - mid))
        first = [sl for t in ts for sl in by_gap.get(t % STEP, []) if sl[1] == 0 and not busy(sl[0])]
        second = [sl for t in ts for sl in by_gap.get(t % STEP, []) if sl[1] > 0 and not busy(sl[0])]
        last = [sl for t in ts for sl in by_gap.get(t % STEP, []) if busy(sl[0])]
        return first + second, last
    order = sorted(range(len(ops)), key=lambda i: (ops[i][2] - ops[i][1], ops[i][2]))
    match = {}
    full = {i: cands(ops[i][1], ops[i][2]) for i in order}
    cand = {i: full[i][0] for i in order}
    def aug(i, seen):
        for sl in cand[i]:
            if sl not in match: match[sl] = i; return True
        for sl in cand[i]:
            if sl in seen: continue
            seen.add(sl)
            if aug(match[sl], seen): match[sl] = i; return True
        return False
    sys.setrecursionlimit(10000)
    left = [i for i in order if not aug(i, set())]
    cand = {i: full[i][0] + full[i][1] for i in order}
    for i in left:
        if not aug(i, set()): raise Exception(f"cannot place {ops[i]}")
    cfg.nshare = len(left)
    for sl, i in match.items(): sched[sl[0]].append(ops[i][0])
    dl = {tuple(o[0]): o[2] for o in ops}
    for s in sched: sched[s].sort(key=lambda d: (1, 0) if d[0] in ('DK', 'DV') else (0, (dl[d] - s) % STEP))
    return sched

MEM = LGW = None

def mem_ins(step, g, d):
    if d[0] == 'K':
        _, pos, a, j = d
        cs = step + 1 if pos == 0 else step
        buf = cs % 2
        return dsr128(('a', KF + 16 * a + 4 * j), KADDR + 4 * (pos // 2) + j, koff(buf) + 8192 * (pos % 2) + 4096 * a,
                      reg=(('K', buf), cs, False) if cs < 8 else None)
    if d[0] == 'V':
        _, pos, p, hh = d
        cs = step - 1 if (pos == 3 and g < PV0[3] - STEP + 20 and g <= cfg.B2) else step
        buf = cs % 2
        return dstr(('a', VF + 4 * p + 2 * hh), VADDR + 8 * (pos // 2) + p, buf * 32768 + 8192 * (pos % 2) + hh * 4096,
                    reg=(('V', buf), cs, False) if 0 <= cs < 8 else None)
    if d[0] == 'DK':
        n = d[1]; cs = step + 2 if g > cfg.B1 else step + 1; buf = cs % 2
        return dma(KDMA + n % 4, SK, f"s{sOff0 if n < 4 else sOff1}", 1024 * (n % 4), reg=(('K', buf), cs, True) if cs < 8 else None, flags=cfg.ld)
    if d[0] == 'DV':
        n = d[1]; cs = step + 1; buf = cs % 2
        return dma(VDMA + n % 2, SV, f"s{sOff0 if n < 4 else sOff1}", 1024 * (n % 4), reg=(('V', buf), cs, True) if cs < 8 else None, flags=cfg.ld)

def m0_val_reg(kv, buf, grp): return sM0 + (0 if kv == 'K' else 4) + 2 * buf + grp

def scalar_ops(step, g):
    o = []
    def m0(kv, buf, grp): return S("s_max_u32", "m0", f"s{m0_val_reg(kv, buf, grp)}", f"s{sKill}")
    dk, dv = cfg.dk_slots, cfg.dv_slots
    assert max(dk) < STEP + cfg.B2 and min(dk) > cfg.B1 + 1 and max(dv) < cfg.inc_slot and min(dv) > cfg.B2 + 1
    kbuf = lambda gg: (step if gg > cfg.B1 else step + 1) % 2
    if g == (dk[0] - 1) % STEP: o.append(m0('K', kbuf(g), 0))
    if g == (dk[4] - 1) % STEP: o.append(m0('K', kbuf(g), 1))
    if g == dv[0] - 1: o.append(m0('V', (step + 1) % 2, 0))
    if g == dv[4] - 1: o.append(m0('V', (step + 1) % 2, 1))
    x = cfg.inc_slot
    if g == x + 1: o.append(S("s_add_u32", f"s{sOff0}", f"s{sOff0}", "0x8000"))
    if g == x + 3: o.append(S("s_add_u32", f"s{sOff1}", f"s{sOff1}", "0x8000"))
    if g == x + 5: o.append(scmp("s_cmp_ge_u32", f"s{sOff0}", "0x40000"))
    if g == x + 7: o.append(S("s_cselect_b32", f"s{sKill}", hex(DROP), 0, w_scc=False, r_scc=True))
    return o

def gap_mem(step, g): return [mem_ins(step, g, d) for d in MEM[g] if d[0] not in cfg.drop]

def compute_lgkm_waits():
    seq = []; prod = {}; covered = -1; res = {}
    for t in range(0, 6 * STEP):
        st, sl = divmod(t, STEP)
        nst, nsl = divmod(t + 1, STEP)
        nm = mfma_at(nst, nsl)
        need = max([prod.get(r, -1) for r in nm.x['AB']] + [-1])
        if sl == cfg.B1: need = max([need] + [i for i, (tt, d) in enumerate(seq) if d == 'K'])
        if sl == cfg.B2: need = max([need] + [i for i, (tt, d) in enumerate(seq) if d == 'V'])
        n = None
        if need > covered:
            tgt = need
            for i in range(len(seq) - 1, -1, -1):
                if seq[i][0] <= t - cfg.LAG: tgt = max(tgt, i); break
            n = len(seq) - 1 - tgt
            if n > 15: tgt = len(seq) - 1 - 15; n = 15
            covered = tgt
        res[(st, sl)] = n
        for d in MEM[sl]:
            if d[0] in ('DK', 'DV') or d[0] in cfg.drop: continue
            ins = mem_ins(2 + st % 2, sl, d)
            seq.append((t, d[0]))
            for r in ins.w: prod[r] = len(seq) - 1
    out = {}
    for sl in range(STEP):
        assert len({res[(s, sl)] for s in range(2, 6)}) == 1
        out[sl] = res[(4, sl)]
    return out

def gap(step, g, part='all'):
    head = [mfma_at(step, g)]
    n = LGW[g]
    if g == cfg.B1 or g == cfg.B2:
        head.append(wait(vm=8, lg=n))
        if not cfg.nobar: head.append(barrier())
    elif n is not None: head.append(wait(lg=n))
    head += scalar_ops(step, g)
    rest = gap_mem(step, g) + sm_ops(step, g)
    return head if part == 'head' else rest if part == 'rest' else head + rest

ENTRY = 41
EXIT = 169

def body_iter(st0, last=False):
    o = []
    o += gap(st0, ENTRY, 'rest')
    for s in range(ENTRY + 1, STEP): o += gap(st0, s)
    for s in range(0, EXIT):
        g = gap(st0 + 1, s)
        if s == EXIT - 2:
            g = gap(st0 + 1, s, 'head') + [scmp("s_cmp_eq_u32", f"s{sOff0}", hex(9 * 32768))] + gap(st0 + 1, s, 'rest')
        o += g
    o += gap(st0 + 1, EXIT, 'head') + [branch("s_cbranch_scc1", "L_exit", ['scc'])]
    if last: return o
    o += gap(st0 + 1, EXIT, 'rest')
    for s in range(EXIT + 1, STEP): o += gap(st0 + 1, s)
    for s in range(0, ENTRY): o += gap(st0 + 2, s)
    o += gap(st0 + 2, ENTRY, 'head') + [branch("s_branch", "L_loop")]
    return o

def scale4(src, tmp, pk=False):
    o = []
    for i in range(4): o.append(V("v_lshlrev_b32", f"v{tmp+2*i}", 16, f"v{src+i}"))
    for i in range(4): o.append(V("v_and_b32", f"v{tmp+2*i+1}", f"s{sMask}", f"v{src+i}"))
    if pk:
        for i in range(4): o.append(V("v_pk_mul_f32", f"v[{tmp+2*i}:{tmp+2*i+1}]", f"v[{tmp+2*i}:{tmp+2*i+1}]", f"s[{sC2}:{sC2+1}]"))
    else:
        for i in range(4): o.append(vmul(f"v{tmp+2*i}", f"s{sC}", f"v{tmp+2*i}"))
        for i in range(4): o.append(vmul(f"v{tmp+2*i+1}", f"s{sC}", f"v{tmp+2*i+1}"))
    for i in range(4): o.append(cvtpk(f"v{src+i}", f"v{tmp+2*i}", f"v{tmp+2*i+1}"))
    return o

def rowmax(Sbase, cols, t):
    o = []
    for n, c in enumerate(cols):
        b = Sbase + 8 * c
        o.append(V("v_max3_f32", f"v{t+2*n}", f"v{b}", f"v{b+1}", f"v{b+2}"))
        o.append(V("v_max3_f32", f"v{t+2*n+1}", f"v{b+3}", f"v{b+4}", f"v{b+5}"))
    for n, c in enumerate(cols):
        b = Sbase + 8 * c
        o.append(V("v_max3_f32", f"v{t+2*n}", f"v{t+2*n}", f"v{b+6}", f"v{b+7}"))
    if len(cols) == 1: o.append(nop(0))
    for n, c in enumerate(cols): o.append(V("v_max_f32", f"v{t+2*n}", f"v{t+2*n}", f"v{t+2*n+1}"))
    for sw in (swap16, swap32):
        for n, c in enumerate(cols): o.append(vmov(f"v{t+2*n+1}", f"v{t+2*n}"))
        o.append(nop(0 if len(cols) > 1 else 1))
        for n, c in enumerate(cols): o.append(sw(f"v{t+2*n}", f"v{t+2*n+1}"))
        for n, c in enumerate(cols): o.append(V("v_max_f32", f"v{t+2*n}" if sw is swap16 else f"v{MM+c}", f"v{t+2*n}", f"v{t+2*n+1}"))
    return o

def shift_by_max(Sbase, cols):
    o = []
    for c in cols:
        for a_ in range(2): o.append(mfma16_f32(('v', Sbase + 8 * c + 4 * a_), VQRT, MM + c, ('v', Sbase + 8 * c + 4 * a_)))
    for c in cols: o.append(mfma16_f32(('v', CI_SH if c == 2 else CI_OWN + 4 * c), VQRT, MM + c, 0))
    return o

def dense(ops):
    out = list(ops)
    i = 0
    while i < len(out) - 1:
        if out[i].k == 'trans' and out[i + 1].k == 'valu' and set(out[i].w) & set(out[i + 1].r):
            if i + 2 < len(out) and out[i + 2].k == 'trans': out[i + 1], out[i + 2] = out[i + 2], out[i + 1]; i += 1
            else: out.insert(i + 1, nop(0))
        i += 1
    return out

def stamp(idx, fine=0):
    if not cfg.stamps: return []
    if cfg.fine == 9 and idx != 0: return []
    if cfg.fine != fine and idx not in (0, 8, 9): return []
    return [raw(f"s_memtime s[{60+2*idx}:{61+2*idx}]", 'stampi')]

def prologue():
    o = []
    vmlist = []
    def a(x, tag=None):
        o.append(x)
        if x.k in ('vload', 'dma', 'vstore'): vmlist.append(tag)
    def wait_for(tag):
        last = max(i for i, t in enumerate(vmlist) if t == tag)
        return wait(vm=len(vmlist) - 1 - last)
    a(scmp("s_cmp_ge_u32", "s2", 256)); a(branch("s_cbranch_scc1", "L_end", ['scc']))
    a(raw("s_load_dwordx4 s[36:39], s[0:1], 0", 'smem', [], R('s', 36, 4)))
    a(raw("s_load_dwordx4 s[40:43], s[0:1], 16", 'smem', [], R('s', 40, 4)))
    if cfg.stamps:
        a(raw("s_load_dwordx2 s[58:59], s[0:1], 32", 'smem', [], R('s', 58, 2)))
        o += stamp(0)
        a(raw("s_memrealtime s[82:83]", 'stampi'))
    a(V("v_lshrrev_b32", "v1", 6, "v0"))
    a(V("v_and_b32", "v2", 63, "v0"))
    a(readfirst(f"s{sW}", "v1"))
    a(V("v_lshrrev_b32", "v3", 4, "v2"))
    a(V("v_and_b32", "v4", 15, "v2"))
    a(V("v_lshlrev_b32", f"v{VLIN}", 4, "v2"))
    if cfg.codepf:
        a(raw("s_getpc_b64 s[56:57]", 'salu', [], ['s56', 's57']))
        a(label("L_pc"))
        a(S("s_lshr_b32", f"s{sT}", "s2", 3)); a(S("s_and_b32", f"s{sT}", f"s{sT}", 3)); a(S("s_lshl_b32", f"s{sT}", f"s{sT}", 2))
        a(S("s_add_u32", f"s{sT}", f"s{sT}", f"s{sW}")); a(S("s_min_u32", f"s{sT}", f"s{sT}", cfg.codepf - 1)); a(S("s_lshl_b32", f"s{sT}", f"s{sT}", 10))
        a(raw(f"s_sub_u32 s{sT}, s{sT}, L_pc-{NAME}_kernel", 'salu', [f"s{sT}"], [f"s{sT}", 'scc']))
        a(S("s_ashr_i32", f"s{sT+1}", f"s{sT}", 31))
        a(S("s_add_u32", "s56", "s56", f"s{sT}")); a(S("s_addc_u32", "s57", "s57", f"s{sT+1}", r_scc=True))
        a(vmov("v7", "s57"))
        a(I(f"v_add_co_u32 v6, vcc, s56, v{VLIN}", 'valu', ['s56', f"v{VLIN}"], ['v6', 'vcc']))
        a(nop(1))
        a(I("v_addc_co_u32 v7, vcc, 0, v7, vcc", 'valu', ['v7', 'vcc'], ['v7', 'vcc']))
        a(I("global_load_dwordx4 a[0:3], v[6:7], off", 'vload', ['v6', 'v7'], R('a', 0, 4)), "PF")
    a(S("s_and_b32", f"s{sT}", "s2", 7))
    a(S("s_lshr_b32", f"s{sT+1}", "s2", 3))
    a(S("s_lshr_b32", f"s{sT+2}", "s2", 5))
    a(S("s_lshl_b32", f"s{sW8192}", f"s{sW}", 13))
    a(S("s_lshr_b32", f"s{sH}", f"s{sW}", 1))
    a(S("s_lshl_b32", f"s{sT+3}", f"s{sT}", 5)); a(S("s_add_u32", f"s{sT+3}", f"s{sT+3}", f"s{sT+1}"))
    a(S("s_mul_i32", f"s{sT+3}", f"s{sT+3}", 40960, w_scc=False))
    a(S("s_lshl_b32", f"s{sT+4}", f"s{sT}", 3)); a(S("s_add_u32", f"s{sT+4}", f"s{sT+4}", f"s{sT+2}"))
    a(S("s_lshl_b32", f"s{sT+4}", f"s{sT+4}", 18))
    a(V("v_xor_b32", "v5", "v3", "v4"))
    a(V("v_lshlrev_b32", "v5", 4, "v5"))
    a(V("v_lshl_add_u32", "v7", "v3", 8, "v5"))
    a(V("v_lshl_add_u32", "v6", "v4", 8, "v5"))
    a(V("v_add_u32", f"v{KDMA}", f"s{sW8192}", "v7"))
    for k in range(1, 4): a(V("v_xor_b32", f"v{KDMA+k}", 64 * k, f"v{KDMA}"))
    a(S("s_and_b32", f"s{sQS}", f"s{sW}", 1)); a(S("s_lshl_b32", f"s{sQS}", f"s{sQS}", 12)); a(S("s_add_u32", f"s{sQS}", f"s{sQS}", 32768))
    a(S("s_add_u32", f"s{sQO1}", f"s{sW8192}", 4096))
    a(smov(f"s{sOff0}", 0)); a(smov(f"s{sOff1}", 4096))
    SA, SB = Sb(0), Sb(1)
    RAWS = SB
    TWS = CI_OWN
    TRS = CI_OWN + 4
    TW = O_SHL
    TR = O_SHL + 4
    TM = P
    for k in range(4): a(V("v_add_u32", f"v{TWS+k}", LDS_V1, f"v{KDMA+k}"))
    a(S("s_add_u32", f"s{sT}", f"s{sW8192}", LDS_V1)); a(V("v_add_u32", f"v{TRS}", f"s{sT}", "v6"))
    for j in range(1, 4): a(V("v_xor_b32", f"v{TRS+j}", 64 * j, f"v{TRS}"))
    a(S("s_lshl_b32", f"s{sT}", f"s{sH}", 14)); a(V("v_add_u32", f"v{KADDR}", f"s{sT}", "v6"))
    for j in range(1, 4): a(V("v_xor_b32", f"v{KADDR+j}", 64 * j, f"v{KADDR}"))
    if cfg.alldma:
        for k in range(4): a(V("v_xor_b32", f"v{TMPS+4+k}", 64 * k, "v7"))
        a(smov("s92", 0)); a(smov("s93", 4096))
    a(smov(f"s{sC}", hex(SCALE_BITS))); a(smov(f"s{sMask}", "0xffff0000"))
    a(smov(f"s{sC2}", hex(SCALE_BITS))); a(smov(f"s{sC2+1}", hex(SCALE_BITS)))
    for base, n in ((SQ, 40960), (SK, 262144)): a(smov(f"s{base+2}", n)); a(smov(f"s{base+3}", "0x20000"))
    a(wait(lg=0))
    def srd(base, p, off, n):
        a(S("s_add_u32", f"s{base}", f"s{p}", f"s{off}")); a(S("s_addc_u32", f"s{base+1}", f"s{p+1}", 0, r_scc=True))
        a(S("s_and_b32", f"s{base+1}", f"s{base+1}", "0xffff"))
        if base not in (SQ, SK): a(smov(f"s{base+2}", n)); a(smov(f"s{base+3}", "0x20000"))
    o += stamp(1, 1)
    srd(SQ, 36, sT + 3, 40960)
    QD = TMPS + 4
    def qsh(n0, n1):
        for n in range(n0, n1):
            if cfg.alldma: a(dma(QD + n, SQ, f"s{sQS}", 1024 * n, reg=(('QS', 0), 'qs', True), flags=cfg.qld), f"QS{n}")
            else: a(vload(('v', RAWS + 4 * n), 4, VLIN, SQ, f"s{sQS}", 1024 * n, cfg.qld), f"QS{n}")
    def qown(n0, n1):
        for n in range(n0, n1):
            if cfg.alldma:
                if n == n0 or n == 4: a(S("s_add_u32", "m0", f"s{sW8192}", LDS_X + (4096 if n >= 4 else 0))); a(nop(0))
                a(dma(KDMA + n % 4, SQ, f"s{92 if n < 4 else 93}", 1024 * (n % 4), reg=(('QO', n // 4), 'qo', True), flags=cfg.qld), f"QO{n}")
            else: a(vload(('v', Q_OWN + 4 * n), 4, VLIN, SQ, f"s{sW8192 if n < 4 else sQO1}", 1024 * (n % 4), cfg.qld), f"QO{n}")
    def k0dma(n0=0, n1=8):
        for n in range(n0, n1):
            if n == n0 or n == 4: a(S("s_add_u32", "m0", f"s{sW8192}", LDS_K0 + (4096 if n >= 4 else 0))); a(nop(0))
            a(dma(KDMA + n % 4, SK, f"s{92 if n < 4 else 93}" if cfg.alldma else f"s{sOff0 if n < 4 else sOff1}", 1024 * (n % 4), reg=(('K', 0), 0, True), flags=cfg.ld), "K0")
    if cfg.alldma:
        a(S("s_add_u32", "m0", f"s{sW8192}", LDS_V1)); a(nop(0))
        qsh(0, 4)
    else: qsh(0, cfg.qsfirst)
    if cfg.qfirst:
        qown(0, cfg.qsplit)
        srd(SK, 38, sT + 4, 262144)
    else:
        srd(SK, 38, sT + 4, 262144)
        k0dma()
        if not cfg.alldma: qsh(cfg.qsfirst, 4)
        o += stamp(2, 1)
        qown(0, cfg.qsplit)
    o += stamp(1); o += stamp(3, 1)
    srd(SV, 40, sT + 4, 262144)
    srd(SO, 42, sT + 3, 40960)
    a(V("v_lshlrev_b32", "v1", 1, "v3")); a(V("v_xor_b32", "v1", "v1", "v4"))
    a(V("v_lshlrev_b32", "v1", 4, "v1")); a(V("v_lshl_add_u32", "v1", "v3", 8, "v1"))
    a(V("v_add_u32", f"v{VDMA}", f"s{sW8192}", "v1")); a(V("v_xor_b32", f"v{VDMA+1}", 128, f"v{VDMA}"))
    for j in range(4): a(V("v_xor_b32", f"v{KADDR+4+j}", 16384, f"v{KADDR+j}"))
    for k in range(4): a(V("v_add_u32", f"v{TW+k}", LDS_X, f"v{KDMA+k}"))
    a(S("s_add_u32", f"s{sT}", f"s{sW8192}", LDS_X)); a(V("v_add_u32", f"v{TR}", f"s{sT}", "v6"))
    for j in range(1, 4): a(V("v_xor_b32", f"v{TR+j}", 64 * j, f"v{TR}"))
    a(V("v_lshrrev_b32", "v1", 2, "v4")); a(V("v_lshl_add_u32", "v1", "v3", 2, "v1"))
    a(V("v_and_b32", "v5", 7, "v1"))
    a(S("s_lshl_b32", f"s{sT}", f"s{sH}", 2)); a(V("v_xor_b32", "v5", f"s{sT}", "v5"))
    a(V("v_lshlrev_b32", "v5", 5, "v5")); a(V("v_lshl_add_u32", "v5", "v1", 8, "v5"))
    a(V("v_and_b32", "v1", 3, "v4")); a(V("v_lshl_add_u32", "v5", "v1", 3, "v5"))
    a(S("s_lshl_b32", f"s{sT}", f"s{sH}", 14)); a(V("v_add_u32", "v5", f"s{sT}", "v5"))
    a(V("v_add_u32", f"v{VADDR}", LDS_V0, "v5"))
    a(V("v_xor_b32", "v5", 16384, "v5")); a(V("v_add_u32", f"v{VADDR+8}", LDS_V0, "v5"))
    for hf in range(2):
        for p in range(1, 8): a(V("v_xor_b32", f"v{VADDR+8*hf+p}", 32 * p, f"v{VADDR+8*hf}"))
    a(S("s_xor_b32", f"s{sT}", f"s{sW}", 2)); a(S("s_lshl_b32", f"s{sT+1}", f"s{sT}", 12)); a(S("s_add_u32", f"s{sT+1}", f"s{sT+1}", LDS_MG))
    a(V("v_add_u32", f"v{MGW}", f"s{sT+1}", f"v{VLIN}"))
    a(S("s_lshl_b32", f"s{sT+1}", f"s{sW}", 12)); a(S("s_add_u32", f"s{sT+1}", f"s{sT+1}", LDS_MG))
    a(V("v_add_u32", f"v{MGR}", f"s{sT+1}", f"v{VLIN}"))
    a(V("v_lshrrev_b32", "v1", 1, f"v{VLIN}"))
    a(S("s_lshl_b32", f"s{sT+1}", f"s{sT}", 9)); a(S("s_add_u32", f"s{sT+1}", f"s{sT+1}", LDS_ML)); a(V("v_add_u32", f"v{MLW}", f"s{sT+1}", "v1"))
    a(S("s_lshl_b32", f"s{sT+1}", f"s{sW}", 9)); a(S("s_add_u32", f"s{sT+1}", f"s{sT+1}", LDS_ML)); a(V("v_add_u32", f"v{MLR}", f"s{sT+1}", "v1"))
    a(S("s_mul_i32", f"s{sT}", f"s{sW}", 8704, w_scc=False))
    a(V("v_lshlrev_b32", "v5", 3, "v3"))
    a(V("v_mul_u32_u24", "v6", 272, "v4")); a(V("v_add_u32", "v6", "v6", "v5")); a(V("v_add_u32", f"v{AW}", f"s{sT}", "v6"))
    a(S("s_lshl_b32", f"s{sT+4}", f"s{sH}", 3)); a(V("v_xor_b32", "v6", f"s{sT+4}", "v4")); a(V("v_lshlrev_b32", "v6", 4, "v6"))
    a(V("v_mul_u32_u24", "v7", 272, "v3")); a(V("v_add_u32", "v6", "v6", "v7")); a(V("v_add_u32", f"v{AR}", f"s{sT}", "v6"))
    a(S("s_add_u32", f"s{sT}", f"s{sW8192}", LDS_V0))
    a(V("v_mul_u32_u24", "v6", 144, "v4")); a(V("v_add_u32", "v6", "v6", "v5")); a(V("v_add_u32", f"v{SW}", f"s{sT}", "v6"))
    a(V("v_lshrrev_b32", "v5", 3, "v2")); a(V("v_and_b32", "v6", 7, "v2")); a(V("v_lshlrev_b32", "v6", 4, "v6"))
    a(V("v_mul_u32_u24", "v7", 144, "v5")); a(V("v_add_u32", "v7", "v7", "v6")); a(V("v_add_u32", f"v{SR}", f"s{sT}", "v7"))
    a(V("v_lshl_add_u32", f"v{SG}", "v5", 8, "v6"))
    a(vmov(f"v{VQRT}", "0xbe800000"))
    a(vmov("v2", "0x3f803f80"))
    Z = TMPS
    for i in range(4): a(vmov(f"v{Z+i}", 0))
    for kv, b0, b1 in (('K', LDS_K0, LDS_K1), ('V', LDS_V0, LDS_V1)):
        for buf, base in ((0, b0), (1, b1)):
            for grp in range(2):
                a(S("s_add_u32", f"s{m0_val_reg(kv, buf, grp)}", f"s{sW8192}", base + grp * 4096))
    a(smov(f"s{sKill}", 0))
    for db in range(4): a(mfma(('v', O_OWN + 16 * db), ('v', Z), ('v', Z), 0))
    for b in (O_SHH, L_OWN): a(mfma(('a', b), ('v', Z), ('v', Z), 0))
    a(nop(7)); a(nop(3))
    for i in range(4): a(accw(f"a{ONES+i}", "v2"))
    o += stamp(2); o += stamp(4, 1)
    qown(cfg.qsplit, 8)
    if cfg.qfirst: k0dma()
    def vdma(buf, content, tag, only=None):
        for grp in range(2):
            a(S("s_mov_b32", "m0", f"s{m0_val_reg('V', buf, grp)}", w_scc=False)); a(nop(0))
            for n in range(4):
                if only is None or only(4 * grp + n):
                    a(dma(VDMA + n % 2, SV, f"s{sOff0 if grp == 0 else sOff1}", 1024 * n, reg=(('V', buf), content, True), flags=cfg.ld), tag)
    if cfg.qfirst:
        a(wait_for("QS3"))
        for j in range(4): a(dsr128(('v', RAWS + 4 * j), TRS + j, 0, reg=(('QS', 0), 'qs', True)))
        for j in range(4):
            a(wait(lg=3 - j))
            o.extend(scale4(RAWS + 4 * j, TM + 8 * (j % 2), pk=True))
            for i in range(4): a(accw(f"a{Q_SH+4*j+i}", f"v{RAWS+4*j+i}"))
        o.extend(stamp(1, 4))
        for c in range(2):
            a(wait_for(f"QO{4*c+3}"))
            for j in range(4): a(dsr128(('v', Q_OWN + 16 * c + 4 * j), TR + j, 4096 * c, reg=(('QO', c), 'qo', True)))
            if c == cfg.v0c: vdma(0, 0, "V0")
            for j in range(4):
                a(wait(lg=3 - j))
                o.extend(scale4(Q_OWN + 16 * c + 4 * j, TM + 8 * (j % 2), pk=True))
            o.extend(stamp(2 + c, 4))
        if cfg.v0c == 2: vdma(0, 0, "V0")
        a(wait_for("K0")); a(barrier())
        o.extend(stamp(4, 4))
        for aa in range(2):
            for j in range(4): a(dsr128(('a', KF + 16 * aa + 4 * j), KADDR + j, koff(0) + 4096 * aa, reg=(('K', 0), 0, False)))
        a(smov(f"s{sOff0}", 32768)); a(smov(f"s{sOff1}", 32768 + 4096))
        a(mfma(('v', O_SHL), ('v', Z), ('v', Z), 0))
        rm = [rowmax(SA, [c], TMPS + 4 if c != 1 else 0) for c in range(3)]
        for k in range(24):
            if k < 8: a(wait(lg=7 - k))
            a(qk_mfma(0, k, first_c=False))
            if 14 <= k < 23: o += rm[0][2 * (k - 14):2 * (k - 14) + 2]
        o += rm[0][18:]
        o.extend(stamp(5, 4))
        a(nop(0))
        o += shift_by_max(SA, [0])
        o += rm[1]
        for grp in range(2):
            a(S("s_mov_b32", "m0", f"s{m0_val_reg('K', 1, grp)}", w_scc=False)); a(nop(0))
            for k in range(4): a(dma(KDMA + k, SK, f"s{sOff0 if grp == 0 else sOff1}", 1024 * k, reg=(('K', 1), 1, True), flags=cfg.ld), "K1")
        o += shift_by_max(SA, [1])
        o += rm[2]
        a(nop(1))
        o += shift_by_max(SA, [2])
        headops = []
        for s_ in range(EX0[0], ENTRY): headops += sm_ops(0, s_)
        preK, preV = [], []
        for sl in range(0, ENTRY):
            for d in MEM[sl]:
                if d[0] == 'K': preK.append(mem_ins(0, sl, d))
                elif d[0] == 'V' and d[1] == 0: preV.append(mem_ins(0, sl, d))
        o += preK
        o.extend(stamp(6, 4))
        h = dense(headops)
        o += h[:-3]; a(nop(4)); o += h[-3:]
        o.extend(stamp(7, 4))
        a(wait_for("V0")); a(barrier())
        o += preV
        vdma(1, 1, "V1", lambda n: cfg.dv_slots[n] < ENTRY)
        nxt = [n for n in range(8) if not cfg.dv_slots[n] < ENTRY]
        if nxt and cfg.dv_slots[0 if nxt[0] < 4 else 4] - 1 < ENTRY:
            a(S("s_mov_b32", "m0", f"s{m0_val_reg('V', 1, 0 if nxt[0] < 4 else 1)}", w_scc=False))
        a(wait(lg=0))
        if cfg.stamps: a(raw("s_memrealtime s[86:87]", 'stampi'))
        return o
    if not cfg.alldma:
        for n in range(4):
            a(wait_for(f"QS{n}"))
            o.extend(scale4(RAWS + 4 * n, TM + 8 * (n % 2), pk=True))
            a(dsw128(TWS + n, ('v', RAWS + 4 * n), 1024 * n, reg=(('QS', 0), 'qs', True)))
        o += stamp(5, 1)
        a(wait_for("K0")); a(wait(lg=0))
        for j in range(4): a(dsr128(('a', Q_SH + 4 * j), TRS + j, 0, reg=(('QS', 0), 'qs', True)))
        a(barrier())
    else:
        a(wait_for("QS3"))
        for j in range(4): a(dsr128(('v', RAWS + 4 * j), TRS + j, 0, reg=(('QS', 0), 'qs', True)))
        for j in range(4):
            a(wait(lg=3 - j))
            o.extend(scale4(RAWS + 4 * j, TM + 8 * (j % 2), pk=True))
            for i in range(4): a(accw(f"a{Q_SH+4*j+i}", f"v{RAWS+4*j+i}"))
        o += stamp(5, 1)
        a(wait_for("K0")); a(barrier())
    for aa in range(2):
        for j in range(4): a(dsr128(('a', KF + 16 * aa + 4 * j), KADDR + j, koff(0) + 4096 * aa, reg=(('K', 0), 0, False)))
    o += stamp(6, 1)
    for k in range(16, 24):
        if k < 20: a(wait(lg=7 - (k - 16)))
        if k == 20: a(wait(lg=0))
        a(qk_mfma(0, k, first_c=False))
    o += stamp(3); o += stamp(7, 1)
    def k1dma():
        for grp in range(2):
            a(S("s_mov_b32", "m0", f"s{m0_val_reg('K', 1, grp)}", w_scc=False)); a(nop(0))
            for k in range(4): a(dma(KDMA + k, SK, f"s{sOff0 if grp == 0 else sOff1}", 1024 * k, reg=(('K', 1), 1, True), flags=cfg.ld), "K1")
    if not cfg.alldma:
        def piece(n, pk):
            a(wait_for(f"QO{n}"))
            o.extend(scale4(Q_OWN + 4 * n, TM + 8 * (n % 2), pk=pk))
            a(dsw128(TW + n % 4, ('v', Q_OWN + 4 * n), 1024 * n, reg=(('QO', 0), 'qo', True)))
        piece(0, False)
        o += rowmax(SA, [2], TM)
        a(nop(1))
        o += shift_by_max(SA, [2])
        o += stamp(4)
        if cfg.v0pos == 0: vdma(0, 0, "V0")
        for n in range(1, 8):
            piece(n, n >= 2)
            if n == cfg.v0pos: vdma(0, 0, "V0")
        o += stamp(5)
        a(smov(f"s{sOff0}", 32768)); a(smov(f"s{sOff1}", 32768 + 4096))
        a(wait(lg=0))
        for c in range(2):
            for j in range(4): a(dsr128(('v', Q_OWN + 16 * c + 4 * j), TR + j, 4096 * c, reg=(('QO', 0), 'qo', True)))
        for k in range(16):
            if k < 4: a(wait(lg=7 - k))
            if k == 8: a(wait(lg=0))
            a(qk_mfma(0, k, first_c=False))
        a(mfma(('v', O_SHL), ('v', Z), ('v', Z), 0))
        k1dma()
    else:
        vdma(0, 0, "V0")
        a(nop(3))
        o += rowmax(SA, [2], TM)
        a(nop(1))
        o += shift_by_max(SA, [2])
        o += stamp(4)
        a(smov(f"s{sOff0}", 32768)); a(smov(f"s{sOff1}", 32768 + 4096))
        headops = []
        for s_ in range(EX0[0], ENTRY): headops += sm_ops(0, s_)
        def touches(x, lo, hi): return bool((set(x.w) | set(x.r)) & set(R('v', SA + lo, hi - lo)))
        h0 = dense([x for x in headops if touches(x, 0, 8)])
        h1 = dense([x for x in headops if not touches(x, 0, 8)])
        preK, preV = [], []
        for sl in range(0, ENTRY):
            for d in MEM[sl]:
                if d[0] == 'K': preK.append(mem_ins(0, sl, d))
                elif d[0] == 'V' and d[1] == 0: preV.append(mem_ins(0, sl, d))
        for c in range(2):
            o.extend(stamp(1 + 3 * c, 4))
            a(wait_for(f"QO{4*c+3}"))
            o.extend(stamp(2 + 3 * c, 4))
            for j in range(4): a(dsr128(('v', Q_OWN + 16 * c + 4 * j), TR + j, 4096 * c, reg=(('QO', c), 'qo', True)))
            if c == 1: k1dma()
            for j in range(4):
                a(wait(lg=3 - j))
                o.extend(scale4(Q_OWN + 16 * c + 4 * j, (TM + 8 * (j % 2)) if c == 0 else Pb(1), pk=True))
            a(nop(1))
            for k in range(8 * c, 8 * c + 8): a(qk_mfma(0, k, first_c=False))
            o.extend(stamp(3 + 3 * c, 4))
            if c == 0:
                a(nop(7))
            else:
                a(mfma(('v', O_SHL), ('v', Z), ('v', Z), 0))
                o += preK
            o += rowmax(SA, [c], TMPS + 4)
            a(nop(1))
            o += shift_by_max(SA, [c])
            a(nop(7)); a(nop(1))
            o += h0 if c == 0 else h1
            if c == 0: o += stamp(5)
        o += stamp(6); o.extend(stamp(7, 4))
        a(wait_for("V0")); a(barrier())
        o += preV
        vdma(1, 1, "V1", lambda n: cfg.dv_slots[n] < ENTRY)
        nxt = [n for n in range(8) if not cfg.dv_slots[n] < ENTRY]
        if nxt and cfg.dv_slots[0 if nxt[0] < 4 else 4] - 1 < ENTRY:
            a(S("s_mov_b32", "m0", f"s{m0_val_reg('V', 1, 0 if nxt[0] < 4 else 1)}", w_scc=False))
        a(wait(lg=0))
        if cfg.fine != 4: o += stamp(7)
        if cfg.stamps: a(raw("s_memrealtime s[86:87]", 'stampi'))
        return o
    o += stamp(6)
    preK, preV = [], []
    for sl in range(0, ENTRY):
        for d in MEM[sl]:
            if d[0] == 'K': preK.append(mem_ins(0, sl, d))
            elif d[0] == 'V' and d[1] == 0: preV.append(mem_ins(0, sl, d))
    o += preK
    o += rowmax(SA, [0, 1], TMPS + 4)
    a(nop(1))
    o += shift_by_max(SA, [0, 1])
    head = []
    for s in range(EX0[0], ENTRY): head += sm_ops(0, s)
    a(nop(5))
    o += dense(head)
    if cfg.B2 < ENTRY: a(wait_for("V0")); a(barrier())
    o += preV
    def v1_in_prologue(n): return cfg.dv_slots[n] < ENTRY
    vdma(1, 1, "V1", v1_in_prologue)
    nxt = [n for n in range(8) if not v1_in_prologue(n)]
    if nxt and cfg.dv_slots[0 if nxt[0] < 4 else 4] - 1 < ENTRY:
        a(S("s_mov_b32", "m0", f"s{m0_val_reg('V', 1, 0 if nxt[0] < 4 else 1)}", w_scc=False))
    a(wait(lg=0))
    o += stamp(7)
    if cfg.stamps: a(raw("s_memrealtime s[86:87]", 'stampi'))
    return o

class Seq:
    def __init__(self): self.o = []; self.ds = []; self.done = -1; self.prod = {}
    def wait_idx(self, idx):
        if idx > self.done:
            n = min(15, len(self.ds) - 1 - idx)
            self.o.append(wait(lg=n)); self.done = len(self.ds) - 1 - n
    def wait_op(self, x): self.wait_idx(max(i for i, y in enumerate(self.ds) if y is x))
    def __call__(self, x):
        need = max([self.prod.get(r, -1) for r in x.r] + [-1])
        if x.k not in ('dsr',): need = max([need] + [self.prod.get(r, -1) for r in x.w])
        self.wait_idx(need) if need >= 0 else None
        self.o.append(x)
        if x.k in ('dsr', 'dsw'):
            self.ds.append(x)
            for r in x.w: self.prod[r] = len(self.ds) - 1
        return x

def epilogue():
    q = Seq(); a = q
    st = 7
    SF = cfg.store_flags
    vr = []
    for s, stp in [(s, st) for s in range(EXIT, STEP)] + [(s, st + 1) for s in range(0, cfg.B2 + 1)]:
        for d in MEM[s]:
            if d[0] == 'V' and d[1] == 3: vr.append((d[2], mem_ins(stp, s, d)))
    vr.sort(key=lambda x: x[0]); vr = [x for _, x in vr]
    tail = []
    for s in list(range(EXIT, STEP)) + list(range(0, EX0[0])):
        tail += [x for x in sm_ops(st, s) if (set(x.w) | set(x.r)) & set(R('v', Sb(1), 16))]
    LO, RI = Pb(0), Pb(0) + 2
    ML_, MB = Pb(0) + 4, Pb(0) + 6
    GA = Pb(0) + 8
    RB = Sb(0)
    OT, OT1, STG = (('OT', 0), 'ot', True), (('OT', 1), 'ot', True), (('ST', 0), 'st', True)
    MGR_, MLR_ = (('MG', 0), 'mg', False), (('MG', 0), 'mg', False)
    mm = [ones_mfma(3, 0)] + [pv_mfma(3, p, 0) for p in range(8)] + [ones_mfma(3, 1)] + [pv_mfma(3, p, 1) for p in range(8)]
    def fin(b, rinv_pair, sel, addr, off, reg, pk):
        if not pk: mul = [vmul(f"v{b+i}", f"v{rinv_pair+sel}", f"v{b+i}") for i in range(4)]
        else: mul = [V("v_pk_mul_f32", f"v[{b+i}:{b+i+1}]", f"v[{b+i}:{b+i+1}]", f"v[{rinv_pair}:{rinv_pair+1}]",
                       mods="op_sel:[0,1] op_sel_hi:[1,1]" if sel else "op_sel:[0,0] op_sel_hi:[1,0]") for i in (0, 2)]
        return mul + [cvtpk(f"v{b}", f"v{b}", f"v{b+1}"), cvtpk(f"v{b+1}", f"v{b+2}", f"v{b+3}"), dsw64(addr, ('v', b), off, reg=reg)]
    F = []
    def f(n, *xs):
        for x in xs: F.append((n, x))
    nv = cfg.epi_nv
    for x in vr[:nv]: a(x)
    t = dense(tail); rest = vr[nv:]
    while rest or t:
        f(0, *rest[:2]); rest = rest[2:]
        if t: f(0, t.pop(0))
    mgw = [dsw128(MGW, ('a', O_SHH + 4 * p), 1024 * p, reg=MGR_) for p in range(4)]
    mlw = dsw64(MLW, ('v', ML_), 0, reg=MLR_)
    pub = [V("v_sub_f32", f"v{ML_}", 0, f"v{CI_SH}"), accr(f"v{ML_+1}", f"a{L_SH}")] + mgw + [mlw]
    c0n = cfg.epi_ng
    if cfg.epi_pub == 0: f(0, *pub)
    f(4, accr(f"v{LO}", f"a{L_OWN}"))
    f(0, smov(f"s{sT+2}", hex(cfg.thresh)), vrcp(f"v{RI}", f"v{LO}"))
    c0w = []
    for p in range(c0n):
        x = fin(O_OWN + 4 * p, RI, 0, AW, p * 32, OT, False); c0w.append(x[-1]); f(p + 5, *x)
    f(17, accr(f"v{LO+1}", f"a{L_OWN+4}"))
    k = 0
    for x in stamp(1, 3): a(x)
    for n, m in enumerate(mm):
        if n == 1 and q.done < 0: q.o.append(wait(lg=min(15, len(q.ds))))
        a(m)
        c = 0
        while c < 2 and k < len(F) and F[k][0] <= n:
            x = F[k][1]; a(x); k += 1
            if x.k == 'trans': c += 2
            elif x.k not in ('salu', 'wait'): c += 1
    for x in stamp(6, 3): a(x)
    for _, x in F[k:]: a(x)
    if cfg.epi_pub == 1:
        for x in pub: a(x)
    a(vrcp(f"v{RI+1}", f"v{LO+1}")); a(nop(0))
    def merge_in():
        q.wait_op(mlw); a(barrier())
        for p in range(4): a(dsr128(('v', RB + 4 * p), MGR, 1024 * p, reg=MGR_))
        a(dsr64(('v', MB), MLR, 0, reg=MLR_))
    if cfg.epi_pub == 0: merge_in()
    c0 = [fin(O_OWN + 4 * p, RI, 0, AW, p * 32, OT, True) for p in range(c0n, 8)]
    c1 = [fin(O_OWN + 32 + 4 * p, RI, 1, AW, p * 32 + 4352, OT1, True) for p in range(8)]
    G = []
    G += [V("v_max_f32", "v1", f"v{ML_}", f"v{MB}"), V("v_sub_f32", "v2", f"v{ML_}", "v1"), V("v_sub_f32", "v3", f"v{MB}", "v1"),
          vexp("v2", "v2"), vexp("v3", "v3"),
          vcmp("v_cmp_nle_f32", "s[54:55]", f"v{ML_+1}", f"s{sT+2}"), vcmp("v_cmp_nle_f32", "s[56:57]", f"v{MB+1}", f"s{sT+2}"),
          vmul("v1", "v2", f"v{ML_+1}"), V("v_fmac_f32", "v1", "v3", f"v{MB+1}", rmw=True),
          raw("s_or_b64 s[54:55], s[54:55], s[56:57]", 'salu', ['s54', 's55', 's56', 's57'], ['s54', 's55', 'scc']),
          vrcp("v1", "v1"),
          vcmp("v_cmp_nle_f32", "s[52:53]", f"v{LO}", f"s{sT+2}"), vcmp("v_cmp_nle_f32", "s[56:57]", f"v{LO+1}", f"s{sT+2}"),
          vmul(f"v{GA}", "v2", "v1"), vmul(f"v{GA+1}", "v3", "v1"),
          raw("s_or_b64 s[52:53], s[52:53], s[56:57]", 'salu', ['s52', 's53', 's56', 's57'], ['s52', 's53', 'scc'])]
    for g_ in c0:
        for x in g_: a(x)
        if cfg.epi_pub == 0:
            for _ in range(2):
                if G: a(G.pop(0))
    lastw = [y for y in q.ds if y.k == 'dsw' and y.x.get('reg') == OT][-1]
    for x in stamp(7, 3): a(x)
    sc = []
    if cfg.force_slow:
        sc += [raw("s_mov_b64 s[54:55], -1", 'salu', [], ['s54', 's55']), raw("s_mov_b64 s[52:53], -1", 'salu', [], ['s52', 's53'])]
    sc += [smov(f"s{SO2}", f"s{SO}"), smov(f"s{SO2+1}", f"s{SO+1}"), smov(f"s{SO2+3}", "0x20000"),
           scmp("s_cmp_lg_u64", "s[54:55]", 0), S("s_cselect_b32", f"s{SO2+2}", 0, 40960, w_scc=False, r_scc=True),
           S("s_add_u32", f"s{sT+1}", f"s{sW8192}", 4096),
           S("s_lshl_b32", f"s{sT+3}", f"s{sH}", 7), S("s_add_u32", f"s{sT+3}", f"s{sT+3}", f"s{sQS}"), S("s_add_u32", f"s{sT+4}", f"s{sT+3}", 2048)]
    R0 = Sb(1)
    for x in c1[0]: a(x)
    q.wait_op(lastw)
    for n in range(4): a(dsr128(('v', R0 + 4 * n), AR, 1088 * n, reg=OT))
    st0 = [vstore(('v', R0 + 4 * n), 4, VLIN, SO, f"s{sW8192}", 1024 * n, SF) for n in range(4)]
    if cfg.epi_pub == 1: merge_in()
    for p in range(1, 8):
        for x in c1[p]: a(x)
        if st0: a(st0.pop(0))
        for _ in range(3):
            if G: a(G.pop(0))
    for x in G: a(x)
    lastw = c1[7][-1]
    for x in st0: a(x)
    for x in sc: a(x)
    sh = []
    for p in range(4):
        b, r = O_SHL + 4 * p, RB + 4 * p
        x = [V("v_pk_mul_f32", f"v[{b+i}:{b+i+1}]", f"v[{b+i}:{b+i+1}]", f"v[{GA}:{GA+1}]", mods="op_sel:[0,0] op_sel_hi:[1,0]") for i in (0, 2)]
        x += [V("v_pk_fma_f32", f"v[{b+i}:{b+i+1}]", f"v[{r+i}:{r+i+1}]", f"v[{GA}:{GA+1}]", f"v[{b+i}:{b+i+1}]", mods="op_sel:[0,1,0] op_sel_hi:[1,1,1]") for i in (0, 2)]
        x += [cvtpk(f"v{b}", f"v{b}", f"v{b+1}"), cvtpk(f"v{b+1}", f"v{b+2}", f"v{b+3}"), dsw64(SW, ('v', b), p * 32, reg=STG)]
        sh.append(x)
    for x in sh[0] + sh[1]: a(x)
    q.wait_op(lastw)
    R1 = O_OWN
    for n in range(4, 8): a(dsr128(('v', R1 + 4 * (n - 4)), AR, 1088 * n, reg=OT1))
    for x in sh[2] + sh[3]: a(x)
    for n in range(4, 8): a(vstore(('v', R1 + 4 * (n - 4)), 4, VLIN, SO, f"s{sT+1}", 1024 * (n % 4), SF))
    q.wait_op(sh[3][-1])
    for n in range(2): a(dsr128(('v', O_SHL + 4 * n), SR, 1152 * n, reg=STG))
    for n in range(2): a(vstore(('v', O_SHL + 4 * n), 4, SG, SO2, f"s{sT+3+n}", 0, SF))
    for x in stamp(9): a(x)
    a(raw("s_or_b64 s[56:57], s[52:53], s[54:55]", 'salu', ['s52', 's53', 's54', 's55'], ['s56', 's57', 'scc']))
    if not (cfg.fakeqk or cfg.fakepv): a(branch("s_cbranch_scc1", "L_slow", ['scc']))
    return q.o

def store_tile_rows(Oreg, rinv, soff):
    o = []
    for db in range(4):
        b = Oreg + 16 * db
        for i in range(16): o.append(vmul(f"v{b+i}", f"v{rinv}", f"v{b+i}"))
        for m in range(8): o.append(cvtpk(f"v{b+m}", f"v{b+2*m}", f"v{b+2*m+1}"))
        for pr in range(2):
            r0 = b + 4 * pr
            o.append(swap32(f"v{r0}", f"v{r0+2}")); o.append(swap32(f"v{r0+1}", f"v{r0+3}"))
        for pr in range(2): o.append(vstore(('v', b + 4 * pr), 4, VQ, SO, soff, db * 64 + pr * 32))
    return o

def slow_path():
    o = []; a = o.append
    Kr, Sr, Vr, Or, Pr = 80, 112, 128, O_OWN, 72
    mreg, lreg = SLM, SLL
    a(comment("---- fallback: recompute a 32-row tile with the true row maximum (pass 1: max over all keys, pass 2: softmax and P.V)"))
    a(label("L_slow"))
    a(wait(vm=0, lg=0))
    a(smov(f"s{SO+2}", 40960))
    a(V("v_bfe_u32", "v1", f"v{VLIN}", 4, 5)); a(V("v_lshrrev_b32", "v2", 9, f"v{VLIN}"))
    a(V("v_lshlrev_b32", f"v{VQ}", 4, "v2")); a(V("v_lshl_add_u32", f"v{VQ}", "v1", 8, f"v{VQ}"))
    a(scmp("s_cmp_lg_u64", "s[52:53]", 0)); a(branch("s_cbranch_scc0", "L_slow_sh", ['scc']))
    a(smov("s33", f"s{sW8192}"))
    a(raw("s_mov_b64 s[52:53], 0", 'salu', [], ['s52', 's53']))
    a(raw("s_mov_b64 s[56:57], -1", 'salu', [], ['s56', 's57']))
    a(branch("s_branch", "L_slow_tile"))
    a(label("L_slow_sh"))
    a(scmp("s_cmp_lg_u64", "s[54:55]", 0)); a(branch("s_cbranch_scc0", "L_end", ['scc']))
    a(scmp("s_cmp_lg_u32", f"s{sH}", 0)); a(branch("s_cbranch_scc1", "L_end", ['scc']))
    a(smov("s33", 32768))
    a(raw("s_mov_b64 s[54:55], 0", 'salu', [], ['s54', 's55']))
    a(S("s_lshl_b32", "s38", f"s{sW}", 4)); a(S("s_lshl_b32", "s56", "0xffff", "s38")); a(smov("s57", "s56"))
    a(label("L_slow_tile"))
    for j in range(8): a(vload(('v', Q_OWN + 4 * j), 4, VQ, SQ, "s33", 32 * j))
    a(wait(vm=0))
    for g in range(8): o.extend(scale4(Q_OWN + 4 * g, 240, pk=False))
    a(vmov(f"v{mreg}", "0xff800000"))
    def qk():
        for j in range(8): a(vload(('v', Kr + 4 * j), 4, VQ, SK, "s38", 32 * j))
        a(wait(vm=0))
        for j in range(8): a(mfma(('v', Sr), ('v', Kr + 4 * j), ('v', Q_OWN + 4 * j), 0 if j == 0 else ('v', Sr)))
        a(nop(15))
    a(smov("s38", 0))
    a(label("L_slow_p1"))
    qk()
    for i in range(16): a(V("v_max_f32", f"v{mreg}", f"v{mreg}", f"v{Sr+i}"))
    a(S("s_add_u32", "s38", "s38", 8192)); a(scmp("s_cmp_lt_u32", "s38", 262144)); a(branch("s_cbranch_scc1", "L_slow_p1", ['scc']))
    a(vmov("v1", f"v{mreg}")); a(nop(1)); a(swap32(f"v{mreg}", "v1")); a(V("v_max_f32", f"v{mreg}", f"v{mreg}", "v1"))
    a(vmov(f"v{lreg}", 0))
    for i in range(64): a(vmov(f"v{Or+i}", 0))
    a(V("v_lshrrev_b32", "v2", 8, f"v{VQ}"))
    a(V("v_bfe_u32", "v3", f"v{VQ}", 4, 1))
    a(V("v_lshlrev_b32", "v2", 1, "v2")); a(V("v_lshl_add_u32", "v2", "v3", 10, "v2"))
    a(smov("s38", 0))
    a(label("L_slow_p2"))
    qk()
    for i in range(16): a(V("v_sub_f32", f"v{Sr+i}", f"v{Sr+i}", f"v{mreg}"))
    for i in range(16): a(vexp(f"v{Sr+i}", f"v{Sr+i}"))
    a(nop(0))
    for i in range(16): a(vadd(f"v{lreg}", f"v{lreg}", f"v{Sr+i}"))
    for m in range(8): a(cvtpk(f"v{Pr+m}", f"v{Sr+2*m}", f"v{Sr+2*m+1}"))
    for ks in range(2):
        a(S("s_add_u32", "s39", "s38", ks * 4096))
        for db in range(4):
            for r in range(4):
                for e in range(2):
                    j = 2 * r + e
                    off = (8 * (j // 4) + j % 4) * 256 + db * 64
                    a(vload(('v', Kr + 8 * db + 2 * r + e), 1, 2, SV, "s39", off, op="buffer_load_ushort"))
        a(wait(vm=0))
        for db in range(4):
            for r in range(4): a(V("v_lshl_or_b32", f"v{Vr+4*db+r}", f"v{Kr+8*db+2*r+1}", 16, f"v{Kr+8*db+2*r}"))
        a(nop(1))
        for db in range(4): a(mfma(('v', Or + 16 * db), ('v', Vr + 4 * db), ('v', Pr + 4 * ks), ('v', Or + 16 * db)))
        a(nop(7))
    a(S("s_add_u32", "s38", "s38", 8192)); a(scmp("s_cmp_lt_u32", "s38", 262144)); a(branch("s_cbranch_scc1", "L_slow_p2", ['scc']))
    a(nop(15))
    a(vmov("v1", f"v{lreg}")); a(nop(1)); a(swap32(f"v{lreg}", "v1")); a(vadd(f"v{lreg}", f"v{lreg}", "v1"))
    a(vrcp("v5", f"v{lreg}")); a(nop(0))
    for x in store_tile_rows(Or, 5, "s33"):
        if x.k == 'vstore':
            a(raw("s_mov_b64 exec, s[56:57]", 'salu', ['s56', 's57'], ['exec'])); a(x); a(raw("s_mov_b64 exec, -1", 'salu', [], ['exec'])); a(nop(1))
        else: a(x)
    a(wait(vm=0))
    a(branch("s_branch", "L_slow_sh"))
    return o

def stamp_out():
    o = []
    if not cfg.stamps: return o
    a = o.append
    a(raw("s_waitcnt vmcnt(0)", 'wait', vm=0)); o += [raw("s_memtime s[80:81]", 'stampi'), raw("s_memrealtime s[84:85]", 'stampi')]
    a(raw("s_waitcnt lgkmcnt(0)", 'wait', lg=0))
    if cfg.stamp_wg >= 0:
        a(scmp("s_cmp_lg_u32", "s2", cfg.stamp_wg)); a(branch("s_cbranch_scc1", "L_end", ['scc']))
        a(scmp("s_cmp_lg_u32", f"s{sW}", 0)); a(branch("s_cbranch_scc1", "L_end", ['scc']))
        a(vmov("v1", 0))
    else:
        a(raw("s_load_dwordx2 s[58:59], s[0:1], 40", 'smem', [], R('s', 58, 2))); a(wait(lg=0))
        a(S("s_lshl_b32", "s33", "s2", 2)); a(S("s_add_u32", "s33", "s33", f"s{sW}")); a(S("s_lshl_b32", "s33", "s33", 6))
        a(vmov("v1", "s33"))
    def put(off, x, y):
        if y is None: a(vmov("v2", x))
        else:
            a(S("s_sub_u32", "s33", x, y)); a(vmov("v2", "s33"))
        a(raw(f"global_store_dword v1, v2, s[58:59] offset:{off}", 'vstore', ['v1', 'v2', 's58', 's59'], [], data=['v2']))
        a(nop(1))
    if cfg.fine != 9:
        for i in range(11): put(4 * i, f"s{60+2*i}", "s60")
    else: put(40, "s80", "s60")
    put(44, "s84", "s82"); put(48, "s86", "s82"); put(52, "s88", "s82"); put(56, "s82", None)
    return o

def build():
    global MEM, LGW
    MEM = build_mem_schedule()
    LGW = compute_lgkm_waits()
    pro = prologue()
    body = body_iter(0)
    epi = epilogue()
    slow = slow_path()
    c_pro = [comment("---- prologue: load and scale Q (by log2(e)/sqrt(D)), first K/V tiles, scores of the first key tile."),
             comment("     The row maximum of that first tile is the shift m used by the softmax (exp2(s - m)); the row sums are"),
             comment("     range-checked in the epilogue and a tile whose sum is not a finite number <= 2^40 is recomputed with"),
             comment("     the true row maximum (L_slow).")]
    c_loop = [comment("---- main loop: two 128-key steps per iteration; per step QK^T, exp2, bf16 pack, P.V and row sums (all-ones MFMA);"),
              comment("     K/V tiles stream global -> LDS by DMA two steps ahead, double buffered, two barriers per step")]
    c_epi = [comment("---- epilogue: last P.V, merge of the two key halves of the shared rows, range check, normalise, store")]
    static = c_pro + pro + [raw(".p2align 6", 'label'), label("L_loop")] + c_loop + body + [label("L_exit")] + c_epi + stamp(8) + \
             ([raw("s_memrealtime s[88:89]", 'stampi')] if cfg.stamps else []) + epi + stamp_out() + \
             [label("L_end"), raw("s_endpgm", 'branch')] + slow
    trace = list(pro)
    for it in range(4):
        b = body_iter(2 * it, last=(it == 3))
        assert [x.t for x in b] == [x.t for x in body[:len(b)]], "loop body is not periodic"
        trace += b
    trace += epi
    errs = verify(trace, "main")
    errs += verify(slow, "slow", check_lds=False)
    return static, errs, (pro, body, epi)

HEADER = """; Kernarg layout for this problem (48 bytes, ptrs only, base s[0:1]):
; One workgroup per (batch, q-head), four waves.  Wave w owns q rows 32w..32w+31 against all keys and the 16 rows
; @launch grid=(256,1,1) block=(256,1,1) lds=163840
.amdgcn_target "amdgcn-amd-amdhsa--gfx950"
.text
.globl {n}_kernel
.p2align 8
.type {n}_kernel,@function
{n}_kernel:
"""
FOOTER = """
.section .rodata,"a"
.p2align 6
.amdhsa_kernel {n}_kernel
  .amdhsa_next_free_vgpr 512
  .amdhsa_next_free_sgpr 96
  .amdhsa_accum_offset 256
  .amdhsa_group_segment_fixed_size 0
  .amdhsa_kernarg_size 48
  .amdhsa_user_sgpr_count 2
  .amdhsa_user_sgpr_kernarg_segment_ptr 1
  .amdhsa_system_sgpr_workgroup_id_x 1
.end_amdhsa_kernel
"""

def main(argv=None):
    ap = argparse.ArgumentParser()
    ap.add_argument("-o", default="cdna_kernels/%s.s" % NAME)
    ap.add_argument("--stamps", action="store_true")
    ap.add_argument("--stamp-wg", type=int, default=0)
    ap.add_argument("--force-slow", action="store_true")
    ap.add_argument("--thresh", default=None)
    ap.add_argument("--store-flags", default="nt")
    ap.add_argument("--ld", default="nt"); ap.add_argument("--qld", default="nt")
    ap.add_argument("--fine", type=int, default=0)
    ap.add_argument("--qsplit", type=int, default=2); ap.add_argument("--qsfirst", type=int, default=4)
    ap.add_argument("--v0pos", type=int, default=1); ap.add_argument("--codepf", type=int, default=12)
    ap.add_argument("--lead", type=int, default=8); ap.add_argument("--lag", type=int, default=6)
    ap.add_argument("--dv", default=None); ap.add_argument("--dk", default=None)
    ap.add_argument("--b1", type=int, default=132); ap.add_argument("--b2", type=int, default=34); ap.add_argument("--inc", type=int, default=80)
    ap.add_argument("--sched", default="early")
    ap.add_argument("--drop", default=""); ap.add_argument("--nobar", action="store_true")
    ap.add_argument("--epi", default="8,2,1")
    ap.add_argument("--show", action="store_true")
    ap.add_argument("--nopvpair", action="store_true")
    ap.add_argument("--fakeqk", type=int, default=0); ap.add_argument("--fakepv", type=int, default=0)
    ap.add_argument("--alldma", action="store_true"); ap.add_argument("--qfirst", action="store_true"); ap.add_argument("--v0c", type=int, default=1)
    args = ap.parse_args(argv)
    cfg.stamps = args.stamps; cfg.stamp_wg = args.stamp_wg; cfg.force_slow = args.force_slow; cfg.store_flags = args.store_flags
    cfg.ld = args.ld; cfg.qld = args.qld; cfg.fine = args.fine; cfg.qsplit = args.qsplit; cfg.qsfirst = args.qsfirst
    cfg.pvpair = not args.nopvpair
    cfg.fakeqk = args.fakeqk; cfg.fakepv = args.fakepv
    cfg.alldma = args.alldma or args.qfirst; cfg.qfirst = args.qfirst; cfg.v0c = args.v0c
    cfg.v0pos = args.v0pos; cfg.codepf = args.codepf
    cfg.LEAD = args.lead; cfg.LAG = args.lag; cfg.sched = args.sched
    cfg.B1 = args.b1; cfg.B2 = args.b2; cfg.inc_slot = args.inc
    cfg.drop = tuple(x for x in args.drop.split(",") if x); cfg.nobar = args.nobar
    cfg.epi_nv, cfg.epi_ng, cfg.epi_pub = [int(x) for x in args.epi.split(",")]
    def pick(lo, n, spacing):
        out = []; g = lo
        while len(out) < n:
            if sm_kind(g) is None and (not out or g - out[-1] >= spacing): out.append(g)
            g += 1
        return tuple(out)
    cfg.dk_slots = tuple(int(x) for x in args.dk.split(",")) if args.dk else (136, 140, 144, 152, 160, 168, 176, 182)
    cfg.dv_slots = tuple(int(x) for x in args.dv.split(",")) if args.dv else pick(cfg.B2 + 2, 8, 4)
    if args.thresh: cfg.thresh = int(args.thresh, 0)
    static, errs, parts = build()
    if args.show:
        for s in range(STEP): print(s, sm_kind(s) or "", LGW[s], MEM[s])
    for e in errs[:40]: print("ERR", e)
    cnt = lambda L: sum(1 for x in L if x.k != 'label')
    print("dk", cfg.dk_slots, "dv", cfg.dv_slots, "sharing", cfg.nshare)
    print("errors:", len(errs), " instructions:", cnt(static), " pro/body/epi:", [cnt(p) for p in parts])
    open(args.o, "w").write(HEADER.format(n=NAME) + text_of(static) + FOOTER.format(n=NAME))

if __name__ == "__main__": main()
```

```python
import sys, itertools, io, contextlib
sys.path.insert(0, 'gen')
import gen5
cfg = gen5.cfg
free = [g for g in range(170) if gen5.sm_kind(g) is None]
res = []
for b1 in (128, 132):
  for b2 in (42, 44, 46, 48):
    for dv0 in (60, 64, 68, 72, 76, 80, 84):
      for sp in (4, 8):
        dv = []
        g = dv0
        while len(dv) < 8:
            if g in free and (not dv or g - dv[-1] >= sp): dv.append(g)
            g += 1
        if dv[-1] > 118: continue
        for dk in ((136, 140, 144, 152, 160, 168, 176, 182), (136, 140, 144, 148, 152, 160, 168, 176), (135, 139, 144, 152, 160, 168, 172, 178)):
            if min(dk) <= b1 + 1: continue
            cfg.B1, cfg.B2 = b1, b2; cfg.dv_slots = tuple(dv); cfg.dk_slots = dk; cfg.inc_slot = dv[-1] + 2
            cfg.LEAD, cfg.LAG, cfg.sched = 8, 6, "early"; cfg.pvpair = True; cfg.drop = ()
            if any(gen5.sm_kind(x % 170) is not None for x in dk): continue
            try:
                gen5.build_mem_schedule()
                res.append((cfg.nshare, b1, b2, tuple(dv), dk))
            except Exception as e:
                pass
res.sort()
for r in res[:15]: print(r)
```

```python
import sys, argparse, re
from asmlib import *

NAME = "standalone__gqa_softmax__near_ridge"
STEP = 170

class Cfg:
    LEAD = 8; LAG = 6
    thresh = 0x53800000
    stamps = False; stamp_wg = 0; fine = 0
    force_slow = False
    store_flags = "nt"; ld = "nt"; qld = "nt"
    qsplit = 2; v0pos = 1; codepf = 12
    B1 = 140; B2 = 34
    dk_slots = None; dv_slots = None
    inc_slot = 80
    sched = "early"; spread = True; drop = (); nobar = False
    epi_nv = 8; epi_ng = 0; epi_pub = 0
    e64 = False; shift = 0
    fakeqk = 0; fakepv = 0; pvpair = True
    alldma = False; qfirst = False; v0c = 1
cfg = Cfg()

MGW, MGR, MLW, MLR = 8, 9, 10, 11
KDMA = 12
VDMA = 16
AW, VLIN, AR, SW, SR, SG = 18, 19, 20, 21, 22, 23
KADDR = 24
VADDR = 32
P = 48
S0 = 72
CI_OWN, CI_SH = 120, 128
VQRT = 132
MM = 133
TMPS = 136
Q_OWN = 144
O_OWN = 176
O_SHL = 240
VQ, SLM, SLL = 4, 6, 7
Q_SH, KF, VF, O_SHH, L_OWN, L_SH, ONES = 0, 16, 48, 80, 96, 104, 108
def Sb(b): return S0 + 24 * b
def Pb(b): return P + 12 * b
def osh(p): return ('v', O_SHL + 4 * p) if p < 4 else ('a', O_SHH + 4 * (p - 4))
sW, SQ, SK, SV, SO = 3, 8, 12, 16, 20
SO2 = 4
sW8192, sOff0, sOff1, sC, sMask = 24, 25, 26, 27, 28
sT = 29
sKill = 34
sH = 35
sM0 = 44
sC2 = 52
sQS, sQO1 = 90, 91
SCALE_BITS = 0x3e0293ee
LDS_K1, LDS_K0, LDS_X, LDS_V0, LDS_V1 = 0, 32768, 65536, 98304, 131072
LDS_MG = LDS_X
LDS_ML = LDS_X + 16384
DROP = 0x30000
def koff(buf): return LDS_K0 if buf == 0 else LDS_K1

NCOL = [3, 3, 2, 2]
QK0 = [0, 42, 93, 136]
PV0 = [66, 109, 152, 194]
EX0 = [7, 55, 103, 143]
def qk_mfma(pos, k, first_c=True):
    x, j = divmod(k, 4); a, col = x % 2, x // 2
    D = ('v', Sb(pos % 2) + 4 * x)
    B = ('a', Q_SH + 4 * j) if col == 2 else ('v', Q_OWN + 16 * col + 4 * j)
    C = (('v', CI_SH if col == 2 else CI_OWN + 4 * col) if first_c else 0) if j == 0 else D
    return mfma16(D, ('a', KF + 16 * a + 4 * j), B, C)
def ones_mfma(pos, col):
    Lr = L_SH if col == 2 else L_OWN + 4 * col
    return mfma16(('a', Lr), ('a', ONES), ('v', Pb(pos % 2) + 4 * col), ('a', Lr))
def pv_mfma(pos, p, col):
    O = osh(p) if col == 2 else ('v', O_OWN + 32 * col + 4 * p)
    return mfma16(O, ('a', VF + 4 * p), ('v', Pb(pos % 2) + 4 * col), O)
def pv_order(pos):
    n = NCOL[pos]
    if cfg.pvpair: return [(p + e, col) for p in range(0, 8, 2) for col in range(n) for e in range(2)]
    return [(p, col) for p in range(8) for col in range(n)]
def pv_block(pos):
    n = NCOL[pos]
    if cfg.pvpair and not cfg.fakepv: return [pv_mfma(pos, p, col) for p, col in pv_order(pos)] + [ones_mfma(pos, col) for col in range(n)]
    if cfg.fakepv == 3:
        out = []
        for p in range(0, 8, 2):
            for col in range(n):
                for e in range(2):
                    O = osh(p) if col == 2 else ('v', O_OWN + 32 * col + 4 * p)
                    out.append(mfma16(O, ('a', VF + 4 * (p + e)), ('v', Pb((pos + e) % 2) + 4 * col), O))
        return out + [ones_mfma(pos, col) for col in range(n)]
    if cfg.fakepv == 4:
        out = []
        for p in range(0, 8, 2):
            for col in range(n):
                for e in range(2):
                    O = osh(p + e) if col == 2 else ('v', O_OWN + 32 * col + 4 * (p + e))
                    out.append(mfma16(O, ('a', VF + 4 * (p + e)), ('v', Pb(pos % 2) + 4 * col), O))
        return out + [ones_mfma(pos, col) for col in range(n)]
    if cfg.fakepv == 2:
        out = []
        for p in range(0, 8, 2):
            for col in range(n):
                for e in range(2):
                    O = osh(p) if col == 2 else ('v', O_OWN + 32 * col + 4 * p)
                    out.append(mfma16(O, ('a', VF + 4 * (p + e)), ('v', Pb(pos % 2) + 4 * col), O))
        return out + [ones_mfma(pos, col) for col in range(n)]
    if cfg.fakepv == 1: return [pv_mfma(pos, p, col) for col in range(n) for p in range(8)] + [ones_mfma(pos, col) for col in range(n)]
    return [pv_mfma(pos, p, col) for p in range(8) for col in range(n)] + [ones_mfma(pos, col) for col in range(n)]

def mfma_at(step, g):
    for pos in range(4):
        if QK0[pos] <= g < QK0[pos] + 8 * NCOL[pos]:
            k = g - QK0[pos]
            if cfg.fakeqk == 1:
                n = NCOL[pos]; aj, col = divmod(k, n); a_, j = divmod(aj, 4)
                k = 4 * (2 * col + a_) + j
            return qk_mfma(pos, k)
        for base in (PV0[pos], PV0[pos] - STEP):
            if base <= g < base + 9 * NCOL[pos]: return pv_block(pos)[g - base]
    raise Exception(g)

def sm_ops(step, g):
    ops = []
    for pos in range(4):
        for gg in (g, g + STEP):
            rel = gg - EX0[pos]; n = 8 * NCOL[pos]; S_ = Sb(pos % 2)
            if 0 <= rel <= 2 * (n - 1) and rel % 2 == 0:
                x = vexp(f"v{S_+rel//2}", f"v{S_+rel//2}")
                if cfg.e64: x.t = x.t.replace("v_exp_f32", "v_exp_f32_e64")
                ops.append(x)
            if 3 <= rel <= 2 * (n - 1) + 1 and rel % 4 == 3:
                m = (rel - 3) // 4
                ops.append(cvtpk(f"v{Pb(pos % 2)+m}", f"v{S_+2*m}", f"v{S_+2*m+1}"))
    return ops
def sm_pos(x):
    return None
def sm_kind(g):
    o = sm_ops(2, g % STEP)
    return 'exp' if any(x.k == 'trans' for x in o) else 'cvt' if o else None

def free_gaps(lo, hi): return [g for g in range(lo, hi) if sm_kind(g) is None]

def build_mem_schedule():
    ops = []
    L = cfg.LEAD; B1, B2 = cfg.B1, cfg.B2
    def add(d, e, l):
        assert e <= l, (d, e, l)
        ops.append([d, e, l])
    for a in range(2):
        for j in range(4):
            o = 4 * a + j
            for pos in range(4):
                prev = (pos - 1) % 4
                pst = QK0[prev] - (STEP if pos == 0 else 0)
                last = pst + (16 if NCOL[prev] == 3 else 8) + o
                use = QK0[pos] + o
                if pos == 0: add(('K', 0, a, j), max(last + STEP, B1 + 1), STEP + use - L)
                elif pos == 3: add(('K', 3, a, j), last, min(use - L, B1 - L))
                else: add(('K', pos, a, j), last, use - L)
    for pos in range(4):
        prev = (pos - 1) % 4
        pst = PV0[prev] - (STEP if pos == 0 else 0)
        for p in range(8):
            last = pst + max(i for i, (pp, cc) in enumerate(pv_order(prev)) if pp == p)
            use = PV0[pos] + min(i for i, (pp, cc) in enumerate(pv_order(pos)) if pp == p)
            e, l = last, use - L
            if pos == 0: e = max(e, B2 + 1)
            if pos == 3: l = min(l, STEP + B2 - L)
            for hh in range(2): add(('V', pos, p, hh), e, l)
    sched = {s: [] for s in range(STEP)}
    for n, sl in enumerate(cfg.dk_slots): sched[sl % STEP].append(('DK', n))
    for n, sl in enumerate(cfg.dv_slots): sched[sl % STEP].append(('DV', n))
    def cap(s):
        k = sm_kind(s)
        c = 0 if k == 'exp' else 1 if k == 'cvt' else 2
        if s in (B1, B2): c = 0
        return c
    for s in sched: assert len(sched[s]) <= cap(s), (s, sched[s], cap(s))
    fixed0 = {g: list(v) for g, v in sched.items()}
    busy = lambda g: any(d[0] in ('DK', 'DV') for d in fixed0[g])
    by_gap = {}
    for g in range(STEP):
        for k in range(cap(g) - len(sched[g])): by_gap.setdefault(g, []).append((g, k))
    def cands(e, l):
        ts = list(range(e, l + 1))
        if cfg.sched == "late": ts.reverse()
        elif cfg.sched == "mid":
            mid = (e + l) / 2; ts.sort(key=lambda t: abs(t - mid))
        first = [sl for t in ts for sl in by_gap.get(t % STEP, []) if sl[1] == 0 and not busy(sl[0])]
        second = [sl for t in ts for sl in by_gap.get(t % STEP, []) if sl[1] > 0 and not busy(sl[0])]
        last = [sl for t in ts for sl in by_gap.get(t % STEP, []) if busy(sl[0])]
        return first + second, last
    order = sorted(range(len(ops)), key=lambda i: (ops[i][2] - ops[i][1], ops[i][2]))
    match = {}
    full = {i: cands(ops[i][1], ops[i][2]) for i in order}
    cand = {i: full[i][0] for i in order}
    def aug(i, seen):
        for sl in cand[i]:
            if sl not in match: match[sl] = i; return True
        for sl in cand[i]:
            if sl in seen: continue
            seen.add(sl)
            if aug(match[sl], seen): match[sl] = i; return True
        return False
    sys.setrecursionlimit(10000)
    left = [i for i in order if not aug(i, set())]
    cand = {i: full[i][0] + full[i][1] for i in order}
    for i in left:
        if not aug(i, set()): raise Exception(f"cannot place {ops[i]}")
    cfg.nshare = len(left)
    for sl, i in match.items(): sched[sl[0]].append(ops[i][0])
    dl = {tuple(o[0]): o[2] for o in ops}
    for s in sched: sched[s].sort(key=lambda d: (1, 0) if d[0] in ('DK', 'DV') else (0, (dl[d] - s) % STEP))
    return sched

MEM = LGW = None

def mem_ins(step, g, d):
    if d[0] == 'K':
        _, pos, a, j = d
        cs = step + 1 if pos == 0 else step
        buf = cs % 2
        return dsr128(('a', KF + 16 * a + 4 * j), KADDR + 4 * (pos // 2) + j, koff(buf) + 8192 * (pos % 2) + 4096 * a,
                      reg=(('K', buf), cs, False) if cs < 8 else None)
    if d[0] == 'V':
        _, pos, p, hh = d
        cs = step - 1 if (pos == 3 and g < PV0[3] - STEP + 20 and g <= cfg.B2) else step
        buf = cs % 2
        return dstr(('a', VF + 4 * p + 2 * hh), VADDR + 8 * (pos // 2) + p, buf * 32768 + 8192 * (pos % 2) + hh * 4096,
                    reg=(('V', buf), cs, False) if 0 <= cs < 8 else None)
    if d[0] == 'DK':
        n = d[1]; cs = step + 2 if g > cfg.B1 else step + 1; buf = cs % 2
        return dma(KDMA + n % 4, SK, f"s{sOff0 if n < 4 else sOff1}", 1024 * (n % 4), reg=(('K', buf), cs, True) if cs < 8 else None, flags=cfg.ld)
    if d[0] == 'DV':
        n = d[1]; cs = step + 1; buf = cs % 2
        return dma(VDMA + n % 2, SV, f"s{sOff0 if n < 4 else sOff1}", 1024 * (n % 4), reg=(('V', buf), cs, True) if cs < 8 else None, flags=cfg.ld)

def m0_val_reg(kv, buf, grp): return sM0 + (0 if kv == 'K' else 4) + 2 * buf + grp

def scalar_ops(step, g):
    o = []
    def m0(kv, buf, grp): return S("s_max_u32", "m0", f"s{m0_val_reg(kv, buf, grp)}", f"s{sKill}")
    dk, dv = cfg.dk_slots, cfg.dv_slots
    assert max(dk) < STEP + cfg.B2 and min(dk) > cfg.B1 + 1 and max(dv) < cfg.inc_slot and min(dv) > cfg.B2 + 1
    kbuf = lambda gg: (step if gg > cfg.B1 else step + 1) % 2
    if g == (dk[0] - 1) % STEP: o.append(m0('K', kbuf(g), 0))
    if g == (dk[4] - 1) % STEP: o.append(m0('K', kbuf(g), 1))
    if g == dv[0] - 1: o.append(m0('V', (step + 1) % 2, 0))
    if g == dv[4] - 1: o.append(m0('V', (step + 1) % 2, 1))
    x = cfg.inc_slot
    if g == x + 1: o.append(S("s_add_u32", f"s{sOff0}", f"s{sOff0}", "0x8000"))
    if g == x + 3: o.append(S("s_add_u32", f"s{sOff1}", f"s{sOff1}", "0x8000"))
    if g == x + 5: o.append(scmp("s_cmp_ge_u32", f"s{sOff0}", "0x40000"))
    if g == x + 7: o.append(S("s_cselect_b32", f"s{sKill}", hex(DROP), 0, w_scc=False, r_scc=True))
    return o

def gap_mem(step, g): return [mem_ins(step, g, d) for d in MEM[g] if d[0] not in cfg.drop]

def compute_lgkm_waits():
    seq = []; prod = {}; covered = -1; res = {}
    for t in range(0, 6 * STEP):
        st, sl = divmod(t, STEP)
        nst, nsl = divmod(t + 1, STEP)
        nm = mfma_at(nst, nsl)
        need = max([prod.get(r, -1) for r in nm.x['AB']] + [-1])
        if sl == cfg.B1: need = max([need] + [i for i, (tt, d) in enumerate(seq) if d == 'K'])
        if sl == cfg.B2: need = max([need] + [i for i, (tt, d) in enumerate(seq) if d == 'V'])
        n = None
        if need > covered:
            tgt = need
            for i in range(len(seq) - 1, -1, -1):
                if seq[i][0] <= t - cfg.LAG: tgt = max(tgt, i); break
            n = len(seq) - 1 - tgt
            if n > 15: tgt = len(seq) - 1 - 15; n = 15
            covered = tgt
        res[(st, sl)] = n
        for d in MEM[sl]:
            if d[0] in ('DK', 'DV') or d[0] in cfg.drop: continue
            ins = mem_ins(2 + st % 2, sl, d)
            seq.append((t, d[0]))
            for r in ins.w: prod[r] = len(seq) - 1
    out = {}
    for sl in range(STEP):
        assert len({res[(s, sl)] for s in range(2, 6)}) == 1
        out[sl] = res[(4, sl)]
    return out

def gap(step, g, part='all'):
    head = [mfma_at(step, g)]
    n = LGW[g]
    if g == cfg.B1 or g == cfg.B2:
        head.append(wait(vm=8, lg=n))
        if not cfg.nobar: head.append(barrier())
    elif n is not None: head.append(wait(lg=n))
    head += scalar_ops(step, g)
    rest = gap_mem(step, g) + sm_ops(step, g)
    return head if part == 'head' else rest if part == 'rest' else head + rest

ENTRY = 41
EXIT = 169

def body_iter(st0, last=False):
    o = []
    o += gap(st0, ENTRY, 'rest')
    for s in range(ENTRY + 1, STEP): o += gap(st0, s)
    for s in range(0, EXIT):
        g = gap(st0 + 1, s)
        if s == EXIT - 2:
            g = gap(st0 + 1, s, 'head') + [scmp("s_cmp_eq_u32", f"s{sOff0}", hex(9 * 32768))] + gap(st0 + 1, s, 'rest')
        o += g
    o += gap(st0 + 1, EXIT, 'head') + [branch("s_cbranch_scc1", "L_exit", ['scc'])]
    if last: return o
    o += gap(st0 + 1, EXIT, 'rest')
    for s in range(EXIT + 1, STEP): o += gap(st0 + 1, s)
    for s in range(0, ENTRY): o += gap(st0 + 2, s)
    o += gap(st0 + 2, ENTRY, 'head') + [branch("s_branch", "L_loop")]
    return o

def scale4(src, tmp, pk=False):
    o = []
    for i in range(4): o.append(V("v_lshlrev_b32", f"v{tmp+2*i}", 16, f"v{src+i}"))
    for i in range(4): o.append(V("v_and_b32", f"v{tmp+2*i+1}", f"s{sMask}", f"v{src+i}"))
    if pk:
        for i in range(4): o.append(V("v_pk_mul_f32", f"v[{tmp+2*i}:{tmp+2*i+1}]", f"v[{tmp+2*i}:{tmp+2*i+1}]", f"s[{sC2}:{sC2+1}]"))
    else:
        for i in range(4): o.append(vmul(f"v{tmp+2*i}", f"s{sC}", f"v{tmp+2*i}"))
        for i in range(4): o.append(vmul(f"v{tmp+2*i+1}", f"s{sC}", f"v{tmp+2*i+1}"))
    for i in range(4): o.append(cvtpk(f"v{src+i}", f"v{tmp+2*i}", f"v{tmp+2*i+1}"))
    return o

def rowmax(Sbase, cols, t):
    o = []
    for n, c in enumerate(cols):
        b = Sbase + 8 * c
        o.append(V("v_max3_f32", f"v{t+2*n}", f"v{b}", f"v{b+1}", f"v{b+2}"))
        o.append(V("v_max3_f32", f"v{t+2*n+1}", f"v{b+3}", f"v{b+4}", f"v{b+5}"))
    for n, c in enumerate(cols):
        b = Sbase + 8 * c
        o.append(V("v_max3_f32", f"v{t+2*n}", f"v{t+2*n}", f"v{b+6}", f"v{b+7}"))
    if len(cols) == 1: o.append(nop(0))
    for n, c in enumerate(cols): o.append(V("v_max_f32", f"v{t+2*n}", f"v{t+2*n}", f"v{t+2*n+1}"))
    for sw in (swap16, swap32):
        for n, c in enumerate(cols): o.append(vmov(f"v{t+2*n+1}", f"v{t+2*n}"))
        o.append(nop(0 if len(cols) > 1 else 1))
        for n, c in enumerate(cols): o.append(sw(f"v{t+2*n}", f"v{t+2*n+1}"))
        for n, c in enumerate(cols): o.append(V("v_max_f32", f"v{t+2*n}" if sw is swap16 else f"v{MM+c}", f"v{t+2*n}", f"v{t+2*n+1}"))
    return o

def shift_by_max(Sbase, cols):
    o = []
    for c in cols:
        for a_ in range(2): o.append(mfma16_f32(('v', Sbase + 8 * c + 4 * a_), VQRT, MM + c, ('v', Sbase + 8 * c + 4 * a_)))
    for c in cols: o.append(mfma16_f32(('v', CI_SH if c == 2 else CI_OWN + 4 * c), VQRT, MM + c, 0))
    return o

def dense(ops):
    out = list(ops)
    i = 0
    while i < len(out) - 1:
        if out[i].k == 'trans' and out[i + 1].k == 'valu' and set(out[i].w) & set(out[i + 1].r):
            if i + 2 < len(out) and out[i + 2].k == 'trans': out[i + 1], out[i + 2] = out[i + 2], out[i + 1]; i += 1
            else: out.insert(i + 1, nop(0))
        i += 1
    return out

def stamp(idx, fine=0):
    if not cfg.stamps: return []
    if cfg.fine == 9 and idx != 0: return []
    if cfg.fine != fine and idx not in (0, 8, 9): return []
    return [raw(f"s_memtime s[{60+2*idx}:{61+2*idx}]", 'stampi')]

def prologue():
    o = []
    vmlist = []
    def a(x, tag=None):
        o.append(x)
        if x.k in ('vload', 'dma', 'vstore'): vmlist.append(tag)
    def wait_for(tag):
        last = max(i for i, t in enumerate(vmlist) if t == tag)
        return wait(vm=len(vmlist) - 1 - last)
    a(scmp("s_cmp_ge_u32", "s2", 256)); a(branch("s_cbranch_scc1", "L_end", ['scc']))
    a(raw("s_load_dwordx4 s[36:39], s[0:1], 0", 'smem', [], R('s', 36, 4)))
    a(raw("s_load_dwordx4 s[40:43], s[0:1], 16", 'smem', [], R('s', 40, 4)))
    if cfg.stamps:
        a(raw("s_load_dwordx2 s[58:59], s[0:1], 32", 'smem', [], R('s', 58, 2)))
        o += stamp(0)
        a(raw("s_memrealtime s[82:83]", 'stampi'))
    a(V("v_lshrrev_b32", "v1", 6, "v0"))
    a(V("v_and_b32", "v2", 63, "v0"))
    a(readfirst(f"s{sW}", "v1"))
    a(V("v_lshrrev_b32", "v3", 4, "v2"))
    a(V("v_and_b32", "v4", 15, "v2"))
    a(V("v_lshlrev_b32", f"v{VLIN}", 4, "v2"))
    if cfg.codepf:
        a(raw("s_getpc_b64 s[56:57]", 'salu', [], ['s56', 's57']))
        a(label("L_pc"))
        a(S("s_lshr_b32", f"s{sT}", "s2", 3)); a(S("s_and_b32", f"s{sT}", f"s{sT}", 3)); a(S("s_lshl_b32", f"s{sT}", f"s{sT}", 2))
        a(S("s_add_u32", f"s{sT}", f"s{sT}", f"s{sW}")); a(S("s_min_u32", f"s{sT}", f"s{sT}", cfg.codepf - 1)); a(S("s_lshl_b32", f"s{sT}", f"s{sT}", 10))
        a(raw(f"s_sub_u32 s{sT}, s{sT}, L_pc-{NAME}_kernel", 'salu', [f"s{sT}"], [f"s{sT}", 'scc']))
        a(S("s_ashr_i32", f"s{sT+1}", f"s{sT}", 31))
        a(S("s_add_u32", "s56", "s56", f"s{sT}")); a(S("s_addc_u32", "s57", "s57", f"s{sT+1}", r_scc=True))
        a(vmov("v7", "s57"))
        a(I(f"v_add_co_u32 v6, vcc, s56, v{VLIN}", 'valu', ['s56', f"v{VLIN}"], ['v6', 'vcc']))
        a(nop(1))
        a(I("v_addc_co_u32 v7, vcc, 0, v7, vcc", 'valu', ['v7', 'vcc'], ['v7', 'vcc']))
        a(I("global_load_dwordx4 a[0:3], v[6:7], off", 'vload', ['v6', 'v7'], R('a', 0, 4)), "PF")
    a(S("s_and_b32", f"s{sT}", "s2", 7))
    a(S("s_lshr_b32", f"s{sT+1}", "s2", 3))
    a(S("s_lshr_b32", f"s{sT+2}", "s2", 5))
    a(S("s_lshl_b32", f"s{sW8192}", f"s{sW}", 13))
    a(S("s_lshr_b32", f"s{sH}", f"s{sW}", 1))
    a(S("s_lshl_b32", f"s{sT+3}", f"s{sT}", 5)); a(S("s_add_u32", f"s{sT+3}", f"s{sT+3}", f"s{sT+1}"))
    a(S("s_mul_i32", f"s{sT+3}", f"s{sT+3}", 40960, w_scc=False))
    a(S("s_lshl_b32", f"s{sT+4}", f"s{sT}", 3)); a(S("s_add_u32", f"s{sT+4}", f"s{sT+4}", f"s{sT+2}"))
    a(S("s_lshl_b32", f"s{sT+4}", f"s{sT+4}", 18))
    a(V("v_xor_b32", "v5", "v3", "v4"))
    a(V("v_lshlrev_b32", "v5", 4, "v5"))
    a(V("v_lshl_add_u32", "v7", "v3", 8, "v5"))
    a(V("v_lshl_add_u32", "v6", "v4", 8, "v5"))
    a(V("v_add_u32", f"v{KDMA}", f"s{sW8192}", "v7"))
    for k in range(1, 4): a(V("v_xor_b32", f"v{KDMA+k}", 64 * k, f"v{KDMA}"))
    a(S("s_and_b32", f"s{sQS}", f"s{sW}", 1)); a(S("s_lshl_b32", f"s{sQS}", f"s{sQS}", 12)); a(S("s_add_u32", f"s{sQS}", f"s{sQS}", 32768))
    a(S("s_add_u32", f"s{sQO1}", f"s{sW8192}", 4096))
    a(smov(f"s{sOff0}", 0)); a(smov(f"s{sOff1}", 4096))
    SA, SB = Sb(0), Sb(1)
    RAWS = SB
    TWS = CI_OWN
    TRS = CI_OWN + 4
    TW = O_SHL
    TR = O_SHL + 4
    TM = P
    for k in range(4): a(V("v_add_u32", f"v{TWS+k}", LDS_V1, f"v{KDMA+k}"))
    a(S("s_add_u32", f"s{sT}", f"s{sW8192}", LDS_V1)); a(V("v_add_u32", f"v{TRS}", f"s{sT}", "v6"))
    for j in range(1, 4): a(V("v_xor_b32", f"v{TRS+j}", 64 * j, f"v{TRS}"))
    a(S("s_lshl_b32", f"s{sT}", f"s{sH}", 14)); a(V("v_add_u32", f"v{KADDR}", f"s{sT}", "v6"))
    for j in range(1, 4): a(V("v_xor_b32", f"v{KADDR+j}", 64 * j, f"v{KADDR}"))
    if cfg.alldma:
        for k in range(4): a(V("v_xor_b32", f"v{TMPS+4+k}", 64 * k, "v7"))
        a(smov("s92", 0)); a(smov("s93", 4096))
    a(smov(f"s{sC}", hex(SCALE_BITS))); a(smov(f"s{sMask}", "0xffff0000"))
    a(smov(f"s{sC2}", hex(SCALE_BITS))); a(smov(f"s{sC2+1}", hex(SCALE_BITS)))
    for base, n in ((SQ, 40960), (SK, 262144)): a(smov(f"s{base+2}", n)); a(smov(f"s{base+3}", "0x20000"))
    a(wait(lg=0))
    def srd(base, p, off, n):
        a(S("s_add_u32", f"s{base}", f"s{p}", f"s{off}")); a(S("s_addc_u32", f"s{base+1}", f"s{p+1}", 0, r_scc=True))
        a(S("s_and_b32", f"s{base+1}", f"s{base+1}", "0xffff"))
        if base not in (SQ, SK): a(smov(f"s{base+2}", n)); a(smov(f"s{base+3}", "0x20000"))
    o += stamp(1, 1)
    srd(SQ, 36, sT + 3, 40960)
    QD = TMPS + 4
    def qsh(n0, n1):
        for n in range(n0, n1):
            if cfg.alldma: a(dma(QD + n, SQ, f"s{sQS}", 1024 * n, reg=(('QS', 0), 'qs', True), flags=cfg.qld), f"QS{n}")
            else: a(vload(('v', RAWS + 4 * n), 4, VLIN, SQ, f"s{sQS}", 1024 * n, cfg.qld), f"QS{n}")
    def qown(n0, n1):
        for n in range(n0, n1):
            if cfg.alldma:
                if n == n0 or n == 4: a(S("s_add_u32", "m0", f"s{sW8192}", LDS_X + (4096 if n >= 4 else 0))); a(nop(0))
                a(dma(KDMA + n % 4, SQ, f"s{92 if n < 4 else 93}", 1024 * (n % 4), reg=(('QO', n // 4), 'qo', True), flags=cfg.qld), f"QO{n}")
            else: a(vload(('v', Q_OWN + 4 * n), 4, VLIN, SQ, f"s{sW8192 if n < 4 else sQO1}", 1024 * (n % 4), cfg.qld), f"QO{n}")
    def k0dma(n0=0, n1=8):
        for n in range(n0, n1):
            if n == n0 or n == 4: a(S("s_add_u32", "m0", f"s{sW8192}", LDS_K0 + (4096 if n >= 4 else 0))); a(nop(0))
            a(dma(KDMA + n % 4, SK, f"s{92 if n < 4 else 93}" if cfg.alldma else f"s{sOff0 if n < 4 else sOff1}", 1024 * (n % 4), reg=(('K', 0), 0, True), flags=cfg.ld), "K0")
    if cfg.alldma:
        a(S("s_add_u32", "m0", f"s{sW8192}", LDS_V1)); a(nop(0))
        qsh(0, 4)
    else: qsh(0, cfg.qsfirst)
    if cfg.qfirst:
        qown(0, cfg.qsplit)
        srd(SK, 38, sT + 4, 262144)
    else:
        srd(SK, 38, sT + 4, 262144)
        k0dma()
        if not cfg.alldma: qsh(cfg.qsfirst, 4)
        o += stamp(2, 1)
        qown(0, cfg.qsplit)
    o += stamp(1); o += stamp(3, 1)
    srd(SV, 40, sT + 4, 262144)
    srd(SO, 42, sT + 3, 40960)
    a(V("v_lshlrev_b32", "v1", 1, "v3")); a(V("v_xor_b32", "v1", "v1", "v4"))
    a(V("v_lshlrev_b32", "v1", 4, "v1")); a(V("v_lshl_add_u32", "v1", "v3", 8, "v1"))
    a(V("v_add_u32", f"v{VDMA}", f"s{sW8192}", "v1")); a(V("v_xor_b32", f"v{VDMA+1}", 128, f"v{VDMA}"))
    for j in range(4): a(V("v_xor_b32", f"v{KADDR+4+j}", 16384, f"v{KADDR+j}"))
    for k in range(4): a(V("v_add_u32", f"v{TW+k}", LDS_X, f"v{KDMA+k}"))
    a(S("s_add_u32", f"s{sT}", f"s{sW8192}", LDS_X)); a(V("v_add_u32", f"v{TR}", f"s{sT}", "v6"))
    for j in range(1, 4): a(V("v_xor_b32", f"v{TR+j}", 64 * j, f"v{TR}"))
    a(V("v_lshrrev_b32", "v1", 2, "v4")); a(V("v_lshl_add_u32", "v1", "v3", 2, "v1"))
    a(V("v_and_b32", "v5", 7, "v1"))
    a(S("s_lshl_b32", f"s{sT}", f"s{sH}", 2)); a(V("v_xor_b32", "v5", f"s{sT}", "v5"))
    a(V("v_lshlrev_b32", "v5", 5, "v5")); a(V("v_lshl_add_u32", "v5", "v1", 8, "v5"))
    a(V("v_and_b32", "v1", 3, "v4")); a(V("v_lshl_add_u32", "v5", "v1", 3, "v5"))
    a(S("s_lshl_b32", f"s{sT}", f"s{sH}", 14)); a(V("v_add_u32", "v5", f"s{sT}", "v5"))
    a(V("v_add_u32", f"v{VADDR}", LDS_V0, "v5"))
    a(V("v_xor_b32", "v5", 16384, "v5")); a(V("v_add_u32", f"v{VADDR+8}", LDS_V0, "v5"))
    for hf in range(2):
        for p in range(1, 8): a(V("v_xor_b32", f"v{VADDR+8*hf+p}", 32 * p, f"v{VADDR+8*hf}"))
    a(S("s_xor_b32", f"s{sT}", f"s{sW}", 2)); a(S("s_lshl_b32", f"s{sT+1}", f"s{sT}", 12)); a(S("s_add_u32", f"s{sT+1}", f"s{sT+1}", LDS_MG))
    a(V("v_add_u32", f"v{MGW}", f"s{sT+1}", f"v{VLIN}"))
    a(S("s_lshl_b32", f"s{sT+1}", f"s{sW}", 12)); a(S("s_add_u32", f"s{sT+1}", f"s{sT+1}", LDS_MG))
    a(V("v_add_u32", f"v{MGR}", f"s{sT+1}", f"v{VLIN}"))
    a(V("v_lshrrev_b32", "v1", 1, f"v{VLIN}"))
    a(S("s_lshl_b32", f"s{sT+1}", f"s{sT}", 9)); a(S("s_add_u32", f"s{sT+1}", f"s{sT+1}", LDS_ML)); a(V("v_add_u32", f"v{MLW}", f"s{sT+1}", "v1"))
    a(S("s_lshl_b32", f"s{sT+1}", f"s{sW}", 9)); a(S("s_add_u32", f"s{sT+1}", f"s{sT+1}", LDS_ML)); a(V("v_add_u32", f"v{MLR}", f"s{sT+1}", "v1"))
    a(S("s_mul_i32", f"s{sT}", f"s{sW}", 8704, w_scc=False))
    a(V("v_lshlrev_b32", "v5", 3, "v3"))
    a(V("v_mul_u32_u24", "v6", 272, "v4")); a(V("v_add_u32", "v6", "v6", "v5")); a(V("v_add_u32", f"v{AW}", f"s{sT}", "v6"))
    a(S("s_lshl_b32", f"s{sT+4}", f"s{sH}", 3)); a(V("v_xor_b32", "v6", f"s{sT+4}", "v4")); a(V("v_lshlrev_b32", "v6", 4, "v6"))
    a(V("v_mul_u32_u24", "v7", 272, "v3")); a(V("v_add_u32", "v6", "v6", "v7")); a(V("v_add_u32", f"v{AR}", f"s{sT}", "v6"))
    a(S("s_add_u32", f"s{sT}", f"s{sW8192}", LDS_V0))
    a(V("v_mul_u32_u24", "v6", 144, "v4")); a(V("v_add_u32", "v6", "v6", "v5")); a(V("v_add_u32", f"v{SW}", f"s{sT}", "v6"))
    a(V("v_lshrrev_b32", "v5", 3, "v2")); a(V("v_and_b32", "v6", 7, "v2")); a(V("v_lshlrev_b32", "v6", 4, "v6"))
    a(V("v_mul_u32_u24", "v7", 144, "v5")); a(V("v_add_u32", "v7", "v7", "v6")); a(V("v_add_u32", f"v{SR}", f"s{sT}", "v7"))
    a(V("v_lshl_add_u32", f"v{SG}", "v5", 8, "v6"))
    a(vmov(f"v{VQRT}", "0xbe800000"))
    a(vmov("v2", "0x3f803f80"))
    Z = TMPS
    for i in range(4): a(vmov(f"v{Z+i}", 0))
    for kv, b0, b1 in (('K', LDS_K0, LDS_K1), ('V', LDS_V0, LDS_V1)):
        for buf, base in ((0, b0), (1, b1)):
            for grp in range(2):
                a(S("s_add_u32", f"s{m0_val_reg(kv, buf, grp)}", f"s{sW8192}", base + grp * 4096))
    a(smov(f"s{sKill}", 0))
    for db in range(4): a(mfma(('v', O_OWN + 16 * db), ('v', Z), ('v', Z), 0))
    for b in (O_SHH, L_OWN): a(mfma(('a', b), ('v', Z), ('v', Z), 0))
    a(nop(7)); a(nop(3))
    for i in range(4): a(accw(f"a{ONES+i}", "v2"))
    o += stamp(2); o += stamp(4, 1)
    qown(cfg.qsplit, 8)
    if cfg.qfirst: k0dma()
    def vdma(buf, content, tag, only=None):
        for grp in range(2):
            a(S("s_mov_b32", "m0", f"s{m0_val_reg('V', buf, grp)}", w_scc=False)); a(nop(0))
            for n in range(4):
                if only is None or only(4 * grp + n):
                    a(dma(VDMA + n % 2, SV, f"s{sOff0 if grp == 0 else sOff1}", 1024 * n, reg=(('V', buf), content, True), flags=cfg.ld), tag)
    if cfg.qfirst:
        a(wait_for("QS3"))
        for j in range(4): a(dsr128(('v', RAWS + 4 * j), TRS + j, 0, reg=(('QS', 0), 'qs', True)))
        for j in range(4):
            a(wait(lg=3 - j))
            o.extend(scale4(RAWS + 4 * j, TM + 8 * (j % 2), pk=True))
            for i in range(4): a(accw(f"a{Q_SH+4*j+i}", f"v{RAWS+4*j+i}"))
        o.extend(stamp(1, 4))
        for c in range(2):
            a(wait_for(f"QO{4*c+3}"))
            for j in range(4): a(dsr128(('v', Q_OWN + 16 * c + 4 * j), TR + j, 4096 * c, reg=(('QO', c), 'qo', True)))
            if c == cfg.v0c: vdma(0, 0, "V0")
            for j in range(4):
                a(wait(lg=3 - j))
                o.extend(scale4(Q_OWN + 16 * c + 4 * j, TM + 8 * (j % 2), pk=True))
            o.extend(stamp(2 + c, 4))
        if cfg.v0c == 2: vdma(0, 0, "V0")
        a(wait_for("K0")); a(barrier())
        o.extend(stamp(4, 4))
        for aa in range(2):
            for j in range(4): a(dsr128(('a', KF + 16 * aa + 4 * j), KADDR + j, koff(0) + 4096 * aa, reg=(('K', 0), 0, False)))
        a(smov(f"s{sOff0}", 32768)); a(smov(f"s{sOff1}", 32768 + 4096))
        a(mfma(('v', O_SHL), ('v', Z), ('v', Z), 0))
        rm = [rowmax(SA, [c], TMPS + 4 if c != 1 else 0) for c in range(3)]
        for k in range(24):
            if k < 8: a(wait(lg=7 - k))
            a(qk_mfma(0, k, first_c=False))
            if 14 <= k < 23: o += rm[0][2 * (k - 14):2 * (k - 14) + 2]
        o += rm[0][18:]
        o.extend(stamp(5, 4))
        a(nop(0))
        o += shift_by_max(SA, [0])
        o += rm[1]
        for grp in range(2):
            a(S("s_mov_b32", "m0", f"s{m0_val_reg('K', 1, grp)}", w_scc=False)); a(nop(0))
            for k in range(4): a(dma(KDMA + k, SK, f"s{sOff0 if grp == 0 else sOff1}", 1024 * k, reg=(('K', 1), 1, True), flags=cfg.ld), "K1")
        o += shift_by_max(SA, [1])
        o += rm[2]
        a(nop(1))
        o += shift_by_max(SA, [2])
        headops = []
        for s_ in range(EX0[0], ENTRY): headops += sm_ops(0, s_)
        preK, preV = [], []
        for sl in range(0, ENTRY):
            for d in MEM[sl]:
                if d[0] == 'K': preK.append(mem_ins(0, sl, d))
                elif d[0] == 'V' and d[1] == 0: preV.append(mem_ins(0, sl, d))
        o += preK
        o.extend(stamp(6, 4))
        h = dense(headops)
        o += h[:-3]; a(nop(4)); o += h[-3:]
        o.extend(stamp(7, 4))
        a(wait_for("V0")); a(barrier())
        o += preV
        vdma(1, 1, "V1", lambda n: cfg.dv_slots[n] < ENTRY)
        nxt = [n for n in range(8) if not cfg.dv_slots[n] < ENTRY]
        if nxt and cfg.dv_slots[0 if nxt[0] < 4 else 4] - 1 < ENTRY:
            a(S("s_mov_b32", "m0", f"s{m0_val_reg('V', 1, 0 if nxt[0] < 4 else 1)}", w_scc=False))
        a(wait(lg=0))
        if cfg.stamps: a(raw("s_memrealtime s[86:87]", 'stampi'))
        return o
    if not cfg.alldma:
        for n in range(4):
            a(wait_for(f"QS{n}"))
            o.extend(scale4(RAWS + 4 * n, TM + 8 * (n % 2), pk=True))
            a(dsw128(TWS + n, ('v', RAWS + 4 * n), 1024 * n, reg=(('QS', 0), 'qs', True)))
        o += stamp(5, 1)
        a(wait_for("K0")); a(wait(lg=0))
        for j in range(4): a(dsr128(('a', Q_SH + 4 * j), TRS + j, 0, reg=(('QS', 0), 'qs', True)))
        a(barrier())
    else:
        a(wait_for("QS3"))
        for j in range(4): a(dsr128(('v', RAWS + 4 * j), TRS + j, 0, reg=(('QS', 0), 'qs', True)))
        for j in range(4):
            a(wait(lg=3 - j))
            o.extend(scale4(RAWS + 4 * j, TM + 8 * (j % 2), pk=True))
            for i in range(4): a(accw(f"a{Q_SH+4*j+i}", f"v{RAWS+4*j+i}"))
        o += stamp(5, 1)
        a(wait_for("K0")); a(barrier())
    for aa in range(2):
        for j in range(4): a(dsr128(('a', KF + 16 * aa + 4 * j), KADDR + j, koff(0) + 4096 * aa, reg=(('K', 0), 0, False)))
    o += stamp(6, 1)
    for k in range(16, 24):
        if k < 20: a(wait(lg=7 - (k - 16)))
        if k == 20: a(wait(lg=0))
        a(qk_mfma(0, k, first_c=False))
    o += stamp(3); o += stamp(7, 1)
    def k1dma():
        for grp in range(2):
            a(S("s_mov_b32", "m0", f"s{m0_val_reg('K', 1, grp)}", w_scc=False)); a(nop(0))
            for k in range(4): a(dma(KDMA + k, SK, f"s{sOff0 if grp == 0 else sOff1}", 1024 * k, reg=(('K', 1), 1, True), flags=cfg.ld), "K1")
    if not cfg.alldma:
        def piece(n, pk):
            a(wait_for(f"QO{n}"))
            o.extend(scale4(Q_OWN + 4 * n, TM + 8 * (n % 2), pk=pk))
            a(dsw128(TW + n % 4, ('v', Q_OWN + 4 * n), 1024 * n, reg=(('QO', 0), 'qo', True)))
        piece(0, False)
        o += rowmax(SA, [2], TM)
        a(nop(1))
        o += shift_by_max(SA, [2])
        o += stamp(4)
        if cfg.v0pos == 0: vdma(0, 0, "V0")
        for n in range(1, 8):
            piece(n, n >= 2)
            if n == cfg.v0pos: vdma(0, 0, "V0")
        o += stamp(5)
        a(smov(f"s{sOff0}", 32768)); a(smov(f"s{sOff1}", 32768 + 4096))
        a(wait(lg=0))
        for c in range(2):
            for j in range(4): a(dsr128(('v', Q_OWN + 16 * c + 4 * j), TR + j, 4096 * c, reg=(('QO', 0), 'qo', True)))
        for k in range(16):
            if k < 4: a(wait(lg=7 - k))
            if k == 8: a(wait(lg=0))
            a(qk_mfma(0, k, first_c=False))
        a(mfma(('v', O_SHL), ('v', Z), ('v', Z), 0))
        k1dma()
    else:
        vdma(0, 0, "V0")
        a(nop(3))
        o += rowmax(SA, [2], TM)
        a(nop(1))
        o += shift_by_max(SA, [2])
        o += stamp(4)
        a(smov(f"s{sOff0}", 32768)); a(smov(f"s{sOff1}", 32768 + 4096))
        headops = []
        for s_ in range(EX0[0], ENTRY): headops += sm_ops(0, s_)
        def touches(x, lo, hi): return bool((set(x.w) | set(x.r)) & set(R('v', SA + lo, hi - lo)))
        h0 = dense([x for x in headops if touches(x, 0, 8)])
        h1 = dense([x for x in headops if not touches(x, 0, 8)])
        preK, preV = [], []
        for sl in range(0, ENTRY):
            for d in MEM[sl]:
                if d[0] == 'K': preK.append(mem_ins(0, sl, d))
                elif d[0] == 'V' and d[1] == 0: preV.append(mem_ins(0, sl, d))
        for c in range(2):
            o.extend(stamp(1 + 3 * c, 4))
            a(wait_for(f"QO{4*c+3}"))
            o.extend(stamp(2 + 3 * c, 4))
            for j in range(4): a(dsr128(('v', Q_OWN + 16 * c + 4 * j), TR + j, 4096 * c, reg=(('QO', c), 'qo', True)))
            if c == 1: k1dma()
            for j in range(4):
                a(wait(lg=3 - j))
                o.extend(scale4(Q_OWN + 16 * c + 4 * j, (TM + 8 * (j % 2)) if c == 0 else Pb(1), pk=True))
            a(nop(1))
            for k in range(8 * c, 8 * c + 8): a(qk_mfma(0, k, first_c=False))
            o.extend(stamp(3 + 3 * c, 4))
            if c == 0:
                a(nop(7))
            else:
                a(mfma(('v', O_SHL), ('v', Z), ('v', Z), 0))
                o += preK
            o += rowmax(SA, [c], TMPS + 4)
            a(nop(1))
            o += shift_by_max(SA, [c])
            a(nop(7)); a(nop(1))
            o += h0 if c == 0 else h1
            if c == 0: o += stamp(5)
        o += stamp(6); o.extend(stamp(7, 4))
        a(wait_for("V0")); a(barrier())
        o += preV
        vdma(1, 1, "V1", lambda n: cfg.dv_slots[n] < ENTRY)
        nxt = [n for n in range(8) if not cfg.dv_slots[n] < ENTRY]
        if nxt and cfg.dv_slots[0 if nxt[0] < 4 else 4] - 1 < ENTRY:
            a(S("s_mov_b32", "m0", f"s{m0_val_reg('V', 1, 0 if nxt[0] < 4 else 1)}", w_scc=False))
        a(wait(lg=0))
        if cfg.fine != 4: o += stamp(7)
        if cfg.stamps: a(raw("s_memrealtime s[86:87]", 'stampi'))
        return o
    o += stamp(6)
    preK, preV = [], []
    for sl in range(0, ENTRY):
        for d in MEM[sl]:
            if d[0] == 'K': preK.append(mem_ins(0, sl, d))
            elif d[0] == 'V' and d[1] == 0: preV.append(mem_ins(0, sl, d))
    o += preK
    o += rowmax(SA, [0, 1], TMPS + 4)
    a(nop(1))
    o += shift_by_max(SA, [0, 1])
    head = []
    for s in range(EX0[0], ENTRY): head += sm_ops(0, s)
    a(nop(5))
    o += dense(head)
    if cfg.B2 < ENTRY: a(wait_for("V0")); a(barrier())
    o += preV
    def v1_in_prologue(n): return cfg.dv_slots[n] < ENTRY
    vdma(1, 1, "V1", v1_in_prologue)
    nxt = [n for n in range(8) if not v1_in_prologue(n)]
    if nxt and cfg.dv_slots[0 if nxt[0] < 4 else 4] - 1 < ENTRY:
        a(S("s_mov_b32", "m0", f"s{m0_val_reg('V', 1, 0 if nxt[0] < 4 else 1)}", w_scc=False))
    a(wait(lg=0))
    o += stamp(7)
    if cfg.stamps: a(raw("s_memrealtime s[86:87]", 'stampi'))
    return o

class Seq:
    def __init__(self): self.o = []; self.ds = []; self.done = -1; self.prod = {}
    def wait_idx(self, idx):
        if idx > self.done:
            n = min(15, len(self.ds) - 1 - idx)
            self.o.append(wait(lg=n)); self.done = len(self.ds) - 1 - n
    def wait_op(self, x): self.wait_idx(max(i for i, y in enumerate(self.ds) if y is x))
    def __call__(self, x):
        need = max([self.prod.get(r, -1) for r in x.r] + [-1])
        if x.k not in ('dsr',): need = max([need] + [self.prod.get(r, -1) for r in x.w])
        self.wait_idx(need) if need >= 0 else None
        self.o.append(x)
        if x.k in ('dsr', 'dsw'):
            self.ds.append(x)
            for r in x.w: self.prod[r] = len(self.ds) - 1
        return x

def epilogue():
    q = Seq(); a = q
    st = 7
    SF = cfg.store_flags
    vr = []
    for s, stp in [(s, st) for s in range(EXIT, STEP)] + [(s, st + 1) for s in range(0, cfg.B2 + 1)]:
        for d in MEM[s]:
            if d[0] == 'V' and d[1] == 3: vr.append((d[2], mem_ins(stp, s, d)))
    vr.sort(key=lambda x: x[0]); vr = [x for _, x in vr]
    tail = []
    for s in list(range(EXIT, STEP)) + list(range(0, EX0[0])):
        tail += [x for x in sm_ops(st, s) if (set(x.w) | set(x.r)) & set(R('v', Sb(1), 16))]
    LO, RI = Pb(0), Pb(0) + 2
    ML_, MB = Pb(0) + 4, Pb(0) + 6
    GA = Pb(0) + 8
    RB = Sb(0)
    OT, OT1, STG = (('OT', 0), 'ot', True), (('OT', 1), 'ot', True), (('ST', 0), 'st', True)
    MGR_, MLR_ = (('MG', 0), 'mg', False), (('MG', 0), 'mg', False)
    mm = [ones_mfma(3, 0)] + [pv_mfma(3, p, 0) for p in range(8)] + [ones_mfma(3, 1)] + [pv_mfma(3, p, 1) for p in range(8)]
    def fin(b, rinv_pair, sel, addr, off, reg, pk):
        if not pk: mul = [vmul(f"v{b+i}", f"v{rinv_pair+sel}", f"v{b+i}") for i in range(4)]
        else: mul = [V("v_pk_mul_f32", f"v[{b+i}:{b+i+1}]", f"v[{b+i}:{b+i+1}]", f"v[{rinv_pair}:{rinv_pair+1}]",
                       mods="op_sel:[0,1] op_sel_hi:[1,1]" if sel else "op_sel:[0,0] op_sel_hi:[1,0]") for i in (0, 2)]
        return mul + [cvtpk(f"v{b}", f"v{b}", f"v{b+1}"), cvtpk(f"v{b+1}", f"v{b+2}", f"v{b+3}"), dsw64(addr, ('v', b), off, reg=reg)]
    F = []
    def f(n, *xs):
        for x in xs: F.append((n, x))
    nv = cfg.epi_nv
    for x in vr[:nv]: a(x)
    t = dense(tail); rest = vr[nv:]
    while rest or t:
        f(0, *rest[:2]); rest = rest[2:]
        if t: f(0, t.pop(0))
    mgw = [dsw128(MGW, ('a', O_SHH + 4 * p), 1024 * p, reg=MGR_) for p in range(4)]
    mlw = dsw64(MLW, ('v', ML_), 0, reg=MLR_)
    pub = [V("v_sub_f32", f"v{ML_}", 0, f"v{CI_SH}"), accr(f"v{ML_+1}", f"a{L_SH}")] + mgw + [mlw]
    c0n = cfg.epi_ng
    if cfg.epi_pub == 0: f(0, *pub)
    f(4, accr(f"v{LO}", f"a{L_OWN}"))
    f(0, smov(f"s{sT+2}", hex(cfg.thresh)), vrcp(f"v{RI}", f"v{LO}"))
    c0w = []
    for p in range(c0n):
        x = fin(O_OWN + 4 * p, RI, 0, AW, p * 32, OT, False); c0w.append(x[-1]); f(p + 5, *x)
    f(17, accr(f"v{LO+1}", f"a{L_OWN+4}"))
    k = 0
    for x in stamp(1, 3): a(x)
    for n, m in enumerate(mm):
        if n == 1 and q.done < 0: q.o.append(wait(lg=min(15, len(q.ds))))
        a(m)
        c = 0
        while c < 2 and k < len(F) and F[k][0] <= n:
            x = F[k][1]; a(x); k += 1
            if x.k == 'trans': c += 2
            elif x.k not in ('salu', 'wait'): c += 1
    for x in stamp(6, 3): a(x)
    for _, x in F[k:]: a(x)
    if cfg.epi_pub == 1:
        for x in pub: a(x)
    a(vrcp(f"v{RI+1}", f"v{LO+1}")); a(nop(0))
    def merge_in():
        q.wait_op(mlw); a(barrier())
        for p in range(4): a(dsr128(('v', RB + 4 * p), MGR, 1024 * p, reg=MGR_))
        a(dsr64(('v', MB), MLR, 0, reg=MLR_))
    if cfg.epi_pub == 0: merge_in()
    c0 = [fin(O_OWN + 4 * p, RI, 0, AW, p * 32, OT, True) for p in range(c0n, 8)]
    c1 = [fin(O_OWN + 32 + 4 * p, RI, 1, AW, p * 32 + 4352, OT1, True) for p in range(8)]
    G = []
    G += [V("v_max_f32", "v1", f"v{ML_}", f"v{MB}"), V("v_sub_f32", "v2", f"v{ML_}", "v1"), V("v_sub_f32", "v3", f"v{MB}", "v1"),
          vexp("v2", "v2"), vexp("v3", "v3"),
          vcmp("v_cmp_nle_f32", "s[54:55]", f"v{ML_+1}", f"s{sT+2}"), vcmp("v_cmp_nle_f32", "s[56:57]", f"v{MB+1}", f"s{sT+2}"),
          vmul("v1", "v2", f"v{ML_+1}"), V("v_fmac_f32", "v1", "v3", f"v{MB+1}", rmw=True),
          raw("s_or_b64 s[54:55], s[54:55], s[56:57]", 'salu', ['s54', 's55', 's56', 's57'], ['s54', 's55', 'scc']),
          vrcp("v1", "v1"),
          vcmp("v_cmp_nle_f32", "s[52:53]", f"v{LO}", f"s{sT+2}"), vcmp("v_cmp_nle_f32", "s[56:57]", f"v{LO+1}", f"s{sT+2}"),
          vmul(f"v{GA}", "v2", "v1"), vmul(f"v{GA+1}", "v3", "v1"),
          raw("s_or_b64 s[52:53], s[52:53], s[56:57]", 'salu', ['s52', 's53', 's56', 's57'], ['s52', 's53', 'scc'])]
    for g_ in c0:
        for x in g_: a(x)
        if cfg.epi_pub == 0:
            for _ in range(2):
                if G: a(G.pop(0))
    lastw = [y for y in q.ds if y.k == 'dsw' and y.x.get('reg') == OT][-1]
    for x in stamp(7, 3): a(x)
    sc = []
    if cfg.force_slow:
        sc += [raw("s_mov_b64 s[54:55], -1", 'salu', [], ['s54', 's55']), raw("s_mov_b64 s[52:53], -1", 'salu', [], ['s52', 's53'])]
    sc += [smov(f"s{SO2}", f"s{SO}"), smov(f"s{SO2+1}", f"s{SO+1}"), smov(f"s{SO2+3}", "0x20000"),
           scmp("s_cmp_lg_u64", "s[54:55]", 0), S("s_cselect_b32", f"s{SO2+2}", 0, 40960, w_scc=False, r_scc=True),
           S("s_add_u32", f"s{sT+1}", f"s{sW8192}", 4096),
           S("s_lshl_b32", f"s{sT+3}", f"s{sH}", 7), S("s_add_u32", f"s{sT+3}", f"s{sT+3}", f"s{sQS}"), S("s_add_u32", f"s{sT+4}", f"s{sT+3}", 2048)]
    R0 = Sb(1)
    for x in c1[0]: a(x)
    q.wait_op(lastw)
    for n in range(4): a(dsr128(('v', R0 + 4 * n), AR, 1088 * n, reg=OT))
    st0 = [vstore(('v', R0 + 4 * n), 4, VLIN, SO, f"s{sW8192}", 1024 * n, SF) for n in range(4)]
    if cfg.epi_pub == 1: merge_in()
    for p in range(1, 8):
        for x in c1[p]: a(x)
        if st0: a(st0.pop(0))
        for _ in range(3):
            if G: a(G.pop(0))
    for x in G: a(x)
    lastw = c1[7][-1]
    for x in st0: a(x)
    for x in sc: a(x)
    sh = []
    for p in range(4):
        b, r = O_SHL + 4 * p, RB + 4 * p
        x = [V("v_pk_mul_f32", f"v[{b+i}:{b+i+1}]", f"v[{b+i}:{b+i+1}]", f"v[{GA}:{GA+1}]", mods="op_sel:[0,0] op_sel_hi:[1,0]") for i in (0, 2)]
        x += [V("v_pk_fma_f32", f"v[{b+i}:{b+i+1}]", f"v[{r+i}:{r+i+1}]", f"v[{GA}:{GA+1}]", f"v[{b+i}:{b+i+1}]", mods="op_sel:[0,1,0] op_sel_hi:[1,1,1]") for i in (0, 2)]
        x += [cvtpk(f"v{b}", f"v{b}", f"v{b+1}"), cvtpk(f"v{b+1}", f"v{b+2}", f"v{b+3}"), dsw64(SW, ('v', b), p * 32, reg=STG)]
        sh.append(x)
    for x in sh[0] + sh[1]: a(x)
    q.wait_op(lastw)
    R1 = O_OWN
    for n in range(4, 8): a(dsr128(('v', R1 + 4 * (n - 4)), AR, 1088 * n, reg=OT1))
    for x in sh[2] + sh[3]: a(x)
    for n in range(4, 8): a(vstore(('v', R1 + 4 * (n - 4)), 4, VLIN, SO, f"s{sT+1}", 1024 * (n % 4), SF))
    q.wait_op(sh[3][-1])
    for n in range(2): a(dsr128(('v', O_SHL + 4 * n), SR, 1152 * n, reg=STG))
    for n in range(2): a(vstore(('v', O_SHL + 4 * n), 4, SG, SO2, f"s{sT+3+n}", 0, SF))
    for x in stamp(9): a(x)
    a(raw("s_or_b64 s[56:57], s[52:53], s[54:55]", 'salu', ['s52', 's53', 's54', 's55'], ['s56', 's57', 'scc']))
    if not (cfg.fakeqk or cfg.fakepv): a(branch("s_cbranch_scc1", "L_slow", ['scc']))
    return q.o

def store_tile_rows(Oreg, rinv, soff):
    o = []
    for db in range(4):
        b = Oreg + 16 * db
        for i in range(16): o.append(vmul(f"v{b+i}", f"v{rinv}", f"v{b+i}"))
        for m in range(8): o.append(cvtpk(f"v{b+m}", f"v{b+2*m}", f"v{b+2*m+1}"))
        for pr in range(2):
            r0 = b + 4 * pr
            o.append(swap32(f"v{r0}", f"v{r0+2}")); o.append(swap32(f"v{r0+1}", f"v{r0+3}"))
        for pr in range(2): o.append(vstore(('v', b + 4 * pr), 4, VQ, SO, soff, db * 64 + pr * 32))
    return o

def slow_path():
    o = []; a = o.append
    Kr, Sr, Vr, Or, Pr = 80, 112, 128, O_OWN, 72
    mreg, lreg = SLM, SLL
    a(comment("---- fallback: recompute a 32-row tile with the true row maximum (pass 1: max over all keys, pass 2: softmax and P.V)"))
    a(label("L_slow"))
    a(wait(vm=0, lg=0))
    a(smov(f"s{SO+2}", 40960))
    a(V("v_bfe_u32", "v1", f"v{VLIN}", 4, 5)); a(V("v_lshrrev_b32", "v2", 9, f"v{VLIN}"))
    a(V("v_lshlrev_b32", f"v{VQ}", 4, "v2")); a(V("v_lshl_add_u32", f"v{VQ}", "v1", 8, f"v{VQ}"))
    a(scmp("s_cmp_lg_u64", "s[52:53]", 0)); a(branch("s_cbranch_scc0", "L_slow_sh", ['scc']))
    a(smov("s33", f"s{sW8192}"))
    a(raw("s_mov_b64 s[52:53], 0", 'salu', [], ['s52', 's53']))
    a(raw("s_mov_b64 s[56:57], -1", 'salu', [], ['s56', 's57']))
    a(branch("s_branch", "L_slow_tile"))
    a(label("L_slow_sh"))
    a(scmp("s_cmp_lg_u64", "s[54:55]", 0)); a(branch("s_cbranch_scc0", "L_end", ['scc']))
    a(scmp("s_cmp_lg_u32", f"s{sH}", 0)); a(branch("s_cbranch_scc1", "L_end", ['scc']))
    a(smov("s33", 32768))
    a(raw("s_mov_b64 s[54:55], 0", 'salu', [], ['s54', 's55']))
    a(S("s_lshl_b32", "s38", f"s{sW}", 4)); a(S("s_lshl_b32", "s56", "0xffff", "s38")); a(smov("s57", "s56"))
    a(label("L_slow_tile"))
    for j in range(8): a(vload(('v', Q_OWN + 4 * j), 4, VQ, SQ, "s33", 32 * j))
    a(wait(vm=0))
    for g in range(8): o.extend(scale4(Q_OWN + 4 * g, 240, pk=False))
    a(vmov(f"v{mreg}", "0xff800000"))
    def qk():
        for j in range(8): a(vload(('v', Kr + 4 * j), 4, VQ, SK, "s38", 32 * j))
        a(wait(vm=0))
        for j in range(8): a(mfma(('v', Sr), ('v', Kr + 4 * j), ('v', Q_OWN + 4 * j), 0 if j == 0 else ('v', Sr)))
        a(nop(15))
    a(smov("s38", 0))
    a(label("L_slow_p1"))
    qk()
    for i in range(16): a(V("v_max_f32", f"v{mreg}", f"v{mreg}", f"v{Sr+i}"))
    a(S("s_add_u32", "s38", "s38", 8192)); a(scmp("s_cmp_lt_u32", "s38", 262144)); a(branch("s_cbranch_scc1", "L_slow_p1", ['scc']))
    a(vmov("v1", f"v{mreg}")); a(nop(1)); a(swap32(f"v{mreg}", "v1")); a(V("v_max_f32", f"v{mreg}", f"v{mreg}", "v1"))
    a(vmov(f"v{lreg}", 0))
    for i in range(64): a(vmov(f"v{Or+i}", 0))
    a(V("v_lshrrev_b32", "v2", 8, f"v{VQ}"))
    a(V("v_bfe_u32", "v3", f"v{VQ}", 4, 1))
    a(V("v_lshlrev_b32", "v2", 1, "v2")); a(V("v_lshl_add_u32", "v2", "v3", 10, "v2"))
    a(smov("s38", 0))
    a(label("L_slow_p2"))
    qk()
    for i in range(16): a(V("v_sub_f32", f"v{Sr+i}", f"v{Sr+i}", f"v{mreg}"))
    for i in range(16): a(vexp(f"v{Sr+i}", f"v{Sr+i}"))
    a(nop(0))
    for i in range(16): a(vadd(f"v{lreg}", f"v{lreg}", f"v{Sr+i}"))
    for m in range(8): a(cvtpk(f"v{Pr+m}", f"v{Sr+2*m}", f"v{Sr+2*m+1}"))
    for ks in range(2):
        a(S("s_add_u32", "s39", "s38", ks * 4096))
        for db in range(4):
            for r in range(4):
                for e in range(2):
                    j = 2 * r + e
                    off = (8 * (j // 4) + j % 4) * 256 + db * 64
                    a(vload(('v', Kr + 8 * db + 2 * r + e), 1, 2, SV, "s39", off, op="buffer_load_ushort"))
        a(wait(vm=0))
        for db in range(4):
            for r in range(4): a(V("v_lshl_or_b32", f"v{Vr+4*db+r}", f"v{Kr+8*db+2*r+1}", 16, f"v{Kr+8*db+2*r}"))
        a(nop(1))
        for db in range(4): a(mfma(('v', Or + 16 * db), ('v', Vr + 4 * db), ('v', Pr + 4 * ks), ('v', Or + 16 * db)))
        a(nop(7))
    a(S("s_add_u32", "s38", "s38", 8192)); a(scmp("s_cmp_lt_u32", "s38", 262144)); a(branch("s_cbranch_scc1", "L_slow_p2", ['scc']))
    a(nop(15))
    a(vmov("v1", f"v{lreg}")); a(nop(1)); a(swap32(f"v{lreg}", "v1")); a(vadd(f"v{lreg}", f"v{lreg}", "v1"))
    a(vrcp("v5", f"v{lreg}")); a(nop(0))
    for x in store_tile_rows(Or, 5, "s33"):
        if x.k == 'vstore':
            a(raw("s_mov_b64 exec, s[56:57]", 'salu', ['s56', 's57'], ['exec'])); a(x); a(raw("s_mov_b64 exec, -1", 'salu', [], ['exec'])); a(nop(1))
        else: a(x)
    a(wait(vm=0))
    a(branch("s_branch", "L_slow_sh"))
    return o

def stamp_out():
    o = []
    if not cfg.stamps: return o
    a = o.append
    a(raw("s_waitcnt vmcnt(0)", 'wait', vm=0)); o += [raw("s_memtime s[80:81]", 'stampi'), raw("s_memrealtime s[84:85]", 'stampi')]
    a(raw("s_waitcnt lgkmcnt(0)", 'wait', lg=0))
    if cfg.stamp_wg >= 0:
        a(scmp("s_cmp_lg_u32", "s2", cfg.stamp_wg)); a(branch("s_cbranch_scc1", "L_end", ['scc']))
        a(scmp("s_cmp_lg_u32", f"s{sW}", 0)); a(branch("s_cbranch_scc1", "L_end", ['scc']))
        a(vmov("v1", 0))
    else:
        a(raw("s_load_dwordx2 s[58:59], s[0:1], 40", 'smem', [], R('s', 58, 2))); a(wait(lg=0))
        a(S("s_lshl_b32", "s33", "s2", 2)); a(S("s_add_u32", "s33", "s33", f"s{sW}")); a(S("s_lshl_b32", "s33", "s33", 6))
        a(vmov("v1", "s33"))
    def put(off, x, y):
        if y is None: a(vmov("v2", x))
        else:
            a(S("s_sub_u32", "s33", x, y)); a(vmov("v2", "s33"))
        a(raw(f"global_store_dword v1, v2, s[58:59] offset:{off}", 'vstore', ['v1', 'v2', 's58', 's59'], [], data=['v2']))
        a(nop(1))
    if cfg.fine != 9:
        for i in range(11): put(4 * i, f"s{60+2*i}", "s60")
    else: put(40, "s80", "s60")
    put(44, "s84", "s82"); put(48, "s86", "s82"); put(52, "s88", "s82"); put(56, "s82", None)
    return o

def build():
    global MEM, LGW
    MEM = build_mem_schedule()
    LGW = compute_lgkm_waits()
    pro = prologue()
    body = body_iter(0)
    epi = epilogue()
    slow = slow_path()
    c_pro = [comment("---- prologue: load and scale Q (by log2(e)/sqrt(D)), first K/V tiles, scores of the first key tile."),
             comment("     The row maximum of that first tile is the shift m used by the softmax (exp2(s - m)); the row sums are"),
             comment("     range-checked in the epilogue and a tile whose sum is not a finite number <= 2^40 is recomputed with"),
             comment("     the true row maximum (L_slow).")]
    c_loop = [comment("---- main loop: two 128-key steps per iteration; per step QK^T, exp2, bf16 pack, P.V and row sums (all-ones MFMA);"),
              comment("     K/V tiles stream global -> LDS by DMA two steps ahead, double buffered, two barriers per step")]
    c_epi = [comment("---- epilogue: last P.V, merge of the two key halves of the shared rows, range check, normalise, store")]
    static = c_pro + pro + [raw(".p2align 6", 'label')] + [nop(0)] * cfg.shift + [label("L_loop")] + c_loop + body + [label("L_exit")] + c_epi + stamp(8) + \
             ([raw("s_memrealtime s[88:89]", 'stampi')] if cfg.stamps else []) + epi + stamp_out() + \
             [label("L_end"), raw("s_endpgm", 'branch')] + slow
    trace = list(pro)
    for it in range(4):
        b = body_iter(2 * it, last=(it == 3))
        assert [x.t for x in b] == [x.t for x in body[:len(b)]], "loop body is not periodic"
        trace += b
    trace += epi
    errs = verify(trace, "main")
    errs += verify(slow, "slow", check_lds=False)
    return static, errs, (pro, body, epi)

HEADER = """; Kernarg layout for this problem (48 bytes, ptrs only, base s[0:1]):
; One workgroup per (batch, q-head), four waves.  Wave w owns q rows 32w..32w+31 against all keys and the 16 rows
; @launch grid=(256,1,1) block=(256,1,1) lds=163840
.amdgcn_target "amdgcn-amd-amdhsa--gfx950"
.text
.globl {n}_kernel
.p2align 8
.type {n}_kernel,@function
{n}_kernel:
"""
FOOTER = """
.section .rodata,"a"
.p2align 6
.amdhsa_kernel {n}_kernel
  .amdhsa_next_free_vgpr 512
  .amdhsa_next_free_sgpr 96
  .amdhsa_accum_offset 256
  .amdhsa_group_segment_fixed_size 0
  .amdhsa_kernarg_size 48
  .amdhsa_user_sgpr_count 2
  .amdhsa_user_sgpr_kernarg_segment_ptr 1
  .amdhsa_system_sgpr_workgroup_id_x 1
.end_amdhsa_kernel
"""

def main(argv=None):
    ap = argparse.ArgumentParser()
    ap.add_argument("-o", default="cdna_kernels/%s.s" % NAME)
    ap.add_argument("--stamps", action="store_true")
    ap.add_argument("--stamp-wg", type=int, default=0)
    ap.add_argument("--force-slow", action="store_true")
    ap.add_argument("--thresh", default=None)
    ap.add_argument("--store-flags", default="nt")
    ap.add_argument("--ld", default="nt"); ap.add_argument("--qld", default="nt")
    ap.add_argument("--fine", type=int, default=0)
    ap.add_argument("--qsplit", type=int, default=2); ap.add_argument("--qsfirst", type=int, default=4)
    ap.add_argument("--v0pos", type=int, default=1); ap.add_argument("--codepf", type=int, default=12)
    ap.add_argument("--lead", type=int, default=8); ap.add_argument("--lag", type=int, default=6)
    ap.add_argument("--dv", default=None); ap.add_argument("--dk", default=None)
    ap.add_argument("--b1", type=int, default=132); ap.add_argument("--b2", type=int, default=34); ap.add_argument("--inc", type=int, default=80)
    ap.add_argument("--sched", default="early")
    ap.add_argument("--drop", default=""); ap.add_argument("--nobar", action="store_true")
    ap.add_argument("--epi", default="8,2,1")
    ap.add_argument("--show", action="store_true")
    ap.add_argument("--e64", action="store_true"); ap.add_argument("--shift", type=int, default=0)
    ap.add_argument("--nopvpair", action="store_true")
    ap.add_argument("--fakeqk", type=int, default=0); ap.add_argument("--fakepv", type=int, default=0)
    ap.add_argument("--alldma", action="store_true"); ap.add_argument("--qfirst", action="store_true"); ap.add_argument("--v0c", type=int, default=1)
    args = ap.parse_args(argv)
    cfg.stamps = args.stamps; cfg.stamp_wg = args.stamp_wg; cfg.force_slow = args.force_slow; cfg.store_flags = args.store_flags
    cfg.ld = args.ld; cfg.qld = args.qld; cfg.fine = args.fine; cfg.qsplit = args.qsplit; cfg.qsfirst = args.qsfirst
    cfg.e64 = args.e64; cfg.shift = args.shift
    cfg.pvpair = not args.nopvpair
    cfg.fakeqk = args.fakeqk; cfg.fakepv = args.fakepv
    cfg.alldma = args.alldma or args.qfirst; cfg.qfirst = args.qfirst; cfg.v0c = args.v0c
    cfg.v0pos = args.v0pos; cfg.codepf = args.codepf
    cfg.LEAD = args.lead; cfg.LAG = args.lag; cfg.sched = args.sched
    cfg.B1 = args.b1; cfg.B2 = args.b2; cfg.inc_slot = args.inc
    cfg.drop = tuple(x for x in args.drop.split(",") if x); cfg.nobar = args.nobar
    cfg.epi_nv, cfg.epi_ng, cfg.epi_pub = [int(x) for x in args.epi.split(",")]
    def pick(lo, n, spacing):
        out = []; g = lo
        while len(out) < n:
            if sm_kind(g) is None and (not out or g - out[-1] >= spacing): out.append(g)
            g += 1
        return tuple(out)
    cfg.dk_slots = tuple(int(x) for x in args.dk.split(",")) if args.dk else (136, 140, 144, 152, 160, 168, 176, 182)
    cfg.dv_slots = tuple(int(x) for x in args.dv.split(",")) if args.dv else pick(cfg.B2 + 2, 8, 4)
    if args.thresh: cfg.thresh = int(args.thresh, 0)
    static, errs, parts = build()
    if args.show:
        for s in range(STEP): print(s, sm_kind(s) or "", LGW[s], MEM[s])
    for e in errs[:40]: print("ERR", e)
    cnt = lambda L: sum(1 for x in L if x.k != 'label')
    print("dk", cfg.dk_slots, "dv", cfg.dv_slots, "sharing", cfg.nshare)
    print("errors:", len(errs), " instructions:", cnt(static), " pro/body/epi:", [cnt(p) for p in parts])
    open(args.o, "w").write(HEADER.format(n=NAME) + text_of(static) + FOOTER.format(n=NAME))

if __name__ == "__main__": main()
```
